```python
import torch

def _softmax(x, axis=-1):
    return torch.softmax(x, dim=axis)

def _gelu(x):
    return torch.nn.functional.gelu(x, approximate='tanh')

def _silu(x):
    return torch.nn.functional.silu(x)

def _sigmoid(x):
    return torch.sigmoid(x)

def _layernorm(x, axis=-1, eps=1e-05):
    m = x.mean(dim=axis, keepdim=True)
    v = x.var(dim=axis, keepdim=True, unbiased=False)
    return (x - m) / torch.sqrt(v + eps)

def _scatter_add(tgt, idx, src, axis=0):
    return tgt.clone().index_add_(axis, idx, src)

def _segment_sum(src, seg, n):
    out = torch.zeros((n,) + src.shape[1:], dtype=src.dtype)
    return out.index_add_(0, seg, src)

def _pad(x, pw):
    flat = tuple((v for pair in reversed(pw) for v in pair))
    return torch.nn.functional.pad(x, flat)
kernel_name = 'interleave_layers__memory_aug_recurrent_mem_tr__dense_activation_silu__prompt'

def setup_inputs():

    _w = lambda a: (lambda t: t.to(torch.bfloat16) if t.is_floating_point() else t)(torch.as_tensor(a))

    def _A_setup():
        B, S, Dm = (1, 2048, 448)
        H, Dh = (16, 256)
        M, seg = (8, 32)
        seg = min(seg, S)
        S = S // seg * seg
        return {'x': _w((lambda *s: torch.randn(*s, dtype=torch.bfloat16) * 0.05)(B, S, Dm)), 'mem0': _w((lambda *s: torch.randn(*s, dtype=torch.bfloat16) * 0.2)(B, M, Dm)), 'Wq': _w((lambda *s: torch.randn(*s, dtype=torch.bfloat16) * 1.6)(Dm, H, Dh) * Dm ** (-0.5)), 'Wk': _w((lambda *s: torch.randn(*s, dtype=torch.bfloat16) * 1.6)(Dm, H, Dh) * Dm ** (-0.5)), 'Wv': _w((lambda *s: torch.randn(*s, dtype=torch.bfloat16) * 0.2)(Dm, H, Dh) * Dm ** (-0.5)), 'Wo': _w((lambda *s: torch.randn(*s, dtype=torch.bfloat16) * 0.2)(H, Dh, Dm) * (H * Dh) ** (-0.5)), 'seg_len': seg}
    _A_in = _A_setup()

    def _B_setup():
        B, S, D, F = (1, 2048, 448, 1792)
        return {'x': _w((lambda *s: torch.randn(*s, dtype=torch.bfloat16) * 0.05)(B, S, D)), 'w1': _w((lambda *s: torch.randn(*s, dtype=torch.bfloat16) * 0.4)(D, F) * D ** (-0.5)), 'w2': _w((lambda *s: torch.randn(*s, dtype=torch.bfloat16) * 0.1)(F, D) * F ** (-0.5))}
    _B_in = _B_setup()
    return {'A_x': _A_in['x'], 'A_mem0': _A_in['mem0'], 'A_Wq': _A_in['Wq'], 'A_Wk': _A_in['Wk'], 'A_Wv': _A_in['Wv'], 'A_Wo': _A_in['Wo'], 'A_seg_len': _A_in['seg_len'], 'B_x': _B_in['x'], 'B_w1': _B_in['w1'], 'B_w2': _B_in['w2']}

def reference(A_x, A_mem0, A_Wq, A_Wk, A_Wv, A_Wo, A_seg_len, B_x, B_w1, B_w2):

    def _A_ref(x, mem0, Wq, Wk, Wv, Wo, seg_len):
        B, S, Dm = x.shape
        H, Dh = (Wq.shape[1], Wq.shape[2])
        M = mem0.shape[1]
        scale = Dh ** (-0.5)
        n_seg = S // seg_len
        L = M + seg_len
        idx = torch.arange(L)
        mask = (idx[:, None] < M) | (idx[:, None] >= idx[None, :])
        mem = mem0
        outs = []
        for s in range(n_seg):
            xs = x[:, s * seg_len:(s + 1) * seg_len, :].clone()
            h = torch.concatenate([mem, xs], axis=1)
            q = torch.einsum('btd,dhe->bhte', h, Wq)
            k = torch.einsum('btd,dhe->bhte', h, Wk)
            v = torch.einsum('btd,dhe->bhte', h, Wv)
            scores = torch.einsum('bhqe,bhke->bhqk', q, k) * scale
            scores = torch.where(mask[None, None], scores, -1000000000.0)
            p = _softmax(scores, axis=-1)
            o = torch.einsum('bhqk,bhke->bhqe', p, v)
            o = torch.einsum('bhte,hed->btd', o, Wo)
            mem = o[:, :M, :].clone()
            outs.append(o[:, M:, :])
        return torch.concatenate(outs, axis=1)

    def _B_ref(x, w1, w2):
        h = torch.einsum('bsd,df->bsf', x, w1)
        h = _silu(h)
        out = torch.einsum('bsf,fd->bsd', h, w2)
        return out
    x = A_x
    x = x + _A_ref(_layernorm(x, axis=-1), A_mem0, A_Wq, A_Wk, A_Wv, A_Wo, A_seg_len)
    x = x + _B_ref(_layernorm(x, axis=-1), B_w1, B_w2)
    x = x + _A_ref(_layernorm(x, axis=-1), A_mem0, A_Wq, A_Wk, A_Wv, A_Wo, A_seg_len)
    x = x + _B_ref(_layernorm(x, axis=-1), B_w1, B_w2)
    return x
```

```python
import re

REG = re.compile(r'^(-|\|)?(v|a|s)(\d+)\|?$')
RNG = re.compile(r'^(-)?(v|a|s)\[(\d+):(\d+)\]$')

def regs_of(op):
    op = op.strip()
    if op.startswith('abs(') or op.startswith('-abs('):
        op = op[op.index('(')+1:-1]
    m = REG.match(op)
    if m: return {(m.group(2), int(m.group(3)))}
    m = RNG.match(op)
    if m: return {(m.group(2), i) for i in range(int(m.group(3)), int(m.group(4))+1)}
    if op == 'vcc': return {('s', 'vcc')}
    if op == 'exec': return {('s', 'exec')}
    if op == 'm0': return {('s', 'm0')}
    return set()

TRANS = ('v_exp_f32', 'v_log_f32', 'v_rcp_f32', 'v_rsq_f32', 'v_sqrt_f32', 'v_sin_f32', 'v_cos_f32', 'v_rcp_iflag_f32')

class Ins:
    __slots__ = ('text', 'op', 'kind', 'dst', 'src', 'srcC', 'srcAB', 'passes', 'dpp', 'label', 'target', 'wide_store', 'lds', 'saddr', 'nops')
    def __init__(self, text):
        self.text = text
        t = text.split(';')[0].strip()
        self.label = None; self.target = None; self.kind = 'other'; self.dst = set(); self.src = set()
        self.srcC = set(); self.srcAB = set(); self.passes = 0; self.dpp = False; self.wide_store = False; self.lds = False
        self.saddr = set(); self.nops = 1
        if t.endswith(':'):
            self.label = t[:-1]; self.op = ''; self.kind = 'label'; self.nops = 0; return
        if not t or t.startswith('.'):
            self.op = ''; self.kind = 'dir'; self.nops = 0; return
        m = re.match(r'(\S+)\s*(.*)', t)
        op, rest = m.group(1), m.group(2)
        self.op = op
        ops = []; cur = ''; d = 0
        for ch in rest:
            if ch in '[(': d += 1
            if ch in '])': d -= 1
            if ch == ',' and d == 0: ops.append(cur.strip()); cur = ''
            else: cur += ch
        if cur.strip(): ops.append(cur.strip())
        mods = ''
        if ops:
            parts = ops[-1].split(None, 1)
            if len(parts) > 1 and not parts[0].endswith('('): ops[-1] = parts[0]; mods = parts[1]
        R = [regs_of(o) for o in ops]
        U = lambda xs: set().union(*xs) if xs else set()
        if op.startswith('v_mfma') or op.startswith('v_smfmac'):
            self.kind = 'mfma'
            self.passes = 8 if '32x32' in op else 4
            self.dst = R[0]; self.srcAB = R[1] | R[2]
            if op.startswith('v_smfmac'):
                self.srcC = R[0]; self.srcAB |= R[3]
            else: self.srcC = R[3]
            self.src = self.srcAB | self.srcC
        elif op.startswith('ds_'):
            self.kind = 'ds'
            if op.startswith('ds_read') or op.startswith('ds_bpermute') or op.startswith('ds_swizzle') or '_rtn' in op:
                self.dst = R[0]; self.src = U(R[1:])
            else: self.src = U(R)
        elif op.startswith('buffer_') or op.startswith('global_'):
            self.kind = 'vmem'
            islds = (' lds' in ' ' + mods) or op.startswith('global_load_lds')
            self.lds = islds
            if op in ('buffer_wbl2', 'buffer_inv'): pass
            elif (op.startswith('buffer_load') or op.startswith('global_load')) and not islds: self.dst = R[0]; self.src = U(R[1:])
            elif op.startswith('buffer_atomic') and 'sc0' in mods: self.dst = R[0]; self.src = U(R)
            else: self.src = U(R)
            if islds: self.src = self.src | {('s', 'm0')}
            if op.startswith('buffer_store_dwordx4') or op.startswith('buffer_store_dwordx3'):
                self.wide_store = True; self.srcC = R[0]
            self.saddr = {r for r in self.src if r[0] == 's'}
        elif op.startswith('v_'):
            self.kind = 'valu'
            self.dpp = '_dpp' in op or 'row_' in mods or 'quad_perm' in mods
            if op.startswith('v_permlane') and 'swap' in op or op.startswith('v_swap'):
                self.dst = R[0] | R[1]; self.src = R[0] | R[1]
            elif op.startswith('v_add_co') or op.startswith('v_sub_co') or op.startswith('v_addc_co'):
                self.dst = R[0] | R[1]; self.src = U(R[2:])
            else:
                self.dst = R[0]; self.src = U(R[1:])
                if op.startswith('v_fmac') or op.startswith('v_dot2c') or op.startswith('v_pk_fmac') or self.dpp or op.startswith('v_writelane'):
                    self.src = self.src | R[0]
                if op.startswith('v_cndmask') and len(ops) == 3: self.src = self.src | {('s', 'vcc')}
            if op.startswith('v_cmpx'): self.dst = self.dst | {('s', 'exec')}
        elif op.startswith('s_'):
            self.kind = 'salu'
            if op == 's_nop': self.nops = int(ops[0], 0) + 1; self.kind = 'nop'
            elif op in ('s_branch',) or op.startswith('s_cbranch'):
                self.kind = 'branch'; self.target = ops[0]
            elif op.startswith('s_load') or op.startswith('s_memtime') or op.startswith('s_memrealtime') or op.startswith('s_buffer_load'):
                self.kind = 'smem'; self.dst = R[0]; self.src = U(R[1:])
            elif op.startswith('s_cmp') or op.startswith('s_bitcmp') or op in ('s_waitcnt', 's_barrier', 's_endpgm', 's_sleep', 's_setprio'):
                self.src = U(R)
            else:
                self.dst = R[0]; self.src = U(R[1:])
                if 'saveexec' in op: self.dst = self.dst | {('s', 'exec')}

def need(p, c):
    n = 0
    V = lambda S: {r for r in S if r[0] in 'va'}
    Sg = lambda S: {r for r in S if r[0] == 's'}
    if p.kind == 'valu':
        vd = V(p.dst); sd = Sg(p.dst)
        if c.kind == 'mfma' and vd & c.src: n = max(n, 2)
        if c.kind == 'mfma' and ('s', 'exec') in sd: n = max(n, 4)
        if c.kind == 'valu':
            if c.dpp and vd & c.src: n = max(n, 2)
            if c.dpp and ('s', 'exec') in sd: n = max(n, 5)
            if c.op.startswith('v_permlane') and vd & c.src: n = max(n, 2)
            if (c.op.startswith('v_readlane') or c.op.startswith('v_readfirstlane')) and vd & c.src: n = max(n, 1)
            if (c.op.startswith('v_readlane') or c.op.startswith('v_writelane')) and sd & c.src: n = max(n, 4)
            if ('s', 'exec') in sd and (c.op.startswith('v_read') or c.op.startswith('v_writelane') or c.op.startswith('v_permlane')): n = max(n, 4)
            if sd & c.src: n = max(n, 2)
            if any(p.op.startswith(t) for t in TRANS) and vd & c.src: n = max(n, 1)
        if c.kind == 'vmem' and sd & c.src: n = max(n, 5)
    if p.op.startswith('v_dot') and c.kind in ('valu', 'mfma', 'vmem', 'ds') and p.dst & (c.src | c.dst):
        ab = set()
        if c.op == p.op:
            o = [x.strip() for x in c.text.split(None, 1)[1].split(',')]
            ab = regs_of(o[1]) | regs_of(o[2])
        if c.op != p.op or p.dst & ab: n = max(n, 3)
    if p.kind == 'salu' and ('s', 'm0') in p.dst and c.kind == 'vmem' and c.lds: n = max(n, 1)
    if p.kind == 'vmem' and p.wide_store:
        if c.kind == 'valu' and p.srcC & c.dst: n = max(n, 2)
        elif p.srcC & c.dst: n = max(n, 1)
    if p.kind == 'mfma':
        big = p.passes == 8
        if c.kind == 'mfma':
            if p.dst & c.srcAB: n = max(n, 12 if big else 8)
            if p.dst & c.srcC and not (p.dst == c.srcC and p.op == c.op): n = max(n, 10 if big else 6)
            if p.dst & c.dst and not (p.dst & c.srcC): n = max(n, 10 if big else 6)
        elif c.kind in ('valu', 'vmem', 'ds'):
            if p.dst & (c.src | c.dst): n = max(n, 12 if big else 8)
            if c.kind == 'valu' and p.srcC & c.dst: n = max(n, 7 if big else 3)
    return n

class Asm:
    def __init__(self): self.lines = []
    def __call__(self, text):
        for l in text.split('\n'):
            l = l.strip()
            if l: self.lines.append(l)
    def label(self, n): self.lines.append(n + ':')

    def finish(self, lint=True):
        ins = [Ins(l) for l in self.lines]
        W = 14
        def pad_needed(prev, c):
            d = 0; worst = 0; nm = 0; tail = 0
            for p in reversed(prev):
                if p.kind in ('label', 'dir'): continue
                dist = d
                if p.kind == 'mfma' and nm:
                    t = p.passes + 4 * (nm - 1) + tail if c.kind != 'mfma' else p.passes + 4 * nm - 1
                    dist = max(d, t)
                k = need(p, c) - dist
                if k > worst: worst = k
                if p.kind == 'mfma': nm += 1
                elif not nm: tail += p.nops
                d += p.nops
                if d >= W: break
            return worst
        changed = True; total = 0
        while changed:
            changed = False
            out = []
            for c in ins:
                if c.kind not in ('label', 'dir'):
                    k = pad_needed(out[-40:], c)
                    if k > 0: out.append(Ins(f's_nop {k-1}')); total += k
                out.append(c)
            ins = out
            pos = {c.label: i for i, c in enumerate(ins) if c.kind == 'label'}
            for i, b in enumerate(ins):
                if b.kind != 'branch' or b.target not in pos: continue
                prev = ins[max(0, i-40):i+1]; j = pos[b.target] + 1; d = 0
                seq = list(prev)
                while j < len(ins) and d < W:
                    c = ins[j]
                    if c.kind not in ('label', 'dir'):
                        k = pad_needed(seq, c)
                        if k > 0:
                            ins.insert(pos[b.target] + 1, Ins(f's_nop {k-1}')); total += k; changed = True; break
                        d += c.nops
                        if c.op in ('s_branch', 's_endpgm'): break
                    seq.append(c); j += 1
                if changed: break
        self.pad_total = total
        if lint: lint_waits(ins)
        return '\n'.join((c.text if c.kind in ('label', 'dir') else '  ' + c.text) for c in ins) + '\n'

def lint_waits(ins):
    pos = {c.label: i for i, c in enumerate(ins) if c.kind == 'label'}
    seen = set(); visited = {}
    stack = [(0, (), ())]
    while stack:
        pc, vm, lg = stack.pop()
        while pc < len(ins):
            c = ins[pc]
            if c.kind == 'label':
                key = (vm, lg); v = visited.setdefault(pc, set())
                if key in v or len(v) >= 24: break
                v.add(key); pc += 1; continue
            if c.kind == 'dir': pc += 1; continue
            if c.op == 's_waitcnt':
                m = re.search(r'vmcnt\((\d+)\)', c.text)
                if m:
                    n = int(m.group(1)); vm = vm[len(vm)-n:] if n and len(vm) > n else (() if n == 0 else vm)
                m = re.search(r'lgkmcnt\((\d+)\)', c.text)
                if m:
                    n = int(m.group(1))
                    if n == 0: lg = ()
                    elif not any(k == 'smem' for k, _ in lg): lg = lg[len(lg)-n:] if len(lg) > n else lg
                pc += 1; continue
            if c.op == 's_endpgm': break
            if c.kind == 'branch':
                if c.target in pos: stack.append((pos[c.target], vm, lg))
                if c.op == 's_branch': break
                pc += 1; continue
            for q, nm in ((vm, 'vm'), ([d for _, d in lg], 'lgkm')):
                same = (nm == 'vm' and c.kind == 'vmem') or (nm == 'lgkm' and c.kind == 'ds')
                t = c.src if same else c.src | c.dst
                for d in q:
                    if d & t and (pc, nm) not in seen:
                        seen.add((pc, nm)); print(f'LINT {nm} outstanding at {pc}: {c.text}')
            if c.kind == 'vmem': vm = (vm + (frozenset(c.dst),))[-63:]
            elif c.kind == 'ds': lg = lg + (('ds', frozenset(c.dst)),)
            elif c.kind == 'smem': lg = lg + (('smem', frozenset(c.dst)),)
            pc += 1
```

```python
from asmlib import Asm
import struct
def f2u(x): return struct.unpack('<I', struct.pack('<f', x))[0]
def srd(a, d, base, size):
    a(f's_mov_b32 s{d}, s{base}\ns_mov_b32 s{d+1}, s{base+1}\ns_mov_b32 s{d+2}, {size:#x}\ns_mov_b32 s{d+3}, 0x20000')
def vr(i, n=1): return f'v{i}' if n == 1 else f'v[{i}:{i+n-1}]'
def ar(i, n=1): return f'a{i}' if n == 1 else f'a[{i}:{i+n-1}]'
def wave_sum(a, v, t):
    for r in (8, 4, 2, 1):
        a(f'v_add_f32_dpp v{v}, v{v}, v{v} row_ror:{r} row_mask:0xf bank_mask:0xf')
    cross_rows(a, v, t, 'v_add_f32')
def cross_rows(a, v, t, op):
    a(f'v_mov_b32 v{t}, v{v}\nv_permlane16_swap_b32 v{v}, v{t}\n{op} v{v}, v{v}, v{t}')
    a(f'v_mov_b32 v{t}, v{v}\nv_permlane32_swap_b32 v{v}, v{t}\n{op} v{v}, v{v}, v{t}')
def unpack8(a, dst, src):
    for i in range(4):
        a(f'v_lshlrev_b32 v{dst+2*i}, 16, v{src+i}\nv_and_b32 v{dst+2*i+1}, 0xffff0000, v{src+i}')
def pack8(a, dst, src, guard=False):
    for i in range(4):
        a(f'v_cvt_pk_bf16_f32 v{dst+i}, v{src+2*i}, v{src+2*i+1}')
    if guard:
        for i in range(4): a(f'v_min_u32 v{dst+i}, -2, v{dst+i}')
def layernorm8(a, x, t, vmask):
    a(f'v_add_f32 v{t}, v{x}, v{x+1}')
    for i in range(2, 8): a(f'v_add_f32 v{t}, v{t}, v{x+i}')
    wave_sum(a, t, t+1)
    a(f'v_mul_f32 v{t}, {f2u(1/448):#x}, v{t}')
    for i in range(8): a(f'v_sub_f32 v{x+i}, v{x+i}, v{t}')
    a(f'v_mul_f32 v{t}, v{x}, v{x}')
    for i in range(1, 8): a(f'v_fmac_f32 v{t}, v{x+i}, v{x+i}')
    a(f'v_mul_f32 v{t}, v{t}, v{vmask}')
    wave_sum(a, t, t+1)
    a(f'v_mov_b32 v{t+1}, {f2u(1e-5):#x}\nv_fmac_f32 v{t+1}, {f2u(1/448):#x}, v{t}')
    a(f'v_rsq_f32 v{t}, v{t+1}')
    for i in range(8): a(f'v_mul_f32 v{x+i}, v{x+i}, v{t}')
def kdesc(name, vgpr, acc, sgpr=102):
    return f""".section .rodata,"a"
.p2align 6
.amdhsa_kernel {name}
  .amdhsa_next_free_vgpr {vgpr}
  .amdhsa_next_free_sgpr {sgpr}
  .amdhsa_accum_offset {acc}
  .amdhsa_group_segment_fixed_size 0
  .amdhsa_kernarg_size 104
  .amdhsa_user_sgpr_count 2
  .amdhsa_user_sgpr_kernarg_segment_ptr 1
  .amdhsa_system_sgpr_workgroup_id_x 1
  .amdhsa_float_denorm_mode_32 3
.end_amdhsa_kernel
"""
def khead(name): return f'.text\n.globl {name}\n.p2align 8\n.type {name},@function\n{name}:\n'
```

```python
from common import *
from layout import *
NAME = 'prep_kernel'
LDS = 32 * KB
ST = ''
def gen(st=ST):
    a = Asm()
    WS, SA, SB, SX = 24, 28, 32, 36
    vX, vG, vL16, vOFF, vT = 2, 3, 4, 5, 6
    a('s_cmp_ge_u32 s2, 256\ns_cbranch_scc1 K0_END')
    a('s_load_dwordx4 s[4:7], s[0:1], 0\ns_load_dwordx4 s[8:11], s[0:1], 16\ns_load_dwordx4 s[12:15], s[0:1], 32')
    a('s_load_dwordx4 s[16:19], s[0:1], 64\ns_load_dwordx2 s[20:21], s[0:1], 96')
    a(f'v_and_b32 v1, 63, v0\nv_lshrrev_b32 v{vT}, 6, v0')
    a(f'v_and_b32 v{vX}, 15, v1\nv_lshrrev_b32 v{vG}, 4, v1\nv_lshlrev_b32 v{vL16}, 4, v1')
    a(f'v_readfirstlane_b32 s3, v{vT}')
    a('s_and_b32 s40, s2, 7\ns_lshr_b32 s41, s2, 3')
    a('s_waitcnt lgkmcnt(0)')
    srd(a, WS, 20, 1 << 28); srd(a, SX, 4, XS_SZ)
    a(f'v_lshrrev_b32 v{vT}, 2, v1\nv_lshlrev_b32 v{vT}, 6, v{vT}\nv_and_b32 v7, 3, v1\nv_lshl_add_u32 v8, v7, 3, v{vT}')
    a('v_cmp_gt_u32 vcc, 56, v1')
    a('v_mov_b32 v7, 0x7fffffff\nv_cndmask_b32 v8, v7, v8, vcc')
    a('v_cndmask_b32 v9, 0, 1.0, vcc')
    a(f'v_lshlrev_b32 v10, 8, v1\nv_cndmask_b32 v10, v7, v10, vcc')
    a(f's_lshl_b32 s42, s2, 3\ns_lshl_b32 s43, s3, 1\ns_add_u32 s42, s42, s43\ns_mul_i32 s42, s42, {ROW}')
    a(f'buffer_load_dwordx2 v[12:13], v8, s[{SX}:{SX+3}], s42 offen\nbuffer_load_dwordx2 v[14:15], v8, s[{SX}:{SX+3}], s42 offen offset:32')
    a(f'buffer_load_dwordx2 v[16:17], v8, s[{SX}:{SX+3}], s42 offen offset:{ROW}\nbuffer_load_dwordx2 v[18:19], v8, s[{SX}:{SX+3}], s42 offen offset:{ROW+32}')
    a(f'v_and_b32 v7, 1, v{vX}\nv_cmp_eq_u32 vcc, 1, v7\nv_mov_b32 v28, 0x3f80\nv_mov_b32 v29, 0x3f800000\nv_cndmask_b32 v28, v28, v29, vcc')
    a(f'v_lshrrev_b32 v7, 3, v{vX}\nv_bfe_u32 v29, v{vX}, 1, 2')
    a(f'v_lshl_add_u32 v30, v7, 2, v29\nv_lshlrev_b32 v31, 2, v{vG}')
    for half in range(2):
        for d in range(4):
            a(f'v_add_u32 v7, {d - 8*half}, v31\nv_cmp_eq_u32 vcc, v7, v30\nv_cndmask_b32 v{20+4*half+d}, 0, v28, vcc')
    a('s_cmp_ge_u32 s41, 28\ns_cbranch_scc1 K0_W')
    a('s_mul_i32 s44, s41, 37\ns_lshr_b32 s44, s44, 8\ns_mul_i32 s45, s44, 7\ns_sub_u32 s45, s41, s45')
    a('s_lshr_b32 s46, s44, 1\ns_lshl_b32 s47, s40, 1\ns_add_u32 s46, s46, s47')
    a(f'v_lshlrev_b32 v{vOFF}, 13, v{vX}\nv_lshl_add_u32 v{vOFF}, v{vG}, 4, v{vOFF}')
    a('s_lshl_b32 s47, s45, 2\ns_add_u32 s47, s47, s3\ns_lshl_b32 s47, s47, 17\ns_lshl_b32 s48, s46, 9\ns_add_u32 s47, s47, s48')
    a('s_and_b32 s49, s44, 1\ns_cmp_eq_u32 s49, 1\ns_cselect_b32 s50, s12, s8\ns_cselect_b32 s51, s13, s9')
    srd(a, SA, 50, 448 * 8192)
    a('s_lshl_b32 s52, s3, 13')
    for ks in range(8):
        a(f's_add_u32 m0, s52, {ks*(1024-64)}' if ks else 's_mov_b32 m0, s52')
        a(f'buffer_load_dwordx4 v{vOFF}, s[{SA}:{SA+3}], s47 offen offset:{64*ks} lds')
    ACC = 32
    AF = 144
    a('s_cmp_eq_u32 s49, 1\ns_cbranch_scc1 K0_B')
    srd(a, SB, 10, 448 * 8192)
    a('s_mul_i32 s53, s3, 7\ns_add_u32 s53, s53, 1\ns_lshr_b32 s53, s53, 1\ns_lshl_b32 s53, s53, 18\ns_add_u32 s53, s53, s48')
    for tl in range(6): a(f's_add_u32 s{60+tl}, s53, {tl*131072}')
    a('s_lshr_b32 s54, s3, 1\ns_mul_i32 s54, s54, 14\ns_and_b32 s55, s3, 1\ns_add_u32 s54, s54, s55\ns_add_u32 s54, s54, 6\ns_lshl_b32 s54, s54, 17\ns_add_u32 s66, s54, s48')
    for ks in range(8):
        for tl in range(7):
            a(f'buffer_load_dwordx4 {ar(4*(ks*7+tl),4)}, v{vOFF}, s[{SB}:{SB+3}], s{60+tl} offen offset:{64*ks}')
    a('s_waitcnt vmcnt(56)\ns_barrier')
    for ks in range(8):
        for it in range(4): a(f'ds_read_b128 {vr(AF+4*it,4)}, v{vL16} offset:{it*8192+ks*1024}')
        a(f's_waitcnt vmcnt({49-7*ks})')
        for it in range(4):
            a(f's_waitcnt lgkmcnt({3-it})')
            for tl in range(7):
                c = vr(ACC+4*(it*7+tl), 4)
                a(f'v_mfma_f32_16x16x32_bf16 {c}, {vr(AF+4*it,4)}, {ar(4*(ks*7+tl),4)}, {c if ks else 0}')
    a(f's_mov_b32 s56, {f2u(SCALE):#x}')
    a(f's_lshl_b32 s57, s46, 2\ns_add_u32 s57, s57, s3\ns_mul_i32 s57, s57, {98*KB}\ns_mul_i32 s58, s45, {14*KB}\ns_add_u32 s57, s57, s58')
    if AIMG: a(f's_add_u32 s57, s57, {AIMG}')
    for tl in range(7):
        for Tp in range(2):
            o = 160 + 4 * ((tl*2+Tp) % 8)
            for hf in range(2):
                c = ACC + 4*((2*Tp+hf)*7+tl)
                for i in range(4): a(f'v_mul_f32 v{c+i}, s56, v{c+i}')
                a(f'v_cvt_pk_bf16_f32 v{o+2*hf}, v{c}, v{c+1}\nv_cvt_pk_bf16_f32 v{o+2*hf+1}, v{c+2}, v{c+3}')
            f = tl*2+Tp
            if f and f % 4 == 0: a('s_add_u32 s57, s57, 4096')
            a(f'buffer_store_dwordx4 {vr(o,4)}, v{vL16}, s[{WS}:{WS+3}], s57 offen offset:{(f%4)*1024} {st}')
    a('s_branch K0_TAIL')
    a.label('K0_B')
    srd(a, SB, 14, 4096 * ROW)
    a(f'v_mul_u32_u24 v{vOFF}, {ROW}, v{vX}\nv_lshl_add_u32 v{vOFF}, v{vG}, 4, v{vOFF}')
    a(f's_mul_i32 s53, s46, {256*ROW}\ns_mul_i32 s54, s3, 224\ns_add_u32 s53, s53, s54')
    for et in range(16):
        if et: a(f's_add_u32 s53, s53, {16*ROW}')
        for q in range(4):
            a(f'buffer_load_dwordx4 {ar(4*(et*4+q),4)}, v{vOFF}, s[{SB}:{SB+3}], s53 offen offset:{64*q}')
    a(f'v_lshrrev_b32 v7, 1, v{vG}\nv_lshl_add_u32 v7, v7, 4, v{vX}\nv_lshlrev_b32 v7, 4, v7\nv_and_b32 v11, 1, v{vG}\nv_lshl_add_u32 v11, v11, 3, v7')
    a('s_waitcnt vmcnt(63)\ns_barrier')
    TD = 160
    BF = 216
    for it in range(4): a(f'v_add_u32 v{244+it}, {it*8192}, v11')
    for ks in range(8):
        a(f's_waitcnt vmcnt({56-8*ks})')
        for tl in range(7):
            for ep in range(2):
                a(f'v_mfma_f32_16x16x32_bf16 {vr(TD+4*(tl*2+ep),4)}, {ar(4*((2*ks+ep)*4+(tl>>1)),4)}, {vr(20+4*(tl&1),4)}, 0')
        for it in range(4): a(f'ds_read2_b64 {vr(AF+4*it,4)}, v{244+it} offset0:{ks*128 % 256} offset1:{ks*128 % 256 + 64}')
        if ks % 2 == 1 and ks < 7:
            for it in range(4): a(f'v_add_u32 v{244+it}, 2048, v{244+it}')
        for tl in range(7):
            for ep in range(2):
                c = TD+4*(tl*2+ep)
                a(f'v_cvt_pk_bf16_f32 v{BF+4*tl+2*ep}, v{c}, v{c+1}\nv_cvt_pk_bf16_f32 v{BF+4*tl+2*ep+1}, v{c+2}, v{c+3}')
        a('s_waitcnt lgkmcnt(0)')
        for tl in range(7):
            for it in range(4):
                c = vr(ACC+4*(it*7+tl), 4)
                a(f'v_mfma_f32_16x16x32_bf16 {c}, {vr(AF+4*it,4)}, {vr(BF+4*tl,4)}, {c if ks else 0}')
    a(f's_lshr_b32 s57, s46, 2\ns_mul_i32 s57, s57, {112*KB}\ns_lshl_b32 s58, s45, 14\ns_add_u32 s57, s57, s58')
    a(f's_and_b32 s58, s46, 3\ns_lshl_b32 s58, s58, 12\ns_add_u32 s57, s57, s58\ns_add_u32 s57, s57, {BIMG}\ns_mul_i32 s59, s3, 7')
    for tl in range(7):
        a(f's_add_u32 s60, s59, {tl}\ns_lshr_b32 s61, s60, 1\ns_mul_i32 s61, s61, {4*112*KB}\ns_and_b32 s60, s60, 1\ns_lshl_b32 s60, s60, 11\ns_add_u32 s61, s61, s60\ns_add_u32 s61, s61, s57')
        for Tp in range(2):
            o = 160 + 4 * ((tl*2+Tp) % 8)
            for hf in range(2):
                c = ACC + 4*((2*Tp+hf)*7+tl)
                a(f'v_cvt_pk_bf16_f32 v{o+2*hf}, v{c}, v{c+1}\nv_cvt_pk_bf16_f32 v{o+2*hf+1}, v{c+2}, v{c+3}')
            a(f'buffer_store_dwordx4 {vr(o,4)}, v{vL16}, s[{WS}:{WS+3}], s61 offen offset:{Tp*1024} {st}')
    a('s_branch K0_TAIL')
    a.label('K0_W')
    a('s_sub_u32 s44, s41, 28\ns_lshl_b32 s44, s44, 3\ns_add_u32 s44, s44, s40')
    a('s_cmp_ge_u32 s44, 28\ns_cbranch_scc1 K0_MEM')
    a('s_lshl_b32 s44, s44, 2\ns_add_u32 s44, s44, s3')
    a('s_cmp_ge_u32 s44, 56\ns_cselect_b32 s49, 1, 0\ns_cselect_b32 s50, s18, s16\ns_cselect_b32 s51, s19, s17')
    srd(a, SB, 50, 448 * 3584)
    a(f's_mov_b32 s52, 3584\ns_cselect_b32 s52, {ROW}, s52')
    a('s_sub_u32 s45, s44, 56\ns_mul_i32 s46, s45, 37\ns_lshr_b32 s46, s46, 9\ns_mul_i32 s47, s46, 14\ns_sub_u32 s47, s45, s47')
    a('s_cmp_eq_u32 s49, 1\ns_cselect_b32 s47, s47, s44\ns_cselect_b32 s46, s46, 0')
    a(f's_mul_i32 s53, s46, {448*ROW}\ns_lshl_b32 s54, s47, 6\ns_add_u32 s53, s53, s54\ns_lshl_b32 s55, s52, 4')
    a(f'v_mul_lo_u32 v{vOFF}, s52, v{vX}\nv_lshl_add_u32 v{vOFF}, v{vG}, 4, v{vOFF}')
    for it in range(28):
        if it: a('s_add_u32 s53, s53, s55')
        a(f'buffer_load_dwordx4 {ar(4*it,4)}, v{vOFF}, s[{SB}:{SB+3}], s53 offen')
    D = 32
    for it in range(28):
        a(f's_waitcnt vmcnt({27-it})')
        for hf in range(2):
            a(f'v_mfma_f32_16x16x32_bf16 {vr(D+8*it+4*hf,4)}, {ar(4*it,4)}, {vr(20+4*hf,4)}, 0')
    a('s_cmp_eq_u32 s49, 1\ns_cbranch_scc1 K0_WST')
    for hf in range(2):
        a(f'v_add_f32 v28, v{D+4*hf}, v{D+4*hf+1}\nv_add_f32 v29, v{D+4*hf+2}, v{D+4*hf+3}')
        for it in range(1, 28):
            c = D+8*it+4*hf
            a(f'v_add_f32 v28, v28, v{c}\nv_add_f32 v29, v29, v{c+1}\nv_add_f32 v28, v28, v{c+2}\nv_add_f32 v29, v29, v{c+3}')
        a('v_add_f32 v28, v28, v29')
        cross_rows(a, 28, 29, 'v_add_f32')
        a(f'v_mul_f32 v28, {f2u(1/448):#x}, v28')
        for it in range(28):
            for i in range(4): a(f'v_sub_f32 v{D+8*it+4*hf+i}, v{D+8*it+4*hf+i}, v28')
    a.label('K0_WST')
    a(f's_lshr_b32 s56, s47, 1\ns_mul_i32 s56, s56, {112*KB}\ns_and_b32 s57, s47, 1\ns_lshl_b32 s57, s57, 11\ns_add_u32 s56, s56, s57\ns_add_u32 s56, s56, {FIMG}')
    a('s_cmp_ge_u32 s47, 7\ns_cselect_b32 s60, 7, 0\ns_cselect_b32 s61, 2, 0\ns_sub_u32 s60, s47, s60')
    for hf in range(2):
        a(f's_lshl_b32 s62, s60, 1\ns_add_u32 s62, s62, {hf}\ns_sub_u32 s64, s62, 8\ns_cmp_gt_u32 s60, 3\ns_cselect_b32 s62, s64, s62\ns_cselect_b32 s65, 1, 0')
        a(f's_cmp_eq_u32 s60, 3\ns_cselect_b32 s62, 6, s62\ns_cselect_b32 s65, {hf}, s65\ns_add_u32 s65, s65, s61')
        a(f's_mul_i32 s65, s65, {112*KB}\ns_lshl_b32 s62, s62, 10\ns_add_u32 s65, s65, s62\ns_add_u32 s{58+hf}, s65, {FIMG+56*KB}')
    a('s_mul_i32 s63, s46, 14')
    for T in range(14):
        a(f's_add_u32 s60, s63, {T}\ns_lshr_b32 s61, s60, 3\ns_mul_i32 s61, s61, {4*112*KB}\ns_and_b32 s62, s60, 1\ns_lshl_b32 s62, s62, 2\ns_bfe_u32 s60, s60, 0x20001\ns_add_u32 s60, s60, s62\ns_mul_i32 s60, s60, {7*KB}\ns_add_u32 s61, s61, s60')
        for hf in range(2):
            a(f's_add_u32 s64, s61, s{58+hf}\ns_add_u32 s65, s56, {(T*4+hf)*KB}\ns_cmp_eq_u32 s49, 1\ns_cselect_b32 s64, s64, s65')
            o = 20 + 4*hf
            for p in range(2):
                c = D + 8*(2*T+p) + 4*hf
                a(f'v_cvt_pk_bf16_f32 v{o+2*p}, v{c}, v{c+1}\nv_cvt_pk_bf16_f32 v{o+2*p+1}, v{c+2}, v{c+3}')
            a(f'buffer_store_dwordx4 {vr(o,4)}, v{vL16}, s[{WS}:{WS+3}], s64 offen {st}')
    a('s_branch K0_TAIL')
    a.label('K0_MEM')
    a('s_cmp_lg_u32 s44, 31\ns_cbranch_scc1 K0_TAIL')
    srd(a, SB, 6, MEM_ONE)
    for i in range(7):
        if i == 0:
            a('v_lshrrev_b32 v32, 2, v0\nv_and_b32 v33, 3, v0\nv_and_b32 v34, 7, v32\nv_bfe_u32 v35, v32, 3, 1\nv_lshrrev_b32 v36, 4, v32')
            a(f'v_mul_u32_u24 v37, {ROW}, v34')
            a('v_lshrrev_b32 v38, 1, v36\nv_lshl_add_u32 v37, v38, 6, v37\nv_and_b32 v38, 1, v33\nv_lshl_add_u32 v37, v38, 5, v37')
            a('v_and_b32 v38, 1, v36\nv_lshl_add_u32 v37, v38, 4, v37\nv_lshrrev_b32 v38, 1, v33\nv_lshl_add_u32 v37, v38, 3, v37\nv_lshl_add_u32 v37, v35, 2, v37')
        a(f'buffer_load_dword v{40+i}, v37, s[{SB}:{SB+3}], 0 offen offset:{128*i}')
    a(f'v_bfe_u32 v33, v0, 2, 3\nv_mul_u32_u24 v35, {ROW}, v33\nv_lshrrev_b32 v36, 7, v0\nv_lshl_add_u32 v35, v36, 6, v35\nv_bfe_u32 v36, v0, 1, 1\nv_lshl_add_u32 v35, v36, 5, v35')
    a('v_bfe_u32 v36, v0, 5, 2\nv_lshl_add_u32 v35, v36, 3, v35\nv_and_b32 v36, 1, v0\nv_lshl_add_u32 v35, v36, 2, v35')
    for i in range(7): a(f'buffer_load_dword v{48+i}, v35, s[{SB}:{SB+3}], 0 offen offset:{128*i}')
    a('v_lshlrev_b32 v32, 2, v0\ns_waitcnt vmcnt(0)')
    for i in range(7): a(f'v_min_u32 v{40+i}, -2, v{40+i}\nv_min_u32 v{48+i}, -2, v{48+i}')
    for l in range(4):
        for k in range(2):
            for i in range(7):
                a(f's_mov_b32 s60, {MEMX + (2*l+k)*MEM_ONE + 1024*i}\nbuffer_store_dword v{40+8*k+i}, v32, s[{WS}:{WS+3}], s60 offen {st}')
    a.label('K0_TAIL')
    a(f'v_mov_b32 v20, -1\nv_mov_b32 v21, -1\nv_mov_b32 v22, -1\nv_mov_b32 v23, -1')
    a(f's_lshl_b32 s60, s2, 2\ns_add_u32 s60, s60, s3\ns_mul_i32 s60, s60, {POI_PER_WAVE*KB}\ns_add_u32 s60, s60, {POI0}')
    for i in range(POI_PER_WAVE):
        if i and i % 4 == 0: a('s_add_u32 s60, s60, 4096')
        a(f'buffer_store_dwordx4 v[20:23], v{vL16}, s[{WS}:{WS+3}], s60 offen offset:{(i%4)*1024} {st}')
    a(f's_waitcnt vmcnt({POI_PER_WAVE})')
    a(f's_lshr_b32 s42, s2, 1\ns_mul_i32 s42, s42, {MT}\ns_and_b32 s43, s2, 1\ns_lshl_b32 s43, s43, 7\ns_add_u32 s42, s42, s43\ns_lshl_b32 s43, s3, 5\ns_add_u32 s42, s42, s43')
    a(f's_add_u32 s43, s42, {XR1}\ns_add_u32 s42, s42, {XS1}')
    for t in range(2):
        for i in range(4): a(f'v_min_u32 v{12+4*t+i}, -2, v{12+4*t+i}')
        a(f'buffer_store_dwordx4 {vr(12+4*t,4)}, v10, s[{WS}:{WS+3}], s43 offen offset:{16*t} {st}')
        unpack8(a, 32, 12+4*t)
        layernorm8(a, 32, 40, 9)
        pack8(a, 44+4*t, 32, guard=True)
        a(f'buffer_store_dwordx4 {vr(44+4*t,4)}, v10, s[{WS}:{WS+3}], s42 offen offset:{16*t} {st}')
    a.label('K0_END')
    a('s_endpgm')
    return khead(NAME) + a.finish() , kdesc(NAME, 512, 256)
if __name__ == '__main__':
    code, desc = gen()
    open('k0.s', 'w').write('.amdgcn_target "amdgcn-amd-amdhsa--gfx950"\n' + code + desc)
```

```python
KB = 1024
ROW = 896
SEGB = 32 * ROW
AIMG = 0;                      AIMG_SZ = 16 * 4 * 98 * KB
BIMG = AIMG + AIMG_SZ;         BIMG_SZ = 14 * 4 * 112 * KB
FIMG = BIMG + BIMG_SZ;         FIMG_SZ = 7 * 4 * 112 * KB
XS1  = FIMG + FIMG_SZ;         XS_SZ = 2048 * ROW
XR1  = XS1 + XS_SZ
VP   = XR1 + XS_SZ;            VP_STEP = 14 * 4 * 8 * KB;  VP_SZ = 128 * VP_STEP
MEMX = VP + VP_SZ;             MEM_ONE = 8 * ROW; MEM_L = 4 * MEM_ONE; MEM_STEP = 2 * MEM_L
POI0 = MEMX + MEM_STEP
XS2  = MEMX + 64 * MEM_STEP
X1   = XS2 + XS_SZ
XR2  = X1 + 2 * XS_SZ
PM   = XR2 + XS_SZ;            PM_STEP = 12 * KB
PP   = PM + 128 * PM_STEP;     PP_HEAD = 2560; PP_STEP = 16 * PP_HEAD
FLG  = PP + 128 * PP_STEP
VF   = FLG;                    FL_STEP = 14 * 128
TKT  = VF + 128 * FL_STEP
RING = TKT + 16 * 128;         RING_J = SEGB; RING_SLOT = 7 * RING_J; RING_SET = 2 * RING_SLOT
POI1 = RING + 6 * RING_SET
POI_PER_WAVE = -(-(POI1 - POI0) // (1024 * KB))
WS_USED = POI0 + POI_PER_WAVE * 1024 * KB
DBG = WS_USED
assert WS_USED + (1 << 22) < (1 << 28)

P0 = [0, 4, 7, 11]; SINGLE = [6, 7, 20, 21]
def a_tile(w, tl): return SINGLE[w] if tl == 6 else 2 * (P0[w] + (tl >> 1)) + (tl & 1)
def pi(g, e): return 4 * g + e if e < 4 else 16 + 4 * g + e - 4
def a_frag(T, tl): return ((T >> 1) * 7 + tl) * 2 + (T & 1)
def b_frag(T, u): return ((T >> 1) * 8 + u) * 2 + (T & 1)
def kseq(kp): return 2 * kp if kp < 4 else 2 * (kp - 4) + 1
MT = 14 * KB
SCALE = (1.0 / 16) * 1.4426950408889634
if __name__ == '__main__':
    for k, v in list(globals().items()):
        if isinstance(v, int): print(k, v, hex(v))
```

```python
from asmlib import Ins, TRANS
def cost(c):
    if c.kind == 'mfma': return 12 if c.op.startswith('v_smfmac') else 8
    if any(c.op.startswith(t) for t in TRANS): return 8
    if c.kind == 'salu': return 4
    return 4
def lat(p, c, L):
    raw = p.dst & c.src
    if p.kind == 'mfma':
        if c.kind == 'mfma' and p.dst == c.srcC and not (p.dst & c.srcAB): return 16 if p.op == c.op else 32
        if p.dst & (c.src | c.dst): return 36
        if c.kind == 'valu' and p.srcC & c.dst: return 16
        return 4
    if p.kind == 'ds' and p.dst & (c.src | c.dst): return L.get('ds', 72)
    if p.kind == 'vmem' and p.dst & (c.src | c.dst): return L.get('vm', 500)
    if p.kind == 'valu' and raw:
        if c.kind == 'mfma' or c.dpp or c.op.startswith('v_permlane'): return 12
        if any(p.op.startswith(t) for t in TRANS): return 12
        if c.kind == 'vmem' and any(r[0] == 's' for r in raw): return 24
        if any(r[0] == 's' for r in raw): return 12
    if p.kind == 'vmem' and p.wide_store and p.srcC & c.dst: return 12
    return 4
def schedule(lines, L=None, vm_in=(), lg_in=(), keep_mem_order=True, after=None, prio_bias=None, late=None):
    L = L or {}
    ins = [Ins(l) for l in lines]; n = len(ins)
    SCC = ('s', 'scc')
    for c in ins:
        if c.kind == 'salu':
            if c.op.startswith(('s_add', 's_sub', 's_lshl', 's_lshr', 's_and', 's_or', 's_cmp', 's_bfe', 's_xor')): c.dst = c.dst | {SCC}
            if c.op.startswith(('s_cselect', 's_addc')): c.src = c.src | {SCC}
    pred = [dict() for _ in range(n)]
    last_ds = last_vm = None
    for j, c in enumerate(ins):
        for i in range(j):
            p = ins[i]
            if p.dst & (c.src | c.dst) or p.src & c.dst: pred[j][i] = lat(p, c, L)
        if keep_mem_order:
            if c.kind == 'ds':
                if last_ds is not None: pred[j].setdefault(last_ds, 4)
                last_ds = j
            if c.kind == 'vmem':
                if last_vm is not None: pred[j].setdefault(last_vm, L.get('vmgap', 4))
                last_vm = j
        for i in (after or {}).get(j, ()): pred[j].setdefault(i, 4)
    crit = [0] * n
    for j in reversed(range(n)):
        crit[j] += cost(ins[j]) + (prio_bias or {}).get(j, 0)
        for i, l in pred[j].items(): crit[i] = max(crit[i], crit[j] + l)
    done = {}; order = []; t = 0; pipe = 0; left = set(range(n))
    while left:
        cand = [j for j in left if all(i in done for i in pred[j])]
        rdy = {j: max([done[i] + l for i, l in pred[j].items()] + [(late or {}).get(j, 0)]) for j in cand}
        M = [j for j in cand if ins[j].kind == 'mfma']; F = [j for j in cand if ins[j].kind != 'mfma']
        slot = max(t, pipe)
        Mr = [j for j in M if rdy[j] <= slot]
        Fr = [j for j in F if rdy[j] <= t]
        key = lambda j: (-crit[j], j)
        if Mr:
            fit = [j for j in Fr if t + cost(ins[j]) <= slot]
            j = min(fit, key=key) if fit else min(Mr, key=key)
        elif Fr: j = min(Fr, key=key)
        else: j = min(cand, key=lambda j: (max(rdy[j], pipe if ins[j].kind == 'mfma' else 0), key(j)))
        c = ins[j]
        s = max(t, rdy[j], pipe if c.kind == 'mfma' else 0)
        done[j] = s; t = s + cost(c)
        if c.kind == 'mfma': pipe = s + 4 * c.passes
        order.append(j); left.discard(j)
    out = []; vm = list(vm_in); lg = list(lg_in)
    for j in order:
        c = ins[j]
        for q, nm, same in ((vm, 'vmcnt', c.kind == 'vmem'), (lg, 'lgkmcnt', c.kind == 'ds')):
            touch = c.src if same else c.src | c.dst
            hit = [k for k, d in enumerate(q) if d & touch]
            if hit:
                keep = len(q) - 1 - hit[-1]
                out.append(f's_waitcnt {nm}({min(keep, 63 if nm == "vmcnt" else 15)})'); del q[:hit[-1] + 1]
        out.append(c.text)
        if c.kind == 'vmem': vm.append(set(c.dst))
        elif c.kind == 'ds': lg.append(set(c.dst))
    schedule.cycles = t
    return out, vm, lg
```

```python
from common import *
from layout import *
import rec
from rec import WS, sL, sI, sREP, wsr
NAME = 'interleave_layers__memory_aug_recurrent_mem_tr__dense_activation_silu__prompt_kernel'
LDS = 160 * KB
def gen(roles=('RA', 'RB', 'PF', 'PA', 'PB', 'FF'), diag=False):
    a = Asm()
    a('s_cmp_ge_u32 s2, 256\ns_cbranch_scc1 END')
    a('s_load_dwordx2 s[6:7], s[0:1], 0\ns_load_dwordx4 s[8:11], s[0:1], 80\ns_load_dwordx2 s[4:5], s[0:1], 96')
    a('s_getreg_b32 s19, hwreg(HW_REG_XCC_ID, 0, 4)')
    a('v_and_b32 v1, 63, v0\nv_lshrrev_b32 v2, 6, v0\ns_nop 0\nv_readfirstlane_b32 s3, v2')
    a('s_and_b32 s19, s19, 7\ns_waitcnt lgkmcnt(0)')
    srd(a, WS, 4, 1 << 28)
    a('s_cmp_lg_u32 s3, 0\ns_cbranch_scc1 TK_WAIT')
    a(f's_lshl_b32 s20, s19, 7\ns_add_u32 s20, s20, {TKT}\nv_mov_b32 v2, 1\nv_mov_b32 v3, 0\ns_mov_b64 exec, 1')
    a(f'buffer_atomic_add v2, v3, {wsr()}, s20 offen sc0\ns_waitcnt vmcnt(0)\nds_write_b32 v3, v2\ns_waitcnt lgkmcnt(0)\ns_mov_b64 exec, -1')
    a.label('TK_WAIT')
    a('s_barrier\nv_mov_b32 v3, 0\nds_read_b32 v2, v3\ns_waitcnt lgkmcnt(0)\nv_readfirstlane_b32 s20, v2\ns_barrier')
    a('s_add_u32 s20, s20, 1\ns_cmp_ge_u32 s20, 32\ns_cbranch_scc1 END')
    tgt = lambda r: r if r in roles else 'END'
    a('s_cmp_ge_u32 s19, 2\ns_cbranch_scc1 NOT_R')
    a(f's_mov_b32 s{sL}, s19\ns_mov_b32 s{sI}, s20\ns_cmp_lt_u32 s20, 16\ns_cbranch_scc1 {tgt("RA")}')
    a(f's_sub_u32 s{sI}, s20, 16\ns_cmp_lt_u32 s20, 30\ns_cbranch_scc1 {tgt("RB")}\ns_sub_u32 s{sI}, s20, 30\ns_branch {tgt("PF")}')
    a.label('NOT_R')
    a('s_cmp_ge_u32 s19, 4\ns_cbranch_scc1 NOT_PA')
    a(f's_and_b32 s{sI}, s20, 7\ns_and_b32 s21, s19, 1\ns_lshl_b32 s21, s21, 3\ns_add_u32 s{sI}, s{sI}, s21\ns_lshr_b32 s{sL}, s20, 4\ns_bfe_u32 s{sREP}, s20, 0x10003\ns_branch {tgt("PA")}')
    a.label('NOT_PA')
    a('s_and_b32 s21, s19, 1\ns_cmp_ge_u32 s19, 6\ns_cbranch_scc1 PB_HI')
    a('s_cmp_ge_u32 s20, 21\ns_cbranch_scc1 PB_LO')
    a(f's_mov_b32 s{sL}, s21\ns_mul_i32 s{sREP}, s20, 37\ns_lshr_b32 s{sREP}, s{sREP}, 8\ns_mul_i32 s22, s{sREP}, 7\ns_sub_u32 s{sI}, s20, s22\ns_branch {tgt("FF")}')
    a.label('PB_LO')
    a('s_cmp_ge_u32 s20, 31\ns_cbranch_scc1 END\ns_mul_i32 s21, s21, 10\ns_add_u32 s21, s21, 43\ns_add_u32 s21, s21, s20\ns_branch PB_IDX')
    a.label('PB_HI')
    a('s_lshl_b32 s21, s21, 5\ns_add_u32 s21, s21, s20')
    a.label('PB_IDX')
    a(f's_mul_i32 s{sI}, s21, 43\ns_lshr_b32 s{sI}, s{sI}, 8\ns_mul_i32 s22, s{sI}, 6\ns_sub_u32 s22, s21, s22')
    a(f's_cmp_ge_u32 s22, 3\ns_cselect_b32 s{sL}, 1, 0\ns_mul_i32 s23, s{sL}, 3\ns_sub_u32 s{sREP}, s22, s23\ns_branch {tgt("PB")}')
    a.label('FAIL')
    a('s_mov_b32 s96, s10\ns_mov_b32 s97, s11\ns_mov_b32 s94, s99\ns_mov_b32 s98, 256\ns_mov_b32 s99, 0x20000')
    a(f's_lshl_b32 s95, s94, 2\nv_mov_b32 v2, s95\nv_mov_b32 v3, s2\nv_add_u32 v3, 1, v3\nbuffer_store_dword v3, v2, s[96:99], 0 offen')
    a.label('END')
    a('s_endpgm')
    if 'RA' in roles: rec.gen_RA(a, diag)
    if 'RB' in roles: rec.gen_RB(a, diag)
    if 'PF' in roles: rec.gen_PF(a, diag)
    if set(roles) & {'PA', 'PB', 'FF'}:
        import par
        if 'PA' in roles: par.gen_PA(a, diag)
        if 'PB' in roles: par.gen_PB(a, diag)
        if 'FF' in roles: par.gen_FF(a, diag)
    return khead(NAME) + a.finish(), kdesc(NAME, 512, 256)
def full(roles=('RA', 'RB', 'PF', 'PA', 'PB', 'FF'), diag=False, header=''):
    import k0
    c0, d0 = k0.gen(); c1, d1 = gen(roles, diag)
    return (header + f'; @launch kernel={k0.NAME} grid=(256,1,1) block=(256,1,1) lds={k0.LDS}\n'
            f'; @launch kernel={NAME} grid=(256,1,1) block=(256,1,1) lds={LDS}\n'
            '.amdgcn_target "amdgcn-amd-amdhsa--gfx950"\n' + c0 + c1 + d0 + d1)
if __name__ == '__main__':
    import sys
    open('m.s', 'w').write(full(tuple(sys.argv[1].split(',')), True))
```

```python
from common import *
from layout import *
from lsched import schedule
from asmlib import regs_of
from rec import WS, sL, sI, sREP, wsr, wreg, load_weights, allset, guard, stamp, dump, OPT
MF = 'v_mfma_f32_16x16x32_bf16'; MH = 'v_mfma_f32_16x16x16_bf16'; SM = 'v_smfmac_f32_16x16x64_bf16'
def emit(a, ops, name=None, **kw):
    out, vm, lg = schedule(ops, **kw)
    if name: print(name, 'estimate', schedule.cycles)
    for l in out: a(l)
    return vm, lg
def cvt(d, c): return [f'v_cvt_pk_bf16_f32 v{d}, v{c}, v{c+1}', f'v_cvt_pk_bf16_f32 v{d+1}, v{c+2}, v{c+3}']
def spin(a, tag, loads, regs, vt, sC, code, sleep=2, first_issued=False, nafter=0):
    a(f's_mov_b32 s{sC}, 0')
    if first_issued:
        a(f's_waitcnt vmcnt({nafter})'); allset(a, vt, regs); a(f's_cbranch_vccz {tag}_OK')
    a.label(f'{tag}_L')
    for l in loads: a(l)
    guard(a, sC, code)
    a('s_waitcnt vmcnt(0)'); allset(a, vt, regs); a(f's_cbranch_vccz {tag}_OK')
    if sleep: a(f's_sleep {sleep}')
    a(f's_branch {tag}_L')
    a.label(f'{tag}_OK')
def seg_loads(quads, vL16, sA, sB):
    return [f'buffer_load_dwordx4 {vr(q,4)}, v{vL16}, {wsr()}, s{sA if i < 4 else sB} offen offset:{1024*(i%4)} sc1' for i, q in enumerate(quads)]
def qregs(quads): return [q + i for q in quads for i in range(4)]

def gen_PA(a, diag=False):
    vL16, vXW, vt, vK, vK1, vMK, vMK1, vSW, vSR, vPA, vPC = 2, 3, 4, 5, 6, 7, 8, 9, 10, 11, 0
    ACC, XF, SA, KF = 12, 68, 84, 104
    RED = SEGB
    sXS, sMEM, sPP, sS, sC, sA, sB, sQ = 21, 22, 23, 24, 25, 26, 27, 28
    MK = 30
    a.label('PA')
    a(f'v_lshlrev_b32 v{vL16}, 4, v1')
    a(f's_lshl_b32 s20, s{sI}, 2\ns_add_u32 s20, s20, s3\ns_mul_i32 s20, s20, {98*KB}')
    if AIMG: a(f's_add_u32 s20, s20, {AIMG}')
    load_weights(a, 20, 98, vL16)
    a(f's_mul_i32 s29, s3, 7168\nv_add_u32 v{vXW}, s29, v{vL16}')
    a(f'v_and_b32 v{vt}, 7, v1\nv_lshlrev_b32 v{vMK}, 4, v{vt}\nv_lshrrev_b32 v{vt}, 4, v1\nv_lshl_add_u32 v{vMK}, v{vt}, 7, v{vMK}')
    a('s_lshr_b32 s27, s3, 1\ns_mul_i32 s27, s27, 7\ns_add_u32 s27, s27, 3\ns_and_b32 s28, s3, 1\ns_lshl_b32 s28, s28, 3')
    a(f's_lshl_b32 s38, s27, 10\ns_add_u32 s38, s38, s28\nv_add_u32 v{vK1}, s38, v{vL16}\ns_lshl_b32 s38, s27, 9\ns_add_u32 s38, s38, s28\nv_add_u32 v{vMK1}, s38, v{vMK}')
    a('s_mul_i32 s27, s3, 7\ns_add_u32 s27, s27, 1\ns_lshr_b32 s27, s27, 1\ns_lshl_b32 s28, s27, 10\ns_lshl_b32 s27, s27, 9')
    a(f'v_add_u32 v{vK}, s28, v{vL16}\nv_add_u32 v{vMK}, s27, v{vMK}')
    a(f's_mul_i32 s27, s3, 5120\ns_add_u32 s27, s27, {RED}\nv_add_u32 v{vSW}, s27, v{vL16}')
    T0, T1, T2 = ACC, ACC+1, ACC+2
    a(f's_and_b32 s27, s3, 1\ns_lshl_b32 s27, s27, 3\nv_and_b32 v{T0}, 7, v1\nv_add_u32 v{T0}, s27, v{T0}')
    a(f'v_lshrrev_b32 v{T1}, 4, v1\nv_lshl_add_u32 v{vPA}, v{T1}, 4, v{T0}\nv_lshlrev_b32 v{vPC}, 3, v{vPA}\nv_lshlrev_b32 v{vPA}, 4, v{vPA}')
    a(f'v_bfe_u32 v{T2}, v1, 3, 1\nv_lshl_add_u32 v{vSR}, v{T2}, 3, v{vPA}')
    a(f's_lshr_b32 s{sQ}, s3, 1\ns_lshl_b32 s27, s{sQ}, 10\ns_add_u32 s27, s27, {RED}\nv_add_u32 v{vSR}, s27, v{vSR}')
    a(f'v_lshlrev_b32 v{T1}, 2, v{T1}\nv_lshl_add_u32 v{T1}, v{T2}, 1, v{T1}\ns_lshl_b32 s27, s{sQ}, 4\nv_add_u32 v{T0}, s27, v{T0}')
    for k in range(4):
        a(f'v_add_u32 v{T2}, {16*(k>>1) + (k&1)}, v{T1}\nv_cmp_gt_u32 s[{MK+2*k}:{MK+2*k+1}], v{T2}, v{T0}')
    a(f'v_add_u32 v{vPC}, 2048, v{vPC}\ns_cmp_eq_u32 s{sQ}, 0\ns_cselect_b32 s27, 1024, 0\nv_add_u32 v{vPA}, s27, v{vPA}')
    a(f's_mov_b32 s{sXS}, {XS1}\ns_cmp_eq_u32 s{sL}, 1\ns_cselect_b32 s{sXS}, {XS2}, s{sXS}\ns_mul_i32 s27, s{sREP}, {SEGB}\ns_add_u32 s{sXS}, s{sXS}, s27\ns_add_u32 s{sXS}, s{sXS}, s29')
    a(f's_mul_i32 s{sMEM}, s{sL}, {MEM_L}\ns_mul_i32 s27, s{sREP}, {MEM_STEP}\ns_add_u32 s{sMEM}, s{sMEM}, s27\ns_add_u32 s{sMEM}, s{sMEM}, {MEMX+3*MEM_ONE}')
    a(f's_lshl_b32 s27, s{sL}, 6\ns_add_u32 s27, s27, s{sREP}\ns_mul_i32 s{sPP}, s27, {PP_STEP}\ns_mul_i32 s27, s{sI}, {PP_HEAD}\ns_add_u32 s{sPP}, s{sPP}, s27\ns_add_u32 s{sPP}, s{sPP}, {PP}')
    a(f's_mov_b32 s{sS}, s{sREP}\ns_mov_b32 s39, 0xf149f2ca')
    acc = lambda tl, mt: ACC + 8*tl + 4*mt
    STG = [acc(1,0), acc(1,1), acc(3,0), acc(3,1), acc(5,0), acc(5,1), XF]
    xl = seg_loads(STG, vL16, sXS, sB)
    a(f's_add_u32 s{sB}, s{sXS}, 4096')
    for l in xl: a(l)
    a.label('PA_TASK')
    spin(a, 'PA_X', xl, qregs(STG), vt, sC, 8, first_issued=True)
    for i, q in enumerate(STG): a(f'ds_write_b128 v{vXW}, {vr(q,4)} offset:{1024*i}')
    a('s_waitcnt lgkmcnt(0)\ns_barrier')
    stamp(a, 0, diag)
    ops = []
    for T in range(14):
        for mt in range(2): ops.append(f'ds_read_b128 {vr(XF+8*(T&1)+4*mt,4)}, v{vL16} offset:{mt*MT+T*1024}')
        for mt in range(2):
            for tl in range(7):
                c = vr(acc(tl, mt), 4)
                ops.append(f'{MF} {c}, {wreg(a_frag(T, tl))}, {vr(XF+8*(T&1)+4*mt,4)}, {c if T else 0}')
    for tl in range(7):
        for mt in range(2): ops += cvt(acc(tl & ~1, mt) + 2*(tl & 1), acc(tl, mt))
    ut = lambda p, mt: acc(2*p, mt)
    n = 0
    for p in range(4):
        for kt in range(2):
            kf = KF + 4*(n % 3); n += 1
            ops.append(f'ds_read_b128 {vr(kf,4)}, v{vK} offset:{kt*MT+1024*p}' if p < 3 else f'ds_read_b64 {vr(kf,2)}, v{vK1} offset:{kt*MT}')
            for mt in range(kt, 2):
                c = vr(SA + 4*(kt+mt), 4)
                ops.append(f'{MF} {c}, {vr(kf,4)}, {vr(ut(p,mt),4)}, {c if p else 0}' if p < 3 else f'{MH} {c}, {vr(kf,2)}, {vr(ut(3,mt),2)}, {c}')
    emit(a, ops, 'PA gemm', L=dict(ds=100))
    stamp(a, 1, diag)
    ml = [f'buffer_load_dwordx4 {vr(KF+4*p,4)}, v{vMK}, {wsr()}, s{sMEM} offen offset:{512*p} sc1' for p in range(3)] + \
         [f'buffer_load_dwordx2 {vr(KF+12,2)}, v{vMK1}, {wsr()}, s{sMEM} offen sc1']
    a(f's_add_u32 s{sS}, s{sS}, 2\ns_cmp_lt_u32 s{sS}, 64\ns_cselect_b32 s38, {2*SEGB}, 0\ns_add_u32 s{sXS}, s{sXS}, s38\ns_add_u32 s{sB}, s{sXS}, 4096')
    for l in ml: a(l)
    for l in xl: a(l)
    spin(a, 'PA_M', ml, range(KF, KF+14), vt, sC, 9, first_issued=True, nafter=7)
    stamp(a, 2, diag)
    for p in range(4):
        for mt in range(2):
            c = vr(SA + 4*(3+mt), 4)
            a(f'{MF} {c}, {vr(KF+4*p,4)}, {vr(ut(p,mt),4)}, {c if p else 0}' if p < 3 else f'{MH} {c}, {vr(KF+12,2)}, {vr(ut(3,mt),2)}, {c}')
        if p < 3: a(f'ds_write_b128 v{vSW}, {vr(SA+4*p,4)} offset:{1024*p}')
    for k in (3, 4): a(f'ds_write_b128 v{vSW}, {vr(SA+4*k,4)} offset:{1024*k}')
    a('s_waitcnt lgkmcnt(0)\ns_barrier')
    R = SA
    for k, tile in enumerate((0, 1, 3)):
        for pp in range(2): a(f'ds_read2st64_b64 {vr(R+8*k+4*pp,4)}, v{vSR} offset0:{2*tile+20*pp} offset1:{2*tile+20*pp+10}')
    for k in range(3):
        b = R+8*k
        a(f's_waitcnt lgkmcnt({4-2*k})')
        a(f'v_pk_add_f32 {vr(b,2)}, {vr(b,2)}, {vr(b+2,2)}\nv_pk_add_f32 {vr(b+4,2)}, {vr(b+4,2)}, {vr(b+6,2)}\nv_pk_add_f32 {vr(b,2)}, {vr(b,2)}, {vr(b+4,2)}')
    x = [R, R+1, R+8, R+9, R+16, R+17]; m, t = R+2, R+3
    a(f'v_mov_b32 v{t}, s39')
    for k in range(4): a(f'v_cndmask_b32 v{x[k]}, v{x[k]}, v{t}, s[{MK+2*k}:{MK+2*k+1}]')
    a(f'v_max3_f32 v{m}, v{x[0]}, v{x[1]}, v{x[2]}\nv_max3_f32 v{t}, v{x[3]}, v{x[4]}, v{x[5]}\nv_max_f32 v{m}, v{m}, v{t}')
    a(f'v_max_f32_dpp v{m}, v{m}, v{m} row_ror:8 row_mask:0xf bank_mask:0xf')
    cross_rows(a, m, t, 'v_max_f32')
    for k in range(3): a(f'v_pk_add_f32 {vr(x[2*k],2)}, {vr(x[2*k],2)}, {vr(m,2)} op_sel_hi:[1,0] neg_lo:[0,1] neg_hi:[0,1]')
    for i in (4, 5, 0, 1, 2, 3): a(f'v_exp_f32 v{x[i]}, v{x[i]}')
    a(f'v_add_f32 v{m}, v{x[4]}, v{x[5]}\nv_add_f32 v{t}, v{x[0]}, v{x[1]}\nv_fma_f32 v{m}, v{m}, 0.5, v{x[2]}\nv_add_f32 v{t}, v{t}, v{x[3]}\nv_add_f32 v{m}, v{m}, v{t}')
    a(f'v_add_f32_dpp v{m}, v{m}, v{m} row_ror:8 row_mask:0xf bank_mask:0xf')
    cross_rows(a, m, t, 'v_add_f32')
    a(f'v_rcp_f32 v{m}, v{m}')
    for k in range(3): a(f'v_pk_mul_f32 {vr(x[2*k],2)}, {vr(x[2*k],2)}, {vr(m,2)} op_sel_hi:[1,0]')
    o = R+4
    for k, d in enumerate((o, o+2, o+8)): a(f'v_cvt_pk_bf16_f32 v{d}, v{x[2*k]}, v{x[2*k+1]}')
    for d in (o, o+2, o+8): a(f'v_mov_b32_dpp v{d+1}, v{d} row_ror:8 row_mask:0xf bank_mask:0xf')
    a('s_mov_b32 exec_lo, 0x00ff00ff\ns_mov_b32 exec_hi, 0x00ff00ff')
    a(f's_cmp_eq_u32 s{sQ}, 0\ns_cbranch_scc1 PA_Q0')
    a(f'buffer_store_dwordx4 {vr(o,4)}, v{vPA}, {wsr()}, s{sPP} offen sc1\nbuffer_store_dwordx2 {vr(o+8,2)}, v{vPC}, {wsr()}, s{sPP} offen sc1')
    a('s_branch PA_STD')
    a.label('PA_Q0')
    a(f's_bitcmp1_b32 s{sI}, 0\ns_cbranch_scc1 PA_Q0ODD')
    a(f'v_mov_b32 v{o+2}, v{o+8}\nv_mov_b32 v{o+3}, v{o+9}\nbuffer_store_dwordx4 {vr(o,4)}, v{vPA}, {wsr()}, s{sPP} offen sc1\ns_branch PA_STD')
    a.label('PA_Q0ODD')
    a(f'v_mov_b32 v{o+10}, v{o}\nv_mov_b32 v{o+11}, v{o+1}\nbuffer_store_dwordx4 {vr(o+8,4)}, v{vPA}, {wsr()}, s{sPP} offen sc1')
    a.label('PA_STD')
    a('s_mov_b64 exec, -1')
    if diag: stamp(a, 3, diag); a(f's_sub_u32 s59, s{sS}, 2'); dump(a, diag, 2, 59, m, vt)
    a(f's_add_u32 s{sMEM}, s{sMEM}, {2*MEM_STEP}\ns_add_u32 s{sPP}, s{sPP}, {2*PP_STEP}\ns_cmp_lt_u32 s{sS}, 64\ns_cbranch_scc1 PA_TASK\ns_endpgm')

def gen_PB(a, diag=False):
    vL16, vXW, vt, vIDX, vWL, vVW, vVR, vL8, vZ = 2, 3, 4, 5, 6, 7, 8, 9, 10
    XB, WL, VB = 0, 28*KB, 84*KB
    sXS, sB, sVP, sFL, sS, sC, sMEM, sPP, sXR, sX1, sPRE, sT, sT2 = 21, 22, 23, 24, 25, 26, 27, 28, 29, 30, 31, 32, 33
    a.label('PB')
    a(f'v_lshlrev_b32 v{vL16}, 4, v1\nv_lshlrev_b32 v{vL8}, 3, v1\nv_mov_b32 v{vZ}, 0')
    a(f'v_and_b32 v{vt}, 8, v1\nv_cmp_eq_u32 vcc, 0, v{vt}\nv_mov_b32 v{vIDX}, 0xeeee\nv_mov_b32 v{vt}, 0x4444\nv_cndmask_b32 v{vIDX}, v{vIDX}, v{vt}, vcc')
    a(f's_lshl_b32 s34, s{sI}, 2\ns_add_u32 s34, s34, s3\ns_mul_i32 s20, s34, {112*KB}\ns_add_u32 s20, s20, {BIMG}')
    a(f's_mul_i32 s35, s3, {14*KB}\ns_add_u32 s35, s35, {WL}\nv_add_u32 v{vWL}, s35, v{vL16}')
    load_weights(a, 20, 98, vL16, 14, 35)
    a(f's_mul_i32 s36, s3, 7168\ns_add_u32 s37, s36, {XB}\nv_add_u32 v{vXW}, s37, v{vL16}')
    a(f's_lshl_b32 s37, s3, 13\ns_add_u32 s37, s37, {VB}\nv_add_u32 v{vVW}, s37, v{vL16}')
    a(f's_lshl_b32 s37, s3, 10\ns_add_u32 s37, s37, {VB}\nv_add_u32 v{vVR}, s37, v{vL16}')
    a(f's_lshl_b32 s38, s{sL}, 6\ns_add_u32 s38, s38, s{sREP}')
    a(f's_mov_b32 s{sXS}, {XS1}\ns_cmp_eq_u32 s{sL}, 1\ns_cselect_b32 s{sXS}, {XS2}, s{sXS}\ns_mov_b32 s{sXR}, {XR1}\ns_cselect_b32 s{sXR}, {XR2}, s{sXR}')
    a(f's_mul_i32 s37, s{sREP}, {SEGB}\ns_add_u32 s{sXS}, s{sXS}, s37\ns_add_u32 s{sXS}, s{sXS}, s36')
    a(f's_mul_i32 s39, s3, {MT}\ns_lshl_b32 s40, s{sI}, 10\ns_add_u32 s39, s39, s40\ns_add_u32 s{sXR}, s{sXR}, s37\ns_add_u32 s{sXR}, s{sXR}, s39')
    a(f's_mul_i32 s{sX1}, s38, {SEGB}\ns_add_u32 s{sX1}, s{sX1}, s39\ns_add_u32 s{sX1}, s{sX1}, {X1}')
    a(f's_mul_i32 s{sVP}, s38, {VP_STEP}\ns_lshl_b32 s37, s34, 13\ns_add_u32 s{sVP}, s{sVP}, s37\ns_add_u32 s{sVP}, s{sVP}, {VP}')
    a(f's_mul_i32 s{sFL}, s38, {FL_STEP}\ns_lshl_b32 s37, s{sI}, 7\ns_add_u32 s{sFL}, s{sFL}, s37\ns_lshl_b32 s37, s3, 2\ns_add_u32 s{sFL}, s{sFL}, s37\ns_add_u32 s{sFL}, s{sFL}, {VF}')
    a(f's_mul_i32 s{sMEM}, s{sL}, {MEM_L}\ns_mul_i32 s37, s{sREP}, {MEM_STEP}\ns_add_u32 s{sMEM}, s{sMEM}, s37\ns_add_u32 s{sMEM}, s{sMEM}, {MEMX+2*MEM_ONE}')
    a(f's_mul_i32 s{sPP}, s38, {PP_STEP}\ns_mul_i32 s37, s3, {4*PP_HEAD}\ns_add_u32 s{sPP}, s{sPP}, s37\ns_add_u32 s{sPP}, s{sPP}, {PP}')
    a(f's_mov_b32 s{sS}, s{sREP}\ns_mov_b32 s41, 32768\ns_waitcnt vmcnt(0)')
    XF, WSt, ACC, PK = 12, 28, 40, 72
    STG = [12+4*i for i in range(7)]
    a.label('PB_PRE')
    a(f's_add_u32 s{sB}, s{sXS}, 4096')
    spin(a, 'PB_X', seg_loads(STG, vL16, sXS, sB), qregs(STG), vt, sC, 10)
    a('s_barrier')
    for i, q in enumerate(STG): a(f'ds_write_b128 v{vXW}, {vr(q,4)} offset:{1024*i}')
    a(f's_add_u32 s{sT}, s{sVP}, 4096')
    a('s_waitcnt lgkmcnt(0)\ns_barrier')
    stamp(a, 0, diag)
    ops = []; n = 0
    for be in range(2):
        for T in range(14):
            for mt in range(2): ops.append(f'ds_read_b128 {vr(XF+8*(T&1)+4*mt,4)}, v{vL16} offset:{XB+mt*MT+T*1024}')
            for uu in range(4):
                f = b_frag(T, 4*be+uu)
                if f < 98: w = wreg(f)
                else:
                    w = vr(WSt+4*(n % 3), 4); n += 1
                    ops.append(f'ds_read_b128 {w}, v{vWL} offset:{(f-98)*1024}')
                for mt in range(2):
                    c = vr(ACC+8*uu+4*mt, 4)
                    ops.append(f'{MF} {c}, {vr(XF+8*(T&1)+4*mt,4)}, {w}, {c if T else 0}')
        for uu in range(4):
            ph, nt = uu >> 1, uu & 1; i = nt*2+ph; d = PK+4*i
            ops += cvt(d, ACC+8*uu) + cvt(d+2, ACC+8*uu+4)
            ops.append(f'buffer_store_dwordx4 {vr(d,4)}, v{vL16}, {wsr()}, s{sT if be else sVP} offen offset:{1024*i} sc1')
            ops.append(f'ds_write_b128 v{vVW}, {vr(d,4)} offset:{4096*be+1024*i}')
    emit(a, ops, 'PB gemm', L=dict(ds=100))
    stamp(a, 1, diag)
    a(f's_mov_b32 s{sPRE}, 1\nv_add_u32 v{vVW}, s41, v{vVW}\ns_sub_u32 s41, 0, s41')
    a(f's_add_u32 s{sS}, s{sS}, 3\ns_add_u32 s{sXS}, s{sXS}, {3*SEGB}\ns_add_u32 s{sVP}, s{sVP}, {3*VP_STEP}')
    a(f's_sub_u32 s{sT}, s{sS}, s{sREP}\ns_cmp_gt_u32 s{sT}, 3\ns_cbranch_scc1 PB_POST')
    a(f's_waitcnt vmcnt(0)\nbuffer_store_dword v{vZ}, v{vZ}, {wsr()}, s{sFL} offen sc1\ns_add_u32 s{sFL}, s{sFL}, {3*FL_STEP}\ns_branch PB_PRE')
    ME, WA, WS8, PQ = 12, 40, 72, 80
    a.label('PB_POST')
    a(f's_add_u32 s{sT}, s{sMEM}, 4096\ns_add_u32 s{sT2}, s{sPP}, {2*PP_HEAD}')
    ml = seg_loads([ME+4*i for i in range(7)], vL16, sMEM, sT)
    pA = lambda hh: PQ + 4*hh; pB = lambda hh: PQ + 16 + 4*hh; pC = lambda hh: PQ + 32 + 2*hh
    pl = []
    for hh in range(4):
        sb = sPP if hh < 2 else sT2; o = (hh & 1)*PP_HEAD
        if hh & 1:
            pl.append(f's_add_u32 s42, s{sb}, {PP_HEAD}'); sb = 42
        pl += [f'buffer_load_dwordx4 {vr(pA(hh),4)}, v{vL16}, {wsr()}, s{sb} offen sc1', f'buffer_load_dwordx4 {vr(pB(hh),4)}, v{vL16}, {wsr()}, s{sb} offen offset:1024 sc1',
               f'buffer_load_dwordx2 {vr(pC(hh),2)}, v{vL8}, {wsr()}, s{sb} offen offset:2048 sc1']
    for l in ml + pl: a(l)
    a(f's_cmp_eq_u32 s{sPRE}, 0\ns_cbranch_scc1 PB_NOFL')
    a(f's_waitcnt vmcnt(19)\nbuffer_store_dword v{vZ}, v{vZ}, {wsr()}, s{sFL} offen sc1\ns_add_u32 s{sFL}, s{sFL}, {3*FL_STEP}')
    a.label('PB_NOFL')
    for i in range(32): a(f'v_mov_b32 v{WA+i}, 0')
    spin(a, 'PB_M', ml, range(ME, ME+28), vt, sC, 11, first_issued=True, nafter=12)
    stamp(a, 2, diag)
    WK = ME; OUT = [28, 32, 36, 72]; VS = WA; RS = 76
    ops = []
    for b in range(7):
        for u in range(8):
            f = (b*8+u)*2
            if f < 98: w = wreg(f, 8)
            else:
                w = vr(WS8, 8)
                ops += [f'ds_read_b128 {vr(WS8,4)}, v{vWL} offset:{(f-98)*1024}', f'ds_read_b128 {vr(WS8+4,4)}, v{vWL} offset:{(f-97)*1024}']
            ops.append(f'{SM} {vr(WA+4*u,4)}, {vr(ME+4*b,4)}, {w}, v{vIDX}')
    lead = [o for o in ops if 'ds_read' in o or vr(WS8, 8) in o]; rest = [o for o in ops if o not in lead]
    mixed = []
    for i in range(7): mixed += lead[3*i:3*i+3] + rest[7*i:7*i+7]
    ops = mixed
    for u in range(8): ops += cvt(WK+8*(u & 1)+2*(u >> 1), WA+4*u)
    for i in range(8): ops.append(f'ds_read_b128 {vr(VS+4*i,4)}, v{vVW} offset:{1024*i}')
    emit(a, ops, 'PB w', L=dict(ds=100))
    a(f'buffer_load_dwordx4 {vr(RS,4)}, v{vL16}, {wsr()}, s{sXR} offen sc1')
    spin(a, 'PB_P', pl, range(PQ, PQ+40), vt, sC, 12, first_issued=True, nafter=1)
    stamp(a, 3, diag)
    a('s_waitcnt lgkmcnt(0)')
    ops = []
    for nt in range(2):
        for mt in range(2):
            c = vr(OUT[nt*2+mt], 4); first = True
            for be in range(2):
                pm = vr(pC(2*be), 4) if mt else vr(pB(2*be)+2, 4)
                ops.append(f'{MF} {c}, {vr(WK+8*nt+4*be,4)}, {pm}, {0 if first else c}'); first = False
                for ph in range(2):
                    hh = 2*be+ph; v = VS+4*((be*2+nt)*2+ph)
                    if mt: ops.append(f'{MF} {c}, {vr(v,4)}, {vr(pA(hh),4)}, {c}')
                    else: ops.append(f'{MH} {c}, {vr(v,2)}, {vr(pB(hh)+2*ph,2)}, {c}')
    for k in range(4): ops.append(f'ds_write_b128 v{vVW}, {vr(OUT[k],4)} offset:{1024*k}')
    emit(a, ops, 'PB post')
    a('s_waitcnt lgkmcnt(0)\ns_barrier')
    a('s_cmp_ge_u32 s3, 2\ns_cbranch_scc1 PB_NEXT')
    a(f's_max_i32 s42, s41, 0\ns_sub_u32 s42, 32768, s42\nv_add_u32 v{vt}, s42, v{vVR}')
    F = 40
    for p in range(4):
        for nt in range(2): a(f'ds_read_b128 {vr(F+8*p+4*nt,4)}, v{vt} offset:{8192*p+2048*nt}')
    a(f's_mov_b32 s{sC}, 0')
    a.label('PB_R')
    a(f's_waitcnt vmcnt(0)'); allset(a, vt, range(RS, RS+4)); a('s_cbranch_vccz PB_ROK')
    a(f'buffer_load_dwordx4 {vr(RS,4)}, v{vL16}, {wsr()}, s{sXR} offen sc1'); guard(a, sC, 13); a('s_branch PB_R')
    a.label('PB_ROK')
    unpack8(a, 12, RS)
    for p in range(4):
        a(f's_waitcnt lgkmcnt({6-2*p})')
        for i in range(4): a(f'v_pk_add_f32 {vr(12+2*i,2)}, {vr(12+2*i,2)}, {vr(F+8*p+2*i,2)}')
    pack8(a, 20, 12)
    a(f'buffer_store_dwordx4 v[20:23], v{vL16}, {wsr()}, s{sX1} offen sc1')
    if diag: stamp(a, 4, diag); a(f's_sub_u32 s59, s{sS}, 6\ns_and_b32 s59, s59, 63'); dump(a, diag, 3, 59, 24, vt)
    a.label('PB_NEXT')
    a(f's_add_u32 s{sMEM}, s{sMEM}, {3*MEM_STEP}\ns_add_u32 s{sPP}, s{sPP}, {3*PP_STEP}\ns_add_u32 s{sXR}, s{sXR}, {3*SEGB}\ns_add_u32 s{sX1}, s{sX1}, {3*SEGB}')
    a(f's_cmp_lt_u32 s{sS}, 64\ns_cbranch_scc1 PB_PRE')
    a(f's_cmp_eq_u32 s{sPRE}, 0\ns_cbranch_scc1 END')
    a(f's_mov_b32 s{sPRE}, 0\nv_add_u32 v{vVW}, s41, v{vVW}\ns_sub_u32 s41, 0, s41\ns_add_u32 s{sS}, s{sS}, 3\ns_waitcnt vmcnt(0)\ns_barrier\ns_branch PB_POST')

def gen_FF(a, diag=False):
    vL16, vXW, vt, vWL, vHW, vHR, vRO, vR0, vR1, vMK, vO = 2, 3, 4, 5, 6, 7, 8, 9, 10, 11, 0
    XB, WL, HB, STB = 0, 28*KB, 84*KB, 100*KB
    sX1, sB, sS, sC, sRW, sRR, sOUT, sT, sT2, sXO = 21, 22, 23, 24, 25, 26, 27, 28, 29, 30
    OS = 44
    XF, WSt, B1, TM, AC2 = 12, 28, 40, 56, 64
    a.label('FF')
    srd(a, OS, 8, XS_SZ)
    a(f'v_lshlrev_b32 v{vL16}, 4, v1')
    a(f's_lshl_b32 s34, s{sI}, 2\ns_add_u32 s34, s34, s3\ns_mul_i32 s20, s34, {112*KB}\ns_add_u32 s20, s20, {FIMG}')
    a(f's_mul_i32 s35, s3, {14*KB}\ns_add_u32 s35, s35, {WL}\nv_add_u32 v{vWL}, s35, v{vL16}')
    load_weights(a, 20, 98, vL16, 14, 35)
    a(f's_and_b32 s36, s3, 1\ns_mul_i32 s36, s36, {MT}\ns_lshr_b32 s37, s3, 1\ns_mul_i32 s37, s37, 7168\ns_add_u32 s36, s36, s37\nv_add_u32 v{vXW}, s36, v{vL16}')
    a(f's_lshl_b32 s37, s3, 11\ns_add_u32 s37, s37, {HB}\nv_add_u32 v{vHW}, s37, v{vL16}\nv_add_u32 v{vHR}, {HB}, v{vL16}')
    a(f's_lshl_b32 s38, s{sL}, 6\ns_add_u32 s38, s38, s{sREP}\ns_mul_i32 s{sX1}, s38, {SEGB}\ns_add_u32 s{sX1}, s{sX1}, s36\ns_add_u32 s{sX1}, s{sX1}, {X1}')
    a(f's_mul_i32 s37, s{sL}, 3\ns_add_u32 s37, s37, s{sREP}\ns_mul_i32 s{sRR}, s37, {RING_SET}\ns_add_u32 s{sRR}, s{sRR}, {RING}\ns_mul_i32 s37, s{sI}, {RING_J}\ns_add_u32 s{sRW}, s{sRR}, s37')
    a('s_mul_i32 s48, s3, 7\ns_add_u32 s48, s48, 1\ns_lshr_b32 s48, s48, 1\ns_lshl_b32 s48, s48, 10')
    a('s_lshr_b32 s49, s3, 1\ns_mul_i32 s49, s49, 7\ns_add_u32 s49, s49, 3\ns_lshl_b32 s49, s49, 10\ns_and_b32 s37, s3, 1\ns_lshl_b32 s37, s37, 3\ns_add_u32 s49, s49, s37')
    a(f'v_lshrrev_b32 v{vt}, 2, v1\nv_cmp_gt_u32 vcc, 14, v{vt}\nv_min_u32 v{vt}, 13, v{vt}\nv_cndmask_b32 v{vMK}, 0, 1.0, vcc\ns_mov_b64 s[50:51], vcc')
    a(f's_mul_i32 s37, s3, 14\nv_add_u32 v{vt}, s37, v{vt}\nv_and_b32 v{TM}, 3, v1')
    a(f'v_lshlrev_b32 v{vRO}, 8, v{vt}\nv_lshl_add_u32 v{vRO}, v{TM}, 4, v{vRO}')
    a(f'v_lshrrev_b32 v{TM+1}, 2, v{vt}\nv_lshlrev_b32 v{vO}, 6, v{TM+1}\nv_and_b32 v{TM+1}, 3, v{vt}\nv_lshl_add_u32 v{vO}, v{TM+1}, 3, v{vO}\nv_mul_u32_u24 v{TM}, {ROW}, v{TM}\nv_add_u32 v{vO}, v{vO}, v{TM}')
    a(f's_lshr_b32 s37, s{sI}, 2\ns_mul_i32 s37, s37, {MT}\ns_and_b32 s39, s{sI}, 3\ns_lshl_b32 s39, s39, 6\ns_add_u32 s37, s37, s39\nv_add_u32 v{vRO}, s37, v{vRO}')
    a(f's_mul_i32 s37, s{sI}, {4*ROW}\nv_add_u32 v{vO}, s37, v{vO}')
    a(f's_mul_i32 s{sOUT}, s{sREP}, {SEGB}\ns_mov_b32 s{sS}, s{sREP}\ns_mov_b32 s41, {RING_SLOT}\ns_mov_b32 s52, 0x3f803f80\ns_waitcnt vmcnt(0)')
    STG = [12+4*i for i in range(7)]
    a.label('FF_TASK')
    a(f's_add_u32 s{sB}, s{sX1}, 4096')
    spin(a, 'FF_X', seg_loads(STG, vL16, sX1, sB), qregs(STG), vt, sC, 14)
    stamp(a, 0, diag)
    for i, q in enumerate(STG): a(f'ds_write_b128 v{vXW}, {vr(q,4)} offset:{1024*i}')
    s1, s2 = B1, B1+1
    for k in range(4): a(f'v_mov_b32 v{B1+k}, 0')
    for i in range(28):
        a(f'v_dot2_f32_bf16 v{s1+2*(i&1)}, v{12+i}, s52, v{s1+2*(i&1)}\nv_dot2_f32_bf16 v{s2+2*(i&1)}, v{12+i}, v{12+i}, v{s2+2*(i&1)}')
    a(f'v_add_f32 v{s1}, v{s1}, v{s1+2}\nv_add_f32 v{s2}, v{s2}, v{s2+2}')
    cross_rows(a, s1, s1+2, 'v_add_f32'); cross_rows(a, s2, s2+2, 'v_add_f32')
    a(f'v_and_b32 v{vt}, 15, v1\nv_lshlrev_b32 v{vt}, 3, v{vt}\ns_lshl_b32 s37, s3, 7\ns_add_u32 s37, s37, {STB}\nv_add_u32 v{TM}, s37, v{vt}\nds_write_b64 v{TM}, {vr(s1,2)}')
    a(f'v_add_u32 v{vt}, {STB}, v{vt}')
    a('s_waitcnt lgkmcnt(0)\ns_barrier')
    A1 = AC2
    LOG2E = 1.4426950408889634
    def gemm1(p, acc):
        o = []
        for T in range(14):
            for mt in range(2): o.append(f'ds_read_b128 {vr(XF+8*(T&1)+4*mt,4)}, v{vL16} offset:{XB+mt*MT+T*1024}')
            for ft in range(2):
                for mt in range(2):
                    c = vr(acc+8*ft+4*mt, 4)
                    o.append(f'{MF} {c}, {wreg(T*4+2*p+ft)}, {vr(XF+8*(T&1)+4*mt,4)}, {c if T else 0}')
        return o
    def silu(p, acc):
        o = []; n = 0
        for mt in range(2):
            for ft in range(2):
                for j in range(4):
                    z = acc+8*ft+4*mt+j; e = TM + (n % 4); n += 1
                    o += [f'v_mul_f32 v{z}, v{z}, v{vR0+mt}', f'v_mul_f32 v{e}, {f2u(-LOG2E):#x}, v{z}', f'v_exp_f32 v{e}, v{e}',
                          f'v_add_f32 v{e}, 1.0, v{e}', f'v_rcp_f32 v{e}, v{e}', f'v_mul_f32 v{z}, v{z}, v{e}']
            d = TM+4
            o += cvt(d, acc+4*mt) + cvt(d+2, acc+8+4*mt)
            o.append(f'ds_write_b128 v{vHW}, {vr(d,4)} offset:{8192*p+1024*mt}')
        return o
    def gemm2(ks):
        o = []; n = 0
        for kp in ks:
            for mt in range(2): o.append(f'ds_read_b128 {vr(XF+8*(kp&1)+4*mt,4)}, v{vHR} offset:{2048*kp+1024*mt}')
            for tl in range(7):
                f = 56+kp*7+tl
                if f < 98: w = wreg(f)
                else:
                    w = vr(WSt+4*(n % 3), 4); n += 1
                    o.append(f'ds_read_b128 {w}, v{vWL} offset:{(f-98)*1024}')
                for mt in range(2):
                    c = vr(AC2+8*tl+4*mt, 4)
                    o.append(f'{MF} {c}, {w}, {vr(XF+8*(kp&1)+4*mt,4)}, {c if kp else 0}')
        return o
    st = [f'ds_read2_b64 {vr(WSt,4)}, v{vt} offset0:0 offset1:32', f'ds_read2_b64 {vr(WSt+4,4)}, v{vt} offset0:16 offset1:48']
    for mt in range(2):
        b = WSt+4*mt
        st += [f'v_pk_add_f32 {vr(b,2)}, {vr(b,2)}, {vr(b+2,2)}', f'v_mul_f32 v{b}, {f2u(1/448):#x}, v{b}', f'v_mul_f32 v{b}, v{b}, v{b}',
               f'v_fma_f32 v{b}, v{b+1}, s53, -v{b}', f'v_max_f32 v{b}, 0, v{b}', f'v_add_f32 v{b}, {f2u(1e-5):#x}, v{b}', f'v_rsq_f32 v{vR0+mt}, v{b}']
    a(f's_mov_b32 s53, {f2u(1/448):#x}')
    emit(a, st + gemm1(0, A1) + gemm1(1, B1) + silu(0, A1), 'FF gemm1', L=dict(ds=100))
    a('s_waitcnt lgkmcnt(0)\ns_barrier')
    stamp(a, 1, diag)
    emit(a, gemm2(range(4)) + silu(1, B1), 'FF gemm2a', L=dict(ds=100))
    a('s_waitcnt lgkmcnt(0)\ns_barrier')
    ops = gemm2(range(4, 8))
    a(f's_add_u32 s{sT}, s{sRW}, s48\ns_add_u32 s54, s{sT}, {MT}\ns_add_u32 s{sT2}, s{sRW}, s49\ns_add_u32 s55, s{sT2}, {MT}')
    n = 0
    for p in range(4):
        for mt in range(2):
            d = B1 + 4*(n % 4); n += 1
            ops += cvt(d, AC2+16*p+4*mt)
            if p < 3:
                ops += cvt(d+2, AC2+16*p+8+4*mt)
                ops.append(f'buffer_store_dwordx4 {vr(d,4)}, v{vL16}, {wsr()}, s{54 if mt else sT} offen offset:{1024*p} sc1')
            else: ops.append(f'buffer_store_dwordx2 {vr(d,2)}, v{vL16}, {wsr()}, s{55 if mt else sT2} offen sc1')
    emit(a, ops, 'FF gemm2b', L=dict(ds=100))
    stamp(a, 2, diag)
    def reduce(tag, groups):
        G = len(groups); PT = [64, 12][:G]; XR = [92, 40][:G]; V = [96, 44][:G]; off = [0, MT+192][:G]; oo = [0, 28*ROW][:G]
        ld = []; poi = []
        for g in range(G):
            for j in range(7):
                pre = f's_add_u32 s42, s{sRR}, {j*RING_J+off[g]}'
                ld += [pre, f'buffer_load_dwordx4 {vr(PT[g]+4*j,4)}, v{vRO}, {wsr()}, s42 offen sc1']
                poi += [pre, f'buffer_store_dwordx4 {vr(TM,4)}, v{vRO}, {wsr()}, s42 offen sc1']
            a(f'ds_read_b128 {vr(XR[g],4)}, v{vRO} offset:{XB+off[g]}')
        for k in range(4): a(f'v_mov_b32 v{TM+k}, -1')
        spin(a, tag, ld, [PT[g]+i for g in range(G) for i in range(28)], vt, sC, 15, sleep=1)
        stamp(a, 3, diag)
        a('s_waitcnt lgkmcnt(0)')
        for g in range(G):
            unpack8(a, V[g], XR[g])
            for j in range(7):
                for i in range(4):
                    q = PT[g]+4*j+i
                    a(f'v_lshlrev_b32 v{TM+4}, 16, v{q}\nv_and_b32 v{TM+5}, 0xffff0000, v{q}\nv_pk_add_f32 {vr(V[g]+2*i,2)}, {vr(V[g]+2*i,2)}, {vr(TM+4,2)}')
            pack8(a, XR[g], V[g])
        a(f's_cmp_eq_u32 s{sL}, 0\ns_cbranch_scc1 {tag}_LN')
        a('s_mov_b64 exec, s[50:51]')
        for g in range(G):
            a(f's_add_u32 s42, s{sOUT}, {oo[g]}')
            a(f'buffer_store_dwordx2 {vr(XR[g],2)}, v{vO}, s[{OS}:{OS+3}], s42 offen\nbuffer_store_dwordx2 {vr(XR[g]+2,2)}, v{vO}, s[{OS}:{OS+3}], s42 offen offset:32')
        a(f's_mov_b64 exec, -1\ns_barrier\ns_branch {tag}_E')
        a.label(f'{tag}_LN')
        for g in range(G):
            S = PT[g]
            a(f's_add_u32 s42, s{sOUT}, {XR2+off[g]}\nbuffer_store_dwordx4 {vr(XR[g],4)}, v{vRO}, {wsr()}, s42 offen sc1')
            unpack8(a, V[g], XR[g])
            a(f'v_mov_b32 v{S}, 0\nv_mov_b32 v{S+1}, 0')
            for i in range(4): a(f'v_dot2_f32_bf16 v{S}, v{XR[g]+i}, s52, v{S}\nv_dot2_f32_bf16 v{S+1}, v{XR[g]+i}, v{XR[g]+i}, v{S+1}')
            a(f'v_mul_f32 v{S}, v{S}, v{vMK}\nv_mul_f32 v{S+1}, v{S+1}, v{vMK}')
            for r in (4, 8):
                for k in range(2): a(f'v_add_f32_dpp v{S+k}, v{S+k}, v{S+k} row_ror:{r} row_mask:0xf bank_mask:0xf')
            cross_rows(a, S, S+2, 'v_add_f32'); cross_rows(a, S+1, S+2, 'v_add_f32')
            a(f'v_and_b32 v{vt}, 3, v1\nv_lshlrev_b32 v{vt}, 3, v{vt}\nv_add_u32 v{vt}, {STB+512}, v{vt}\ns_lshl_b32 s37, s3, 5\nv_add_u32 v{S+2}, s37, v{vt}\nds_write_b64 v{S+2}, {vr(S,2)} offset:{128*g}')
        a('s_waitcnt lgkmcnt(0)\ns_barrier')
        for g in range(G):
            S = PT[g]
            a(f'ds_read2_b64 {vr(S,4)}, v{vt} offset0:{16*g} offset1:{16*g+4}\nds_read2_b64 {vr(S+4,4)}, v{vt} offset0:{16*g+8} offset1:{16*g+12}')
        a('s_waitcnt lgkmcnt(0)')
        for g in range(G):
            S = PT[g]
            a(f'v_pk_add_f32 {vr(S,2)}, {vr(S,2)}, {vr(S+2,2)}\nv_pk_add_f32 {vr(S+4,2)}, {vr(S+4,2)}, {vr(S+6,2)}\nv_pk_add_f32 {vr(S,2)}, {vr(S,2)}, {vr(S+4,2)}')
            a(f'v_mul_f32 v{S}, s53, v{S}\nv_mul_f32 v{S+2}, v{S}, v{S}\nv_fma_f32 v{S+2}, v{S+1}, s53, -v{S+2}\nv_max_f32 v{S+2}, 0, v{S+2}\nv_add_f32 v{S+2}, {f2u(1e-5):#x}, v{S+2}\nv_rsq_f32 v{S+2}, v{S+2}')
            for i in range(8): a(f'v_sub_f32 v{V[g]+i}, v{V[g]+i}, v{S}')
            for i in range(8): a(f'v_mul_f32 v{V[g]+i}, v{V[g]+i}, v{S+2}')
            pack8(a, S+4, V[g])
            a(f's_add_u32 s42, s{sOUT}, {XS2+off[g]}\nbuffer_store_dwordx4 {vr(S+4,4)}, v{vRO}, {wsr()}, s42 offen sc1')
        a.label(f'{tag}_E')
        for l in poi: a(l)
    a(f's_cmp_eq_u32 s{sI}, 0\ns_cbranch_scc1 FF_R2')
    reduce('FF_RA', [0])
    a('s_branch FF_NEXT')
    a.label('FF_R2')
    reduce('FF_RB', [0, 1])
    a.label('FF_NEXT')
    if diag: stamp(a, 4, diag); dump(a, diag, 4, sS, 64, vt)
    a(f's_add_u32 s{sRW}, s{sRW}, s41\ns_add_u32 s{sRR}, s{sRR}, s41\ns_sub_u32 s41, 0, s41')
    a(f's_add_u32 s{sX1}, s{sX1}, {3*SEGB}\ns_add_u32 s{sOUT}, s{sOUT}, {3*SEGB}\ns_add_u32 s{sS}, s{sS}, 3\ns_cmp_lt_u32 s{sS}, 64\ns_cbranch_scc1 FF_TASK\ns_endpgm')
```

```python
from common import *
from layout import *
from lsched import schedule
from asmlib import regs_of
WS = 12
sL, sI = 16, 17
sREP = 18
SPIN = 1 << 17
OPT = dict(ra_k=1, ra_sleep=8, rb_k=1, rb_msleep=2, rb_pk=1, rb_psleep=6, gap=0)
def wsr(): return f's[{WS}:{WS+3}]'
def wreg(f, n=4):
    return ar(4*f, n) if f < 64 else vr(120 + 4*(f-64), n)
def load_weights(a, sbase, nreg, vL16, lds_frags=0, lds_base_s=None):
    for f in range(nreg):
        if f and f % 4 == 0: a(f's_add_u32 s{sbase}, s{sbase}, 4096')
        a(f'buffer_load_dwordx4 {wreg(f)}, v{vL16}, {wsr()}, s{sbase} offen offset:{(f%4)*1024}')
    a(f's_add_u32 s{sbase}, s{sbase}, {((nreg-1)%4+1)*1024}')
    for i in range(lds_frags):
        a(f's_add_u32 m0, s{lds_base_s}, {i*1024}')
        a(f'buffer_load_dwordx4 v{vL16}, {wsr()}, s{sbase} offen lds')
        a(f's_add_u32 s{sbase}, s{sbase}, 1024')
def allset(a, dst, regs):
    regs = list(regs); cur = None
    while regs:
        if cur is None:
            if len(regs) >= 3: a(f'v_max3_u32 v{dst}, v{regs[0]}, v{regs[1]}, v{regs[2]}'); regs = regs[3:]
            elif len(regs) == 2: a(f'v_max_u32 v{dst}, v{regs[0]}, v{regs[1]}'); regs = []
            else: a(f'v_cmp_eq_u32 vcc, -1, v{regs[0]}'); return
            cur = dst
        elif len(regs) >= 2: a(f'v_max3_u32 v{dst}, v{dst}, v{regs[0]}, v{regs[1]}'); regs = regs[2:]
        else: a(f'v_max_u32 v{dst}, v{dst}, v{regs[0]}'); regs = []
    a(f'v_cmp_eq_u32 vcc, -1, v{dst}')
def guard(a, s, code):
    a(f's_add_u32 s{s}, s{s}, 1\ns_cmp_gt_u32 s{s}, {SPIN}\ns_mov_b32 s99, {code}\ns_cbranch_scc1 FAIL')
def poll(a, tag, sets, issue, vt, scnt, code):
    n = None
    a(f's_mov_b32 s{scnt}, 0')
    for k in range(len(sets)): n = issue(k)
    a.label(f'{tag}_L')
    for k in range(len(sets)):
        a(f's_waitcnt vmcnt({n*(len(sets)-1)})')
        allset(a, vt, sets[k])
        a(f's_cbranch_vccz {tag}_OK{k}')
        if OPT['gap']: a(f's_sleep {OPT["gap"]}')
        issue(k)
    guard(a, scnt, code)
    a(f's_branch {tag}_L')
def stamp(a, n, diag):
    if diag == 3: return
    op = 's_memrealtime' if diag == 2 else 's_memtime'
    if diag: a(f's_waitcnt lgkmcnt(0)\n{op} s[{64+2*n}:{65+2*n}]\ns_waitcnt lgkmcnt(0)')
def dump(a, diag, role, sStep, v, vz, n=7, tag=''):
    if not diag or diag == 3: return
    t = f'DUMP{role}{tag}'
    a(f's_cmp_lg_u32 s3, 0\ns_cbranch_scc1 {t}')
    a(f's_lshl_b32 s60, s{sL}, 4\ns_add_u32 s60, s60, s{sI}\ns_add_u32 s60, s60, {role*32}\ns_lshl_b32 s60, s60, 6\ns_add_u32 s60, s60, s{sStep}\ns_lshl_b32 s60, s60, 5\ns_add_u32 s60, s60, {DBG}')
    for i in range(n):
        a(f'v_mov_b32 v{v}, s{64+2*i}\nv_mov_b32 v{vz}, {4*i}\nbuffer_store_dword v{v}, v{vz}, {wsr()}, s60 offen')
    a.label(t)

def mem_gather(a, tag, sMEM, vP1, vP2, ST, vt, scnt, code, K=2):
    def issue(k):
        a(f'buffer_load_dwordx4 {vr(ST+8*k,4)}, v{vP1}, {wsr()}, s{sMEM} offen sc1')
        a(f'buffer_load_dwordx4 {vr(ST+8*k+4,4)}, v{vP2}, {wsr()}, s{sMEM} offen sc1'); return 2
    poll(a, tag, [range(ST, ST+8), range(ST+8, ST+16)][:K], issue, vt, scnt, code)
    for k in range(K):
        a.label(f'{tag}_OK{k}')
        a(f'ds_write_b128 v{vP1}, {vr(ST+8*k,4)}\nds_write_b128 v{vP2}, {vr(ST+8*k+4,4)}')
        if k < K-1: a(f's_branch {tag}_DONE')
    a.label(f'{tag}_DONE')
def rec_common(a, vL16, vP1, vP2, vIDX, vt):
    a(f'v_lshlrev_b32 v{vL16}, 4, v1\ns_mul_i32 s20, s3, 1792\nv_add_u32 v{vP1}, s20, v{vL16}')
    a(f'v_add_u32 v{vP2}, 1024, v{vP1}\nv_cmp_gt_u32 vcc, 48, v1\nv_cndmask_b32 v{vP2}, v{vP1}, v{vP2}, vcc')
    a(f'v_and_b32 v{vt}, 8, v1\nv_cmp_eq_u32 vcc, 0, v{vt}\nv_mov_b32 v{vIDX}, 0xeeee\nv_mov_b32 v{vt}, 0x4444\nv_cndmask_b32 v{vIDX}, v{vIDX}, v{vt}, vcc')

def softmax_rows(a, x, m, t, half_last=True, mask=None):
    def red(op):
        for ctl in ('quad_perm:[1,0,3,2]', 'quad_perm:[2,3,0,1]', 'row_half_mirror'):
            a(f'{op}_dpp v{m}, v{m}, v{m} {ctl} row_mask:0xf bank_mask:0xf')
    a(f'v_max3_f32 v{m}, v{x[0]}, v{x[1]}, v{x[2]}\nv_max3_f32 v{t}, v{x[3]}, v{x[4]}, v{x[5]}\nv_max_f32 v{m}, v{m}, v{t}')
    red('v_max_f32')
    for k in range(3): a(f'v_pk_add_f32 {vr(x[2*k],2)}, {vr(x[2*k],2)}, {vr(m,2)} op_sel_hi:[1,0] neg_lo:[0,1] neg_hi:[0,1]')
    for i in (4, 5, 0, 1, 2, 3): a(f'v_exp_f32 v{x[i]}, v{x[i]}')
    a(f'v_add_f32 v{m}, v{x[4]}, v{x[5]}\nv_add_f32 v{t}, v{x[0]}, v{x[1]}\nv_fma_f32 v{m}, v{m}, 0.5, v{x[2]}\nv_add_f32 v{t}, v{t}, v{x[3]}\nv_add_f32 v{m}, v{m}, v{t}')
    red('v_add_f32')
    a(f'v_rcp_f32 v{m}, v{m}')
    for k in range(3): a(f'v_pk_mul_f32 {vr(x[2*k],2)}, {vr(x[2*k],2)}, {vr(m,2)} op_sel_hi:[1,0]')

def gen_RA(a, diag=False):
    vL16, vP1, vP2, vIDX, vt, vK, vMK, vSW, vSR, vPS, vPM = 2, 3, 4, 5, 6, 7, 8, 9, 10, 11, 0
    ME, ST, UA, XK, FO, TP = 12, 40, 56, 84, 112, 116
    vK1, vMK1, vTO, vTD = 114, 115, 54, 55
    RED = 8192; RS = 80; RT = 1024
    sMEM, sXS, sPM, sS, sC, sC2, sVP = 21, 22, 23, 24, 25, 26, 33
    a.label('RA')
    rec_common(a, vL16, vP1, vP2, vIDX, vt)
    a(f's_lshl_b32 s34, s{sI}, 2\ns_add_u32 s34, s34, s3\ns_mul_i32 s20, s34, {98*KB}')
    if AIMG: a(f's_add_u32 s20, s20, {AIMG}')
    load_weights(a, 20, 98, vL16)
    a(f'v_and_b32 v{vt}, 7, v1\nv_lshlrev_b32 v{vMK}, 4, v{vt}\nv_lshrrev_b32 v{vt}, 4, v1\nv_lshl_add_u32 v{vMK}, v{vt}, 7, v{vMK}')
    a('s_lshr_b32 s27, s3, 1\ns_mul_i32 s27, s27, 7\ns_add_u32 s27, s27, 3\ns_and_b32 s28, s3, 1\ns_lshl_b32 s28, s28, 3')
    a(f's_lshl_b32 s29, s27, 10\ns_add_u32 s29, s29, s28\nv_add_u32 v{vK1}, s29, v{vL16}\ns_lshl_b32 s29, s27, 9\ns_add_u32 s29, s29, s28\nv_add_u32 v{vMK1}, s29, v{vMK}')
    a('s_mul_i32 s27, s3, 7\ns_add_u32 s27, s27, 1\ns_lshr_b32 s27, s27, 1\ns_lshl_b32 s28, s27, 10\ns_lshl_b32 s27, s27, 9')
    a(f'v_add_u32 v{vK}, s28, v{vL16}\nv_add_u32 v{vMK}, s27, v{vMK}')
    a(f'v_lshrrev_b32 v{vt}, 4, v1\nv_and_b32 v{vt}, 1, v{vt}\nv_lshlrev_b32 v{vt}, 2, v{vt}\nv_and_b32 v{ST}, 7, v1\nv_sub_u32 v{vt}, v{ST}, v{vt}')
    a(f'v_mov_b32 v{ST}, 0x3f80\nv_mov_b32 v{ST+1}, 0x3f800000')
    for d in range(2):
        a(f'v_cmp_eq_u32 vcc, {2*d}, v{vt}\nv_cndmask_b32 v{FO+d}, 0, v{ST}, vcc\nv_cmp_eq_u32 vcc, {2*d+1}, v{vt}\nv_cndmask_b32 v{FO+d}, v{FO+d}, v{ST+1}, vcc')
    assert 16 * RS <= RT + 256
    a(f'v_and_b32 v{vt}, 15, v1\nv_min_u32 v{vt}, 8, v{vt}\nv_mul_u32_u24 v{vt}, {RS}, v{vt}\nv_lshrrev_b32 v{ST}, 4, v1\nv_lshl_add_u32 v{vt}, v{ST}, 4, v{vt}')
    a(f's_mul_i32 s27, s3, {3*RT}\ns_add_u32 s27, s27, {RED}\nv_add_u32 v{vSW}, s27, v{vt}')
    a(f'v_lshrrev_b32 v{vt}, 3, v1\nv_mul_u32_u24 v{vt}, {RS}, v{vt}\nv_and_b32 v{ST}, 7, v1\nv_lshl_add_u32 v{vt}, v{ST}, 3, v{vt}\nv_add_u32 v{vSR}, {RED}, v{vt}')
    a(f'v_bfe_u32 v{vt}, v1, 2, 1\nv_lshlrev_b32 v{vt}, 8, v{vt}\nv_lshrrev_b32 v{ST}, 3, v1\nv_lshl_add_u32 v{vt}, v{ST}, 4, v{vt}\nv_and_b32 v{ST}, 1, v1\nv_lshl_add_u32 v{vt}, v{ST}, 7, v{vt}\nv_bfe_u32 v{ST}, v1, 1, 1\nv_lshl_add_u32 v{vt}, v{ST}, 3, v{vt}')
    a(f's_lshr_b32 s27, s{sI}, 2\ns_mul_i32 s27, s27, 3072\ns_bfe_u32 s28, s{sI}, 0x10001\ns_and_b32 s29, s{sI}, 1')
    a(f's_lshl_b32 s30, s28, 10\ns_lshl_b32 s31, s29, 9\ns_add_u32 s30, s30, s31\ns_add_u32 s30, s30, s27\nv_add_u32 v{vPS}, s30, v{vt}')
    a(f's_lshl_b32 s30, s28, 9\ns_lshl_b32 s31, s29, 2\ns_add_u32 s30, s30, s31\ns_add_u32 s30, s30, s27\ns_add_u32 s30, s30, 2048\nv_add_u32 v{vPM}, s30, v{vt}')
    a(f's_mul_i32 s{sMEM}, s{sL}, {MEM_L}\ns_add_u32 s{sMEM}, s{sMEM}, {MEMX}')
    a(f's_mov_b32 s{sXS}, {XS1}\ns_cmp_eq_u32 s{sL}, 1\ns_cselect_b32 s{sXS}, {XS2}, s{sXS}')
    a(f's_mul_i32 s{sPM}, s{sL}, {64*PM_STEP}\ns_add_u32 s{sPM}, s{sPM}, {PM}\ns_mov_b32 s{sS}, 0')
    a(f's_mul_i32 s{sVP}, s{sL}, {64*VP_STEP}\ns_mul_i32 s27, s34, {56*128}\ns_add_u32 s{sVP}, s{sVP}, s27\ns_add_u32 s{sVP}, s{sVP}, {VP+VP_STEP}')
    def keyl(base_s, voff, voff1, dst, st):
        return [f'buffer_load_dwordx4 {vr(dst+4*p,4)}, v{voff}, {wsr()}, s{base_s} offen offset:{st*p} sc1' for p in range(3)] + \
               [f'buffer_load_dwordx2 {vr(dst+12,2)}, v{voff1}, {wsr()}, s{base_s} offen sc1']
    def xkeys():
        a(f's_add_u32 s27, s{sXS}, {MT}')
        for l in keyl(sXS, vK, vK1, XK, 1024) + keyl(27, vK, vK1, XK+14, 1024): a(l)
    mk = keyl(28, vMK, vMK1, ST, 512)
    a('s_waitcnt vmcnt(0)')
    xkeys()
    if diag == 3: a('s_memtime s[64:65]\ns_memrealtime s[68:69]\ns_waitcnt lgkmcnt(0)')
    a.label('RA_STEP')
    for i in range(28): a(f'v_mov_b32 v{UA+i}, 0')
    a(f's_add_u32 s28, s{sMEM}, {MEM_ONE}')
    if OPT['ra_sleep']: a(f's_sleep {OPT["ra_sleep"]}')
    mem_gather(a, 'RA_M', sMEM, vP1, vP2, ST, vt, sC, 1, OPT['ra_k'])
    stamp(a, 0, diag)
    a('s_waitcnt lgkmcnt(0)\ns_barrier')
    stamp(a, 1, diag)
    SA = [UA+4, UA+12, UA+20]
    UT = lambda p: UA + 8*p
    def xops(kts):
        o = []
        for kt in kts:
            kb = (XK, XK+14, ST)[kt]; c = vr(SA[kt], 4)
            for p in range(4):
                if p < 3: o.append(f'v_mfma_f32_16x16x32_bf16 {c}, {vr(kb+4*p,4)}, {vr(UT(p),4)}, {c if p else 0}')
                else: o.append(f'v_mfma_f32_16x16x16_bf16 {c}, {vr(kb+12,2)}, {vr(UT(3),2)}, {c}')
        return o
    ops = [f'ds_read_b128 {vr(ME+4*b,4)}, v{vL16} offset:{1024*b}' for b in range(7)]
    bias = {}
    ops += mk
    chk = list(range(XK, XK+28)) + list(range(ST, ST+14))
    ops.append(f'v_max_u32 v{vt}, v{chk[0]}, v{chk[1]}')
    for i in range(2, 28, 2): ops.append(f'v_max3_u32 v{vt}, v{vt}, v{chk[i]}, v{chk[i+1]}')
    for tl in range(7):
        c = UA+4*tl; tp = TP + 2*(tl & 1); ut = UT(tl >> 1) + 2*(tl & 1)
        for b in range(7):
            bias[len(ops)] = OPT.get('ra_bias', 60) * (6 - max(tl, 1)) if b == 6 else 0
            ops.append(f'v_smfmac_f32_16x16x64_bf16 {vr(c,4)}, {vr(ME+4*b,4)}, {wreg((b*7+tl)*2, 8)}, v{vIDX}')
        ops += [f'v_cvt_pk_bf16_f32 v{tp}, v{c}, v{c+1}', f'v_cvt_pk_bf16_f32 v{tp+1}, v{c+2}, v{c+3}']
        ops.append(f'v_mfma_f32_16x16x16_bf16 {vr(c,4)}, {vr(tp,2)}, {vr(FO,2)}, 0')
        ops += [f'v_cvt_pk_bf16_f32 v{ut}, v{c}, v{c+1}', f'v_cvt_pk_bf16_f32 v{ut+1}, v{c+2}, v{c+3}']
    for i in range(28, 42, 2): ops.append(f'v_max3_u32 v{vt}, v{vt}, v{chk[i]}, v{chk[i+1]}')
    ops.append(f'v_cmp_eq_u32 vcc, -1, v{vt}')
    ops += xops((0, 1, 2))
    inflight = [set(regs_of(vr(ST+8, 8)))] * 0
    out, vm, lg = schedule(ops, L=dict(ds=80, vm=OPT.get('ra_vmlat', 600), vmgap=48), prio_bias=bias)
    print('RA core estimate', schedule.cycles)
    for l in out: a(l)
    stamp(a, 2, diag)
    a('s_cbranch_vccnz RA_KSLOW')
    a.label('RA_KOK')
    if OPT.get('dbgk'):
        a(f's_cmp_lg_u32 s{sS}, 0\ns_cbranch_scc1 RA_DBGK\ns_nop 7\ns_nop 7')
        a(f's_lshl_b32 s60, s{sL}, 6\ns_add_u32 s60, s60, s34\ns_lshl_b32 s60, s60, 15\ns_add_u32 s60, s60, {DBG}')
        for i in range(30): a(f'buffer_store_dwordx4 {vr(4*i,4)}, v{vL16}, {wsr()}, s60 offen\ns_add_u32 s60, s60, 1024')
        a.label('RA_DBGK')
    for kt in range(3): a(f'ds_write_b128 v{vSW}, {vr(SA[kt],4)} offset:{RT*kt}')
    a(f's_add_u32 s{sXS}, s{sXS}, {SEGB}\ns_add_u32 s{sMEM}, s{sMEM}, {MEM_STEP}\ns_add_u32 s{sS}, s{sS}, 1')
    a('s_waitcnt lgkmcnt(0)\ns_barrier')
    stamp(a, 4, diag)
    a('s_cmp_lg_u32 s3, 0\ns_cbranch_scc1 RA_NEXT')
    R = UA
    for kt in (2, 0, 1):
        for pp in range(2):
            a(f'ds_read2st64_b64 {vr(R+8*kt+4*pp,4)}, v{vSR} offset0:{2*kt+12*pp} offset1:{2*kt+12*pp+6}')
    for n, kt in enumerate((2, 0, 1)):
        a(f's_waitcnt lgkmcnt({4-2*n})')
        b = R+8*kt
        a(f'v_pk_add_f32 {vr(b,2)}, {vr(b,2)}, {vr(b+2,2)}\nv_pk_add_f32 {vr(b+4,2)}, {vr(b+4,2)}, {vr(b+6,2)}\nv_pk_add_f32 {vr(b,2)}, {vr(b,2)}, {vr(b+4,2)}')
    x = [R, R+1, R+8, R+9, R+16, R+17]; m, t = R+2, R+3
    softmax_rows(a, x, m, t)
    o = R+4
    for k in range(3): a(f'v_cvt_pk_bf16_f32 v{o+k}, v{x[2*k]}, v{x[2*k+1]}')
    a(f'buffer_store_dwordx2 {vr(o,2)}, v{vPS}, {wsr()}, s{sPM} offen\nbuffer_store_dword v{o+2}, v{vPM}, {wsr()}, s{sPM} offen')
    stamp(a, 5, diag); dump(a, diag, 0, sS, m, vt)
    a.label('RA_NEXT')
    if OPT.get('ra_bar_first', 1): a('s_barrier')
    xkeys()
    if OPT.get('ra_touch', 1):
        a(f'v_min_u32 v{vTO}, 55, v1\nv_lshlrev_b32 v{vTO}, 7, v{vTO}\nbuffer_load_dword v{vTD}, v{vTO}, {wsr()}, s{sVP} offen sc1\ns_add_u32 s{sVP}, s{sVP}, {VP_STEP}')
    if not OPT.get('ra_bar_first', 1): a('s_barrier')
    a(f's_add_u32 s{sPM}, s{sPM}, {PM_STEP}\ns_cmp_lt_u32 s{sS}, 63\ns_cbranch_scc1 RA_STEP')
    if diag == 3:
        a('s_memtime s[66:67]\ns_memrealtime s[70:71]\ns_waitcnt lgkmcnt(0)'); a(f's_mov_b32 s{sS}, 0'); dump(a, 1, 0, sS, UA, vt, tag='E')
    a('s_endpgm')
    a.label('RA_KSLOW')
    a(f's_mov_b32 s{sC2}, 0')
    a.label('RA_KS_L')
    xkeys()
    for l in mk: a(l)
    guard(a, sC2, 2)
    a('s_waitcnt vmcnt(0)')
    allset(a, vt, chk)
    a('s_cbranch_vccnz RA_KS_L')
    for l in xops((0, 1, 2)): a(l)
    a('s_branch RA_KOK')

def gen_RB(a, diag=False):
    vL16, vP1, vP2, vIDX, vt, vRW, vRR, vO, vWL, vZ, vF = 2, 3, 4, 5, 6, 7, 8, 9, 10, 11, 0
    ME, ST, WA, VV = 12, 40, 56, 88
    RED, WL = 8192, 16384
    sMEM, sVP, sPM, sFL, sS, sC, sO = 21, 22, 24, 25, 26, 27, 28
    a.label('RB')
    rec_common(a, vL16, vP1, vP2, vIDX, vt)
    a(f's_lshl_b32 s30, s{sI}, 2\ns_add_u32 s30, s30, s3\ns_mul_i32 s20, s30, {112*KB}\ns_add_u32 s20, s20, {BIMG}')
    a(f's_mul_i32 s31, s3, {14*KB}\ns_add_u32 s31, s31, {WL}\nv_add_u32 v{vWL}, s31, v{vL16}\nv_mov_b32 v{vZ}, 0')
    load_weights(a, 20, 98, vL16, 14, 31)
    a(f's_mul_i32 s{sMEM}, s{sL}, {MEM_L}\ns_add_u32 s{sMEM}, s{sMEM}, {MEMX}')
    a(f's_mul_i32 s{sVP}, s{sL}, {64*VP_STEP}\ns_lshl_b32 s32, s30, 13\ns_add_u32 s{sVP}, s{sVP}, s32\ns_add_u32 s{sVP}, s{sVP}, {VP}')
    a(f's_mul_i32 s{sPM}, s{sL}, {64*PM_STEP}\ns_mul_i32 s32, s3, 3072\ns_add_u32 s{sPM}, s{sPM}, s32\ns_add_u32 s{sPM}, s{sPM}, {PM}')
    a(f's_mul_i32 s{sFL}, s{sL}, {64*FL_STEP}\ns_lshl_b32 s32, s{sI}, 7\ns_add_u32 s{sFL}, s{sFL}, s32\ns_lshl_b32 s32, s3, 2\ns_add_u32 s{sFL}, s{sFL}, s32\ns_add_u32 s{sFL}, s{sFL}, {VF}')
    a(f'v_and_b32 v{vt}, 15, v1\nv_lshrrev_b32 v{ST}, 5, v1\nv_lshl_add_u32 v{vt}, v{ST}, 4, v{vt}\nv_lshlrev_b32 v{vt}, 2, v{vt}\nv_bfe_u32 v{ST}, v1, 4, 1\nv_lshl_add_u32 v{vt}, v{ST}, 9, v{vt}')
    a(f's_lshl_b32 s32, s3, 10\ns_add_u32 s32, s32, {RED}\nv_add_u32 v{vRW}, s32, v{vt}')
    T = ST
    a(f'v_and_b32 v{T}, 127, v0')
    a('s_cmp_ge_u32 s3, 2\ns_cbranch_scc1 RB_INIT_F')
    a(f'v_bfe_u32 v{T+1}, v{T}, 2, 3\nv_lshlrev_b32 v{vRR}, 7, v{T+1}\nv_and_b32 v{T+1}, 1, v{T}\nv_lshl_add_u32 v{vRR}, v{T+1}, 6, v{vRR}')
    a(f'v_lshrrev_b32 v{T+1}, 6, v{T}\nv_lshl_add_u32 v{vRR}, v{T+1}, 5, v{vRR}\nv_bfe_u32 v{T+1}, v{T}, 1, 1\nv_lshl_add_u32 v{vRR}, v{T+1}, 4, v{vRR}\nv_bfe_u32 v{T+1}, v{T}, 5, 1\nv_lshl_add_u32 v{vRR}, v{T+1}, 3, v{vRR}')
    a(f's_lshl_b32 s32, s{sI}, 9\nv_lshl_add_u32 v{vO}, v{T}, 2, s32\ns_branch RB_INIT_D')
    a.label('RB_INIT_F')
    a(f'v_bfe_u32 v{T+1}, v{T}, 2, 3\nv_lshlrev_b32 v{vRR}, 7, v{T+1}\nv_bfe_u32 v{T+1}, v{T}, 1, 1\nv_lshl_add_u32 v{vRR}, v{T+1}, 6, v{vRR}')
    a(f'v_lshrrev_b32 v{T+1}, 5, v{T}\nv_lshl_add_u32 v{vRR}, v{T+1}, 4, v{vRR}\nv_and_b32 v{T+1}, 1, v{T}\nv_lshl_add_u32 v{vRR}, v{T+1}, 3, v{vRR}')
    a(f's_lshl_b32 s32, s{sI}, 9\ns_add_u32 s32, s32, {MEM_ONE}\nv_lshl_add_u32 v{vO}, v{T}, 2, s32')
    a.label('RB_INIT_D')
    a(f'v_add_u32 v{vRR}, {RED}, v{vRR}\ns_mov_b32 s{sS}, 0\nv_mov_b32 v{vF}, -1\ns_waitcnt vmcnt(0)')
    a.label('RB_STEP')
    a('s_waitcnt vmcnt(2)')
    a(f'v_cmp_eq_u32 vcc, -1, v{vF}\ns_cbranch_vccnz RB_VSLOW')
    a.label('RB_VOK')
    for i in range(32): a(f'v_mov_b32 v{WA+i}, 0')
    stamp(a, 0, diag)
    if OPT['rb_msleep']: a(f's_sleep {OPT["rb_msleep"]}')
    mem_gather(a, 'RB_M', sMEM, vP1, vP2, ST, vt, sC, 4, OPT['rb_k'])
    stamp(a, 1, diag)
    a('s_waitcnt lgkmcnt(0)\ns_barrier')
    for b in range(7): a(f'ds_read_b128 {vr(ME+4*b,4)}, v{vL16} offset:{1024*b}')
    a(f's_add_u32 s32, s{sVP}, 4096\ns_add_u32 s{sFL}, s{sFL}, {FL_STEP}')
    vl = [f'buffer_load_dwordx4 {vr(VV+4*i,4)}, v{vL16}, {wsr()}, s{sVP if i < 4 else 32} offen offset:{1024*(i%4)} sc1' for i in range(8)]
    vl.append(f'buffer_load_dword v{vF}, v{vZ}, {wsr()}, s{sFL} offen sc1')
    for b in range(7):
        a(f's_waitcnt lgkmcnt({6-b if b < 6 else 4})')
        for u in range(8):
            f = (b*8+u)*2
            if f < 98: w = wreg(f, 8)
            else:
                i = (f-98)//2; w = vr(ST+8*(i % 2), 8)
                a(f's_waitcnt lgkmcnt({2 if i < 6 else 0})')
            a(f'v_smfmac_f32_16x16x64_bf16 {vr(WA+4*u,4)}, {vr(ME+4*b,4)}, {w}, v{vIDX}')
            nxt = None
            if u in (1, 5) and vl: a(vl.pop(0))
            if b == 5 and u == 5: a('s_waitcnt vmcnt(9)'); nxt = 0
            if b == 5 and u == 7: nxt = 1
            if f >= 98 and (f-98)//2 + 2 < 7: nxt = (f-98)//2 + 2
            if nxt is not None:
                a(f'ds_read_b128 {vr(ST+8*(nxt%2),4)}, v{vWL} offset:{2048*nxt}\nds_read_b128 {vr(ST+8*(nxt%2)+4,4)}, v{vWL} offset:{2048*nxt+1024}')
    WK, OA = ME, ME+16
    stamp(a, 2, diag)
    for u in range(8):
        hh, nt = u >> 1, u & 1; c = WA+4*u; o = WK+8*nt+2*hh
        a(f'v_cvt_pk_bf16_f32 v{o}, v{c}, v{c+1}\nv_cvt_pk_bf16_f32 v{o+1}, v{c+2}, v{c+3}')
    for i in range(8): a(f'v_mov_b32 v{OA+i}, 0')
    sets = [ST, WA, WA+12][:OPT['rb_pk']]
    if diag in (1, 2): a('s_waitcnt vmcnt(0)'); stamp(a, 3, diag)
    if OPT['rb_psleep']: a(f's_sleep {OPT["rb_psleep"]}')
    def issue(k):
        for i in range(3): a(f'buffer_load_dwordx4 {vr(sets[k]+4*i,4)}, v{vL16}, {wsr()}, s{sPM} offen offset:{1024*i} sc1')
        return 3
    poll(a, 'RB_P', [range(s, s+12) for s in sets], issue, vt, sC, 5)
    for k in range(len(sets)):
        a.label(f'RB_P_OK{k}')
        for blk in range(3):
            for nt in range(2):
                B = vr(VV+8*(blk*2+nt), 8) if blk < 2 else vr(WK+8*nt, 8)
                a(f'v_smfmac_f32_16x16x64_bf16 {vr(OA+4*nt,4)}, {vr(sets[k]+4*blk,4)}, {B}, v{vIDX}')
        if k < len(sets)-1: a('s_branch RB_P_DONE')
    a.label('RB_P_DONE')
    stamp(a, 4, diag)
    a(f's_add_u32 s{sMEM}, s{sMEM}, {MEM_STEP}\ns_add_u32 s{sO}, s{sMEM}, {2*MEM_ONE}')
    for j in range(4): a(f'v_permlane32_swap_b32 v{OA+j}, v{OA+4+j}')
    for j in range(4): a(f'v_add_f32 v{OA+j}, v{OA+j}, v{OA+4+j}\nds_write_b32 v{vRW}, v{OA+j} offset:{128*j}')
    a('s_waitcnt lgkmcnt(0)\ns_barrier')
    R = OA
    a(f'ds_read2st64_b64 {vr(R,4)}, v{vRR} offset0:0 offset1:2\nds_read2st64_b64 {vr(R+4,4)}, v{vRR} offset0:4 offset1:6')
    a(f's_waitcnt lgkmcnt(1)\nv_pk_add_f32 {vr(R,2)}, {vr(R,2)}, {vr(R+2,2)}\ns_waitcnt lgkmcnt(0)\nv_pk_add_f32 {vr(R+4,2)}, {vr(R+4,2)}, {vr(R+6,2)}\nv_pk_add_f32 {vr(R,2)}, {vr(R,2)}, {vr(R+4,2)}')
    a(f'v_cvt_pk_bf16_f32 v{R}, v{R}, v{R+1}')
    a(f'buffer_store_dword v{R}, v{vO}, {wsr()}, s{sMEM} offen')
    a(f'buffer_store_dword v{R}, v{vO}, {wsr()}, s{sO} offen sc1')
    a(f's_add_u32 s{sVP}, s{sVP}, {VP_STEP}\ns_add_u32 s{sPM}, s{sPM}, {PM_STEP}\ns_add_u32 s{sS}, s{sS}, 1')
    if diag: stamp(a, 5, diag); dump(a, diag, 1, sS, OA+1, vt)
    a(f's_cmp_lt_u32 s{sS}, 63\ns_cbranch_scc1 RB_STEP\ns_endpgm')
    a.label('RB_VSLOW')
    a(f's_mov_b32 s{sC}, 0')
    a.label('RB_VF')
    a(f'buffer_load_dword v{vF}, v{vZ}, {wsr()}, s{sFL} offen sc1')
    guard(a, sC, 3)
    a(f's_waitcnt vmcnt(0)\nv_cmp_eq_u32 vcc, -1, v{vF}\ns_cbranch_vccnz RB_VF\ns_branch RB_VOK')

def gen_PF(a, diag=False):
    vB, vt, vZ = 3, 5, 6
    sXS, sMEM, sS, sC = 23, 24, 25, 26
    AH = OPT.get('pf_ahead', 2)
    a.label('PF')
    a(f's_lshl_b32 s30, s{sI}, 2\ns_add_u32 s30, s30, s3\nv_mov_b32 v{vZ}, 0')
    a(f's_mov_b32 s{sXS}, {XS1}\ns_cmp_eq_u32 s{sL}, 1\ns_cselect_b32 s{sXS}, {XS2}, s{sXS}\ns_mul_i32 s32, s30, 3584\ns_add_u32 s{sXS}, s{sXS}, s32')
    a(f'v_min_u32 v{vB}, 27, v1\nv_lshlrev_b32 v{vB}, 7, v{vB}')
    a(f's_mul_i32 s{sMEM}, s{sL}, {MEM_L}\ns_add_u32 s{sMEM}, s{sMEM}, {MEMX}\ns_mov_b32 s{sS}, 0')
    a(f'v_min_u32 v7, 11, v1\nv_lshlrev_b32 v7, 7, v7\nv_min_u32 v8, 13, v1\nv_lshlrev_b32 v8, 7, v8')
    a(f's_mul_i32 s27, s{sL}, {64*PM_STEP}\ns_mul_i32 s32, s30, 1536\ns_add_u32 s27, s27, s32\ns_add_u32 s27, s27, {PM}')
    a(f's_mul_i32 s32, s30, 1792\ns_add_u32 s28, s{sMEM}, s32\ns_add_u32 s28, s28, {MEM_STEP}')
    def slots():
        a(f'buffer_load_dword v9, v7, {wsr()}, s27 offen sc1\nbuffer_load_dword v9, v8, {wsr()}, s28 offen sc1')
        a(f's_add_u32 s27, s27, {PM_STEP}\ns_add_u32 s28, s28, {MEM_STEP}')
    slots(); slots()
    a.label('PF_STEP')
    a(f's_mov_b32 s{sC}, 0\ns_cmp_le_u32 s{sS}, {AH}\ns_cbranch_scc1 PF_SL\ns_add_u32 s{sMEM}, s{sMEM}, {MEM_STEP}')
    a.label('PF_TH')
    a(f'buffer_load_dword v{vt}, v{vZ}, {wsr()}, s{sMEM} offen sc1')
    guard(a, sC, 6)
    a(f's_waitcnt vmcnt(0)\nv_cmp_eq_u32 vcc, -1, v{vt}\ns_cbranch_vccz PF_SL\ns_sleep 4\ns_branch PF_TH')
    a.label('PF_SL')
    slots()
    a.label('PF_X')
    a(f'buffer_load_dword v{vt}, v{vB}, {wsr()}, s{sXS} offen sc1')
    guard(a, sC, 7)
    a(f's_waitcnt vmcnt(0)\nv_cmp_eq_u32 vcc, -1, v{vt}\ns_cbranch_vccz PF_GO\ns_sleep 4\ns_branch PF_X')
    a.label('PF_GO')
    a(f's_add_u32 s{sXS}, s{sXS}, {SEGB}\ns_add_u32 s{sS}, s{sS}, 1')
    a(f's_cmp_lt_u32 s{sS}, 63\ns_cbranch_scc1 PF_STEP\ns_endpgm')
```

```python
import main, sys
ref = open('interleave_layers__memory_aug_recurrent_mem_tr__dense_activation_silu__prompt.s.ref').read().split('\n')
hdr = '\n'.join(l for l in ref if l.startswith(';') and '@launch' not in l and 'Override launch' not in l and 'grid=ceil' not in l) + '\n'
out = sys.argv[1] if len(sys.argv) > 1 else 'interleave_layers__memory_aug_recurrent_mem_tr__dense_activation_silu__prompt.s'
open(out, 'w').write(main.full(diag=0, header=hdr))
```

```python
from common import *
from layout import *
NAME = 'prep_kernel'
LDS = 32 * KB
ST = ''
def gen(st=ST, diag=0):
    a = Asm()
    WS, SA, SB, SX = 24, 28, 32, 36
    vX, vG, vL16, vOFF, vT = 2, 3, 4, 5, 6
    a('s_cmp_ge_u32 s2, 256\ns_cbranch_scc1 K0_END')
    if diag: a('s_memrealtime s[80:81]')
    a('s_load_dwordx4 s[4:7], s[0:1], 0\ns_load_dwordx4 s[8:11], s[0:1], 16\ns_load_dwordx4 s[12:15], s[0:1], 32')
    a('s_load_dwordx4 s[16:19], s[0:1], 64\ns_load_dwordx2 s[20:21], s[0:1], 96')
    a(f'v_and_b32 v1, 63, v0\nv_lshrrev_b32 v{vT}, 6, v0')
    a(f'v_and_b32 v{vX}, 15, v1\nv_lshrrev_b32 v{vG}, 4, v1\nv_lshlrev_b32 v{vL16}, 4, v1')
    a(f'v_readfirstlane_b32 s3, v{vT}')
    a('s_and_b32 s40, s2, 7\ns_lshr_b32 s41, s2, 3')
    a('s_waitcnt lgkmcnt(0)')
    srd(a, WS, 20, 1 << 28); srd(a, SX, 4, XS_SZ)
    a(f'v_lshrrev_b32 v{vT}, 2, v1\nv_lshlrev_b32 v{vT}, 6, v{vT}\nv_and_b32 v7, 3, v1\nv_lshl_add_u32 v8, v7, 3, v{vT}')
    a('v_cmp_gt_u32 vcc, 56, v1')
    a('v_mov_b32 v7, 0x7fffffff\nv_cndmask_b32 v8, v7, v8, vcc')
    a('v_cndmask_b32 v9, 0, 1.0, vcc')
    a(f'v_lshlrev_b32 v10, 8, v1\nv_cndmask_b32 v10, v7, v10, vcc')
    a(f's_lshl_b32 s42, s2, 3\ns_lshl_b32 s43, s3, 1\ns_add_u32 s42, s42, s43\ns_mul_i32 s42, s42, {ROW}')
    a(f'buffer_load_dwordx2 v[12:13], v8, s[{SX}:{SX+3}], s42 offen\nbuffer_load_dwordx2 v[14:15], v8, s[{SX}:{SX+3}], s42 offen offset:32')
    a(f'buffer_load_dwordx2 v[16:17], v8, s[{SX}:{SX+3}], s42 offen offset:{ROW}\nbuffer_load_dwordx2 v[18:19], v8, s[{SX}:{SX+3}], s42 offen offset:{ROW+32}')
    a(f'v_and_b32 v7, 1, v{vX}\nv_cmp_eq_u32 vcc, 1, v7\nv_mov_b32 v28, 0x3f80\nv_mov_b32 v29, 0x3f800000\nv_cndmask_b32 v28, v28, v29, vcc')
    a(f'v_lshrrev_b32 v7, 3, v{vX}\nv_bfe_u32 v29, v{vX}, 1, 2')
    a(f'v_lshl_add_u32 v30, v7, 2, v29\nv_lshlrev_b32 v31, 2, v{vG}')
    for half in range(2):
        for d in range(4):
            a(f'v_add_u32 v7, {d - 8*half}, v31\nv_cmp_eq_u32 vcc, v7, v30\nv_cndmask_b32 v{20+4*half+d}, 0, v28, vcc')
    a('s_cmp_ge_u32 s41, 28\ns_cbranch_scc1 K0_W')
    a('s_mul_i32 s44, s41, 37\ns_lshr_b32 s44, s44, 8\ns_mul_i32 s45, s44, 7\ns_sub_u32 s45, s41, s45')
    a('s_lshr_b32 s46, s44, 1\ns_lshl_b32 s47, s40, 1\ns_add_u32 s46, s46, s47')
    a(f'v_lshlrev_b32 v{vOFF}, 13, v{vX}\nv_lshl_add_u32 v{vOFF}, v{vG}, 4, v{vOFF}')
    a('s_lshl_b32 s47, s45, 2\ns_add_u32 s47, s47, s3\ns_lshl_b32 s47, s47, 17\ns_lshl_b32 s48, s46, 9\ns_add_u32 s47, s47, s48')
    a('s_and_b32 s49, s44, 1\ns_cmp_eq_u32 s49, 1\ns_cselect_b32 s50, s12, s8\ns_cselect_b32 s51, s13, s9')
    srd(a, SA, 50, 448 * 8192)
    a('s_lshl_b32 s52, s3, 13')
    for ks in range(8):
        a(f's_add_u32 m0, s52, {ks*(1024-64)}' if ks else 's_mov_b32 m0, s52')
        a(f'buffer_load_dwordx4 v{vOFF}, s[{SA}:{SA+3}], s47 offen offset:{64*ks} lds')
    ACC = 32
    AF = 144
    a('s_cmp_eq_u32 s49, 1\ns_cbranch_scc1 K0_B')
    srd(a, SB, 10, 448 * 8192)
    a('s_mul_i32 s53, s3, 7\ns_add_u32 s53, s53, 1\ns_lshr_b32 s53, s53, 1\ns_lshl_b32 s53, s53, 18\ns_add_u32 s53, s53, s48')
    for tl in range(6): a(f's_add_u32 s{60+tl}, s53, {tl*131072}')
    a('s_lshr_b32 s54, s3, 1\ns_mul_i32 s54, s54, 14\ns_and_b32 s55, s3, 1\ns_add_u32 s54, s54, s55\ns_add_u32 s54, s54, 6\ns_lshl_b32 s54, s54, 17\ns_add_u32 s66, s54, s48')
    for ks in range(8):
        for tl in range(7):
            a(f'buffer_load_dwordx4 {ar(4*(ks*7+tl),4)}, v{vOFF}, s[{SB}:{SB+3}], s{60+tl} offen offset:{64*ks}')
    a('s_waitcnt vmcnt(56)\ns_barrier')
    for ks in range(8):
        for it in range(4): a(f'ds_read_b128 {vr(AF+4*it,4)}, v{vL16} offset:{it*8192+ks*1024}')
        a(f's_waitcnt vmcnt({49-7*ks})')
        for it in range(4):
            a(f's_waitcnt lgkmcnt({3-it})')
            for tl in range(7):
                c = vr(ACC+4*(it*7+tl), 4)
                a(f'v_mfma_f32_16x16x32_bf16 {c}, {vr(AF+4*it,4)}, {ar(4*(ks*7+tl),4)}, {c if ks else 0}')
    a(f's_mov_b32 s56, {f2u(SCALE):#x}')
    a(f's_lshl_b32 s57, s46, 2\ns_add_u32 s57, s57, s3\ns_mul_i32 s57, s57, {98*KB}\ns_mul_i32 s58, s45, {14*KB}\ns_add_u32 s57, s57, s58')
    if AIMG: a(f's_add_u32 s57, s57, {AIMG}')
    for tl in range(7):
        for Tp in range(2):
            o = 160 + 4 * ((tl*2+Tp) % 8)
            for hf in range(2):
                c = ACC + 4*((2*Tp+hf)*7+tl)
                for i in range(4): a(f'v_mul_f32 v{c+i}, s56, v{c+i}')
                a(f'v_cvt_pk_bf16_f32 v{o+2*hf}, v{c}, v{c+1}\nv_cvt_pk_bf16_f32 v{o+2*hf+1}, v{c+2}, v{c+3}')
            f = tl*2+Tp
            if f and f % 4 == 0: a('s_add_u32 s57, s57, 4096')
            a(f'buffer_store_dwordx4 {vr(o,4)}, v{vL16}, s[{WS}:{WS+3}], s57 offen offset:{(f%4)*1024} {st}')
    a('s_branch K0_TAIL')
    a.label('K0_B')
    srd(a, SB, 14, 4096 * ROW)
    a(f'v_mul_u32_u24 v{vOFF}, {ROW}, v{vX}\nv_lshl_add_u32 v{vOFF}, v{vG}, 4, v{vOFF}')
    a(f's_mul_i32 s53, s46, {256*ROW}\ns_mul_i32 s54, s3, 224\ns_add_u32 s53, s53, s54')
    for et in range(16):
        if et: a(f's_add_u32 s53, s53, {16*ROW}')
        for q in range(4):
            a(f'buffer_load_dwordx4 {ar(4*(et*4+q),4)}, v{vOFF}, s[{SB}:{SB+3}], s53 offen offset:{64*q}')
    a(f'v_lshrrev_b32 v7, 1, v{vG}\nv_lshl_add_u32 v7, v7, 4, v{vX}\nv_lshlrev_b32 v7, 4, v7\nv_and_b32 v11, 1, v{vG}\nv_lshl_add_u32 v11, v11, 3, v7')
    a('s_waitcnt vmcnt(63)\ns_barrier')
    TD = 160
    BF = 216
    for it in range(4): a(f'v_add_u32 v{244+it}, {it*8192}, v11')
    for ks in range(8):
        a(f's_waitcnt vmcnt({56-8*ks})')
        for tl in range(7):
            for ep in range(2):
                a(f'v_mfma_f32_16x16x32_bf16 {vr(TD+4*(tl*2+ep),4)}, {ar(4*((2*ks+ep)*4+(tl>>1)),4)}, {vr(20+4*(tl&1),4)}, 0')
        for it in range(4): a(f'ds_read2_b64 {vr(AF+4*it,4)}, v{244+it} offset0:{ks*128 % 256} offset1:{ks*128 % 256 + 64}')
        if ks % 2 == 1 and ks < 7:
            for it in range(4): a(f'v_add_u32 v{244+it}, 2048, v{244+it}')
        for tl in range(7):
            for ep in range(2):
                c = TD+4*(tl*2+ep)
                a(f'v_cvt_pk_bf16_f32 v{BF+4*tl+2*ep}, v{c}, v{c+1}\nv_cvt_pk_bf16_f32 v{BF+4*tl+2*ep+1}, v{c+2}, v{c+3}')
        a('s_waitcnt lgkmcnt(0)')
        for tl in range(7):
            for it in range(4):
                c = vr(ACC+4*(it*7+tl), 4)
                a(f'v_mfma_f32_16x16x32_bf16 {c}, {vr(AF+4*it,4)}, {vr(BF+4*tl,4)}, {c if ks else 0}')
    a(f's_lshr_b32 s57, s46, 2\ns_mul_i32 s57, s57, {112*KB}\ns_lshl_b32 s58, s45, 14\ns_add_u32 s57, s57, s58')
    a(f's_and_b32 s58, s46, 3\ns_lshl_b32 s58, s58, 12\ns_add_u32 s57, s57, s58\ns_add_u32 s57, s57, {BIMG}\ns_mul_i32 s59, s3, 7')
    for tl in range(7):
        a(f's_add_u32 s60, s59, {tl}\ns_lshr_b32 s61, s60, 1\ns_mul_i32 s61, s61, {4*112*KB}\ns_and_b32 s60, s60, 1\ns_lshl_b32 s60, s60, 11\ns_add_u32 s61, s61, s60\ns_add_u32 s61, s61, s57')
        for Tp in range(2):
            o = 160 + 4 * ((tl*2+Tp) % 8)
            for hf in range(2):
                c = ACC + 4*((2*Tp+hf)*7+tl)
                a(f'v_cvt_pk_bf16_f32 v{o+2*hf}, v{c}, v{c+1}\nv_cvt_pk_bf16_f32 v{o+2*hf+1}, v{c+2}, v{c+3}')
            a(f'buffer_store_dwordx4 {vr(o,4)}, v{vL16}, s[{WS}:{WS+3}], s61 offen offset:{Tp*1024} {st}')
    a('s_branch K0_TAIL')
    a.label('K0_W')
    a('s_sub_u32 s44, s41, 28\ns_lshl_b32 s44, s44, 3\ns_add_u32 s44, s44, s40')
    a('s_cmp_ge_u32 s44, 28\ns_cbranch_scc1 K0_MEM')
    a('s_lshl_b32 s44, s44, 2\ns_add_u32 s44, s44, s3')
    a('s_cmp_ge_u32 s44, 56\ns_cselect_b32 s49, 1, 0\ns_cselect_b32 s50, s18, s16\ns_cselect_b32 s51, s19, s17')
    srd(a, SB, 50, 448 * 3584)
    a(f's_mov_b32 s52, 3584\ns_cselect_b32 s52, {ROW}, s52')
    a('s_sub_u32 s45, s44, 56\ns_mul_i32 s46, s45, 37\ns_lshr_b32 s46, s46, 9\ns_mul_i32 s47, s46, 14\ns_sub_u32 s47, s45, s47')
    a('s_cmp_eq_u32 s49, 1\ns_cselect_b32 s47, s47, s44\ns_cselect_b32 s46, s46, 0')
    a(f's_mul_i32 s53, s46, {448*ROW}\ns_lshl_b32 s54, s47, 6\ns_add_u32 s53, s53, s54\ns_lshl_b32 s55, s52, 4')
    a(f'v_mul_lo_u32 v{vOFF}, s52, v{vX}\nv_lshl_add_u32 v{vOFF}, v{vG}, 4, v{vOFF}')
    for it in range(28):
        if it: a('s_add_u32 s53, s53, s55')
        a(f'buffer_load_dwordx4 {ar(4*it,4)}, v{vOFF}, s[{SB}:{SB+3}], s53 offen')
    D = 32
    for it in range(28):
        a(f's_waitcnt vmcnt({27-it})')
        for hf in range(2):
            a(f'v_mfma_f32_16x16x32_bf16 {vr(D+8*it+4*hf,4)}, {ar(4*it,4)}, {vr(20+4*hf,4)}, 0')
    a('s_cmp_eq_u32 s49, 1\ns_cbranch_scc1 K0_WST')
    for hf in range(2):
        a(f'v_add_f32 v28, v{D+4*hf}, v{D+4*hf+1}\nv_add_f32 v29, v{D+4*hf+2}, v{D+4*hf+3}')
        for it in range(1, 28):
            c = D+8*it+4*hf
            a(f'v_add_f32 v28, v28, v{c}\nv_add_f32 v29, v29, v{c+1}\nv_add_f32 v28, v28, v{c+2}\nv_add_f32 v29, v29, v{c+3}')
        a('v_add_f32 v28, v28, v29')
        cross_rows(a, 28, 29, 'v_add_f32')
        a(f'v_mul_f32 v28, {f2u(1/448):#x}, v28')
        for it in range(28):
            for i in range(4): a(f'v_sub_f32 v{D+8*it+4*hf+i}, v{D+8*it+4*hf+i}, v28')
    a.label('K0_WST')
    a(f's_lshr_b32 s56, s47, 1\ns_mul_i32 s56, s56, {112*KB}\ns_and_b32 s57, s47, 1\ns_lshl_b32 s57, s57, 11\ns_add_u32 s56, s56, s57\ns_add_u32 s56, s56, {FIMG}')
    a('s_cmp_ge_u32 s47, 7\ns_cselect_b32 s60, 7, 0\ns_cselect_b32 s61, 2, 0\ns_sub_u32 s60, s47, s60')
    for hf in range(2):
        a(f's_lshl_b32 s62, s60, 1\ns_add_u32 s62, s62, {hf}\ns_sub_u32 s64, s62, 8\ns_cmp_gt_u32 s60, 3\ns_cselect_b32 s62, s64, s62\ns_cselect_b32 s65, 1, 0')
        a(f's_cmp_eq_u32 s60, 3\ns_cselect_b32 s62, 6, s62\ns_cselect_b32 s65, {hf}, s65\ns_add_u32 s65, s65, s61')
        a(f's_mul_i32 s65, s65, {112*KB}\ns_lshl_b32 s62, s62, 10\ns_add_u32 s65, s65, s62\ns_add_u32 s{58+hf}, s65, {FIMG+56*KB}')
    a('s_mul_i32 s63, s46, 14')
    for T in range(14):
        a(f's_add_u32 s60, s63, {T}\ns_lshr_b32 s61, s60, 3\ns_mul_i32 s61, s61, {4*112*KB}\ns_and_b32 s62, s60, 1\ns_lshl_b32 s62, s62, 2\ns_bfe_u32 s60, s60, 0x20001\ns_add_u32 s60, s60, s62\ns_mul_i32 s60, s60, {7*KB}\ns_add_u32 s61, s61, s60')
        for hf in range(2):
            a(f's_add_u32 s64, s61, s{58+hf}\ns_add_u32 s65, s56, {(T*4+hf)*KB}\ns_cmp_eq_u32 s49, 1\ns_cselect_b32 s64, s64, s65')
            o = 20 + 4*hf
            for p in range(2):
                c = D + 8*(2*T+p) + 4*hf
                a(f'v_cvt_pk_bf16_f32 v{o+2*p}, v{c}, v{c+1}\nv_cvt_pk_bf16_f32 v{o+2*p+1}, v{c+2}, v{c+3}')
            a(f'buffer_store_dwordx4 {vr(o,4)}, v{vL16}, s[{WS}:{WS+3}], s64 offen {st}')
    a('s_branch K0_TAIL')
    a.label('K0_MEM')
    a('s_cmp_lg_u32 s44, 31\ns_cbranch_scc1 K0_TAIL')
    srd(a, SB, 6, MEM_ONE)
    for i in range(7):
        if i == 0:
            a('v_lshrrev_b32 v32, 2, v0\nv_and_b32 v33, 3, v0\nv_bfe_u32 v34, v32, 1, 3\nv_and_b32 v35, 1, v32\nv_lshrrev_b32 v36, 4, v32')
            a(f'v_mul_u32_u24 v37, {ROW}, v34')
            a('v_lshrrev_b32 v38, 1, v36\nv_lshl_add_u32 v37, v38, 6, v37\nv_and_b32 v38, 1, v33\nv_lshl_add_u32 v37, v38, 5, v37')
            a('v_and_b32 v38, 1, v36\nv_lshl_add_u32 v37, v38, 4, v37\nv_lshrrev_b32 v38, 1, v33\nv_lshl_add_u32 v37, v38, 3, v37\nv_lshl_add_u32 v37, v35, 2, v37')
        a(f'buffer_load_dword v{40+i}, v37, s[{SB}:{SB+3}], 0 offen offset:{128*i}')
    a(f'v_bfe_u32 v33, v0, 2, 3\nv_mul_u32_u24 v35, {ROW}, v33\nv_lshrrev_b32 v36, 7, v0\nv_lshl_add_u32 v35, v36, 6, v35\nv_bfe_u32 v36, v0, 1, 1\nv_lshl_add_u32 v35, v36, 5, v35')
    a('v_bfe_u32 v36, v0, 5, 2\nv_lshl_add_u32 v35, v36, 3, v35\nv_and_b32 v36, 1, v0\nv_lshl_add_u32 v35, v36, 2, v35')
    for i in range(7): a(f'buffer_load_dword v{48+i}, v35, s[{SB}:{SB+3}], 0 offen offset:{128*i}')
    a('v_lshlrev_b32 v32, 2, v0\ns_waitcnt vmcnt(0)')
    for i in range(7): a(f'v_min_u32 v{40+i}, -2, v{40+i}\nv_min_u32 v{48+i}, -2, v{48+i}')
    for l in range(6):
        for k in (int(l % 3 == 2),):
            for i in range(7):
                a(f's_mov_b32 s60, {MEMX + l*MEM_ONE + 1024*i}\nbuffer_store_dword v{40+8*k+i}, v32, s[{WS}:{WS+3}], s60 offen {st}')
    a.label('K0_TAIL')
    a(f'v_mov_b32 v20, -1\nv_mov_b32 v21, -1\nv_mov_b32 v22, -1\nv_mov_b32 v23, -1')
    a(f's_lshl_b32 s60, s2, 2\ns_add_u32 s60, s60, s3\ns_mul_i32 s60, s60, {POI_PER_WAVE*KB}\ns_add_u32 s60, s60, {POI0}')
    for i in range(POI_PER_WAVE):
        if i and i % 4 == 0: a('s_add_u32 s60, s60, 4096')
        a(f'buffer_store_dwordx4 v[20:23], v{vL16}, s[{WS}:{WS+3}], s60 offen offset:{(i%4)*1024} {st}')
    a(f's_waitcnt vmcnt({POI_PER_WAVE})')
    a(f's_lshr_b32 s42, s2, 1\ns_mul_i32 s42, s42, {MT}\ns_and_b32 s43, s2, 1\ns_lshl_b32 s43, s43, 7\ns_add_u32 s42, s42, s43\ns_lshl_b32 s43, s3, 5\ns_add_u32 s42, s42, s43')
    a(f's_add_u32 s43, s42, {XR1}\ns_add_u32 s42, s42, {XS1}')
    for t in range(2):
        for i in range(4): a(f'v_min_u32 v{12+4*t+i}, -2, v{12+4*t+i}')
        a(f'buffer_store_dwordx4 {vr(12+4*t,4)}, v10, s[{WS}:{WS+3}], s43 offen offset:{16*t} {st}')
        unpack8(a, 32, 12+4*t)
        layernorm8(a, 32, 40, 9)
        pack8(a, 44+4*t, 32, guard=True)
        a(f'buffer_store_dwordx4 {vr(44+4*t,4)}, v10, s[{WS}:{WS+3}], s42 offen offset:{16*t} {st}')
    if diag:
        a(f's_memrealtime s[82:83]\ns_waitcnt vmcnt(0)\ns_memrealtime s[84:85]\ns_waitcnt lgkmcnt(0)\nv_mov_b32 v20, s80\nv_mov_b32 v21, s82\nv_mov_b32 v22, s84\nv_mov_b32 v23, 0')
        a(f's_lshl_b32 s60, s2, 2\ns_add_u32 s60, s60, s3\ns_lshl_b32 s60, s60, 4\ns_add_u32 s60, s60, {DBG + (1<<20)}\nv_mov_b32 v24, 0\nbuffer_store_dwordx4 v[20:23], v24, s[{WS}:{WS+3}], s60 offen')
    a.label('K0_END')
    a('s_endpgm')
    return khead(NAME) + a.finish() , kdesc(NAME, 512, 256)
if __name__ == '__main__':
    code, desc = gen()
    open('k0.s', 'w').write('.amdgcn_target "amdgcn-amd-amdhsa--gfx950"\n' + code + desc)
```

```python
KB = 1024
ROW = 896
SEGB = 32 * ROW
AIMG = 0;                      AIMG_SZ = 16 * 4 * 98 * KB
BIMG = AIMG + AIMG_SZ;         BIMG_SZ = 14 * 4 * 112 * KB
FIMG = BIMG + BIMG_SZ;         FIMG_SZ = 7 * 4 * 112 * KB
XS1  = FIMG + FIMG_SZ;         XS_SZ = 2048 * ROW
XR1  = XS1 + XS_SZ
VP   = XR1 + XS_SZ;            VP_STEP = 14 * 4 * 8 * KB;  VP_SZ = 128 * VP_STEP
MEMX = VP + VP_SZ;             MEM_ONE = 8 * ROW; MEM_L = 3 * MEM_ONE; MEM_STEP = 2 * MEM_L
POI0 = MEMX + MEM_STEP
XS2  = MEMX + 64 * MEM_STEP
X1   = XS2 + XS_SZ
XR2  = X1 + 2 * XS_SZ
PM   = XR2 + XS_SZ;            PM_STEP = 12 * KB
PP   = PM + 128 * PM_STEP;     PP_HEAD = 2560; PP_STEP = 16 * PP_HEAD
FLG  = PP + 128 * PP_STEP
VF   = FLG;                    FL_STEP = 14 * 128
TKT  = VF + 128 * FL_STEP
RING = TKT + 16 * 128;         RING_J = SEGB; RING_SET = 7 * RING_J; RING_SLOT = 6 * RING_SET
POI1 = RING + RING_SLOT
POI_PER_WAVE = -(-(POI1 - POI0) // (1024 * KB))
WS_USED = max(POI0 + POI_PER_WAVE * 1024 * KB, RING + 3 * RING_SLOT)
DBG = WS_USED
assert WS_USED + (1 << 22) < (1 << 28)

P0 = [0, 4, 7, 11]; SINGLE = [6, 7, 20, 21]
def a_tile(w, tl): return SINGLE[w] if tl == 6 else 2 * (P0[w] + (tl >> 1)) + (tl & 1)
def pi(g, e): return 4 * g + e if e < 4 else 16 + 4 * g + e - 4
def a_frag(T, tl): return ((T >> 1) * 7 + tl) * 2 + (T & 1)
def b_frag(T, u): return ((T >> 1) * 8 + u) * 2 + (T & 1)
def kseq(kp): return 2 * kp if kp < 4 else 2 * (kp - 4) + 1
MT = 14 * KB
SCALE = (1.0 / 16) * 1.4426950408889634
if __name__ == '__main__':
    for k, v in list(globals().items()):
        if isinstance(v, int): print(k, v, hex(v))
```

```python
from common import *
from layout import *
import rec
from rec import WS, sL, sI, sREP, wsr
NAME = 'interleave_layers__memory_aug_recurrent_mem_tr__dense_activation_silu__prompt_kernel'
LDS = 160 * KB
def gen(roles=('RA', 'RB', 'PF', 'PA', 'PB', 'FF'), diag=False):
    a = Asm()
    a('s_cmp_ge_u32 s2, 256\ns_cbranch_scc1 END')
    if diag: a('s_memrealtime s[80:81]')
    a('s_load_dwordx2 s[6:7], s[0:1], 0\ns_load_dwordx4 s[8:11], s[0:1], 80\ns_load_dwordx2 s[4:5], s[0:1], 96')
    a('s_getreg_b32 s19, hwreg(HW_REG_XCC_ID, 0, 4)')
    a('v_and_b32 v1, 63, v0\nv_lshrrev_b32 v2, 6, v0\ns_nop 0\nv_readfirstlane_b32 s3, v2')
    a('s_and_b32 s19, s19, 7\ns_waitcnt lgkmcnt(0)')
    srd(a, WS, 4, 1 << 28)
    a('s_cmp_lg_u32 s3, 0\ns_cbranch_scc1 TK_WAIT')
    a(f's_lshl_b32 s20, s19, 7\ns_add_u32 s20, s20, {TKT}\nv_mov_b32 v2, 1\nv_mov_b32 v3, 0\ns_mov_b64 exec, 1')
    a(f'buffer_atomic_add v2, v3, {wsr()}, s20 offen sc0\ns_waitcnt vmcnt(0)\nds_write_b32 v3, v2\ns_waitcnt lgkmcnt(0)\ns_mov_b64 exec, -1')
    a.label('TK_WAIT')
    a('s_barrier\nv_mov_b32 v3, 0\nds_read_b32 v2, v3\ns_waitcnt lgkmcnt(0)\nv_readfirstlane_b32 s20, v2\ns_barrier')
    if diag: a('s_memrealtime s[82:83]\ns_waitcnt lgkmcnt(0)')
    a('s_add_u32 s20, s20, 1\ns_cmp_ge_u32 s20, 32\ns_cbranch_scc1 END')
    tgt = lambda r: r if r in roles else 'END'
    a('s_cmp_ge_u32 s19, 2\ns_cbranch_scc1 NOT_R')
    a(f's_mov_b32 s{sL}, s19\ns_mov_b32 s{sI}, s20\ns_cmp_lt_u32 s20, 16\ns_cbranch_scc1 {tgt("RA")}')
    a(f's_sub_u32 s{sI}, s20, 16\ns_cmp_lt_u32 s20, 30\ns_cbranch_scc1 {tgt("RB")}\ns_sub_u32 s{sI}, s20, 30\ns_branch {tgt("PF")}')
    a.label('NOT_R')
    a('s_cmp_ge_u32 s19, 4\ns_cbranch_scc1 NOT_PA')
    a(f's_and_b32 s{sI}, s20, 7\ns_and_b32 s21, s19, 1\ns_lshl_b32 s21, s21, 3\ns_add_u32 s{sI}, s{sI}, s21\ns_lshr_b32 s{sL}, s20, 4\ns_bfe_u32 s{sREP}, s20, 0x10003\ns_branch {tgt("PA")}')
    a.label('NOT_PA')
    a('s_and_b32 s21, s19, 1\ns_cmp_ge_u32 s19, 6\ns_cbranch_scc1 PB_HI')
    a('s_cmp_ge_u32 s20, 21\ns_cbranch_scc1 PB_LO')
    a(f's_mov_b32 s{sL}, s21\ns_mul_i32 s{sREP}, s20, 37\ns_lshr_b32 s{sREP}, s{sREP}, 8\ns_mul_i32 s22, s{sREP}, 7\ns_sub_u32 s{sI}, s20, s22\ns_branch {tgt("FF")}')
    a.label('PB_LO')
    a(f's_mov_b32 s{sL}, s21\ns_mov_b32 s{sI}, 7\ns_mov_b32 s{sREP}, 0\ns_cmp_ge_u32 s20, 31\ns_cbranch_scc1 {tgt("FF")}\ns_mul_i32 s21, s21, 10\ns_add_u32 s21, s21, 43\ns_add_u32 s21, s21, s20\ns_branch PB_IDX')
    a.label('PB_HI')
    a('s_lshl_b32 s21, s21, 5\ns_add_u32 s21, s21, s20')
    a.label('PB_IDX')
    a(f's_mul_i32 s{sI}, s21, 43\ns_lshr_b32 s{sI}, s{sI}, 8\ns_mul_i32 s22, s{sI}, 6\ns_sub_u32 s22, s21, s22')
    a(f's_cmp_ge_u32 s22, 3\ns_cselect_b32 s{sL}, 1, 0\ns_mul_i32 s23, s{sL}, 3\ns_sub_u32 s{sREP}, s22, s23\ns_branch {tgt("PB")}')
    a.label('FAIL')
    a('s_mov_b32 s96, s10\ns_mov_b32 s97, s11\ns_mov_b32 s94, s99\ns_mov_b32 s98, 256\ns_mov_b32 s99, 0x20000')
    a(f's_lshl_b32 s95, s94, 2\nv_mov_b32 v2, s95\nv_mov_b32 v3, s2\nv_add_u32 v3, 1, v3\nbuffer_store_dword v3, v2, s[96:99], 0 offen')
    a.label('END')
    a('s_endpgm')
    if 'RA' in roles: rec.gen_RA(a, diag)
    if 'RB' in roles: rec.gen_RB(a, diag)
    if 'PF' in roles: rec.gen_PF(a, diag)
    if set(roles) & {'PA', 'PB', 'FF'}:
        import par
        if 'PA' in roles: par.gen_PA(a, diag)
        if 'PB' in roles: par.gen_PB(a, diag)
        if 'FF' in roles: par.gen_FF(a, diag)
    return khead(NAME) + a.finish(), kdesc(NAME, 512, 256)
def full(roles=('RA', 'RB', 'PF', 'PA', 'PB', 'FF'), diag=False, header=''):
    import k0
    c0, d0 = k0.gen(diag=diag); c1, d1 = gen(roles, diag)
    return (header + f'; @launch kernel={k0.NAME} grid=(256,1,1) block=(256,1,1) lds={k0.LDS}\n'
            f'; @launch kernel={NAME} grid=(256,1,1) block=(256,1,1) lds={LDS}\n'
            '.amdgcn_target "amdgcn-amd-amdhsa--gfx950"\n' + c0 + c1 + d0 + d1)
if __name__ == '__main__':
    import sys
    open('m.s', 'w').write(full(tuple(sys.argv[1].split(',')), True))
```

```python
from common import *
from layout import *
from lsched import schedule
from asmlib import regs_of
from rec import WS, sL, sI, sREP, wsr, wreg, load_weights, allset, guard, stamp, dump, OPT, wstamp
MF = 'v_mfma_f32_16x16x32_bf16'; MH = 'v_mfma_f32_16x16x16_bf16'; SM = 'v_smfmac_f32_16x16x64_bf16'
def emit(a, ops, name=None, **kw):
    out, vm, lg = schedule(ops, **kw)
    if name: print(name, 'estimate', schedule.cycles)
    for l in out: a(l)
    return vm, lg
def cvt(d, c): return [f'v_cvt_pk_bf16_f32 v{d}, v{c}, v{c+1}', f'v_cvt_pk_bf16_f32 v{d+1}, v{c+2}, v{c+3}']
def spin(a, tag, loads, regs, vt, sC, code, sleep=2, first_issued=False, nafter=0):
    a(f's_mov_b32 s{sC}, 0')
    if first_issued:
        a(f's_waitcnt vmcnt({nafter})'); allset(a, vt, regs); a(f's_cbranch_vccz {tag}_OK')
    a.label(f'{tag}_L')
    for l in loads: a(l)
    guard(a, sC, code)
    a('s_waitcnt vmcnt(0)'); allset(a, vt, regs); a(f's_cbranch_vccz {tag}_OK')
    if sleep: a(f's_sleep {sleep}')
    a(f's_branch {tag}_L')
    a.label(f'{tag}_OK')
def seg_loads(quads, vL16, sA, sB):
    return [f'buffer_load_dwordx4 {vr(q,4)}, v{vL16}, {wsr()}, s{sA if i < 4 else sB} offen offset:{1024*(i%4)} sc1' for i, q in enumerate(quads)]
def qregs(quads): return [q + i for q in quads for i in range(4)]

def gen_PA(a, diag=False):
    vL16, vXW, vt, vK, vK1, vMK, vMK1, vSW, vSR, vPA, vPC = 2, 3, 4, 5, 6, 7, 8, 9, 10, 11, 0
    ACC, XF, SA, KF = 12, 68, 84, 104
    RED = SEGB
    sXS, sMEM, sPP, sS, sC, sA, sB, sQ = 21, 22, 23, 24, 25, 26, 27, 28
    MK = 30
    a.label('PA')
    a(f'v_lshlrev_b32 v{vL16}, 4, v1')
    a(f's_lshl_b32 s20, s{sI}, 2\ns_add_u32 s20, s20, s3\ns_mul_i32 s20, s20, {98*KB}')
    if AIMG: a(f's_add_u32 s20, s20, {AIMG}')
    load_weights(a, 20, 98, vL16); wstamp(a, diag)
    a(f's_mul_i32 s29, s3, 7168\nv_add_u32 v{vXW}, s29, v{vL16}')
    a(f'v_bfe_u32 v{vt}, v1, 1, 3\nv_lshlrev_b32 v{vMK}, 4, v{vt}\nv_lshrrev_b32 v{vt}, 4, v1\nv_lshl_add_u32 v{vMK}, v{vt}, 7, v{vMK}')
    a('s_lshr_b32 s27, s3, 1\ns_mul_i32 s27, s27, 7\ns_add_u32 s27, s27, 3\ns_and_b32 s28, s3, 1\ns_lshl_b32 s28, s28, 3')
    a(f's_lshl_b32 s38, s27, 10\ns_add_u32 s38, s38, s28\nv_add_u32 v{vK1}, s38, v{vL16}\ns_lshl_b32 s38, s27, 9\ns_add_u32 s38, s38, s28\nv_add_u32 v{vMK1}, s38, v{vMK}')
    a('s_mul_i32 s27, s3, 7\ns_add_u32 s27, s27, 1\ns_lshr_b32 s27, s27, 1\ns_lshl_b32 s28, s27, 10\ns_lshl_b32 s27, s27, 9')
    a(f'v_add_u32 v{vK}, s28, v{vL16}\nv_add_u32 v{vMK}, s27, v{vMK}')
    a(f's_mul_i32 s27, s3, 5120\ns_add_u32 s27, s27, {RED}\nv_add_u32 v{vSW}, s27, v{vL16}')
    T0, T1, T2 = ACC, ACC+1, ACC+2
    a(f's_and_b32 s27, s3, 1\ns_lshl_b32 s27, s27, 3\nv_and_b32 v{T0}, 7, v1\nv_add_u32 v{T0}, s27, v{T0}')
    a(f'v_lshrrev_b32 v{T1}, 4, v1\nv_lshl_add_u32 v{vPA}, v{T1}, 4, v{T0}\nv_lshlrev_b32 v{vPC}, 3, v{vPA}\nv_lshlrev_b32 v{vPA}, 4, v{vPA}')
    a(f'v_bfe_u32 v{T2}, v1, 3, 1\nv_lshl_add_u32 v{vSR}, v{T2}, 3, v{vPA}')
    a(f's_lshr_b32 s{sQ}, s3, 1\ns_lshl_b32 s27, s{sQ}, 10\ns_add_u32 s27, s27, {RED}\nv_add_u32 v{vSR}, s27, v{vSR}')
    a(f'v_lshlrev_b32 v{T1}, 2, v{T1}\nv_lshl_add_u32 v{T1}, v{T2}, 1, v{T1}\ns_lshl_b32 s27, s{sQ}, 4\nv_add_u32 v{T0}, s27, v{T0}')
    for k in range(4):
        a(f'v_add_u32 v{T2}, {16*(k>>1) + (k&1)}, v{T1}\nv_cmp_gt_u32 s[{MK+2*k}:{MK+2*k+1}], v{T2}, v{T0}')
    a(f'v_add_u32 v{vPC}, 2048, v{vPC}\ns_cmp_eq_u32 s{sQ}, 0\ns_cselect_b32 s27, 1024, 0\nv_add_u32 v{vPA}, s27, v{vPA}')
    a(f's_mov_b32 s{sXS}, {XS1}\ns_cmp_eq_u32 s{sL}, 1\ns_cselect_b32 s{sXS}, {XS2}, s{sXS}\ns_mul_i32 s27, s{sREP}, {SEGB}\ns_add_u32 s{sXS}, s{sXS}, s27\ns_add_u32 s{sXS}, s{sXS}, s29')
    a(f's_mul_i32 s{sMEM}, s{sL}, {MEM_L}\ns_mul_i32 s27, s{sREP}, {MEM_STEP}\ns_add_u32 s{sMEM}, s{sMEM}, s27\ns_add_u32 s{sMEM}, s{sMEM}, {MEMX+2*MEM_ONE}')
    a(f's_lshl_b32 s27, s{sL}, 6\ns_add_u32 s27, s27, s{sREP}\ns_mul_i32 s{sPP}, s27, {PP_STEP}\ns_mul_i32 s27, s{sI}, {PP_HEAD}\ns_add_u32 s{sPP}, s{sPP}, s27\ns_add_u32 s{sPP}, s{sPP}, {PP}')
    a(f's_mov_b32 s{sS}, s{sREP}\ns_mov_b32 s39, 0xf149f2ca')
    acc = lambda tl, mt: ACC + 8*tl + 4*mt
    STG = [acc(1,0), acc(1,1), acc(3,0), acc(3,1), acc(5,0), acc(5,1), XF]
    xl = seg_loads(STG, vL16, sXS, sB)
    a(f's_add_u32 s{sB}, s{sXS}, 4096')
    for l in xl: a(l)
    a.label('PA_TASK')
    spin(a, 'PA_X', xl, qregs(STG), vt, sC, 8, first_issued=True)
    for i, q in enumerate(STG): a(f'ds_write_b128 v{vXW}, {vr(q,4)} offset:{1024*i}')
    a('s_waitcnt lgkmcnt(0)\ns_barrier')
    stamp(a, 0, diag)
    ops = []
    for T in range(14):
        for mt in range(2): ops.append(f'ds_read_b128 {vr(XF+8*(T&1)+4*mt,4)}, v{vL16} offset:{mt*MT+T*1024}')
        for mt in range(2):
            for tl in range(7):
                c = vr(acc(tl, mt), 4)
                ops.append(f'{MF} {c}, {wreg(a_frag(T, tl))}, {vr(XF+8*(T&1)+4*mt,4)}, {c if T else 0}')
    for tl in range(7):
        for mt in range(2): ops += cvt(acc(tl & ~1, mt) + 2*(tl & 1), acc(tl, mt))
    ut = lambda p, mt: acc(2*p, mt)
    n = 0
    for p in range(4):
        for kt in range(2):
            kf = KF + 4*(n % 3); n += 1
            ops.append(f'ds_read_b128 {vr(kf,4)}, v{vK} offset:{kt*MT+1024*p}' if p < 3 else f'ds_read_b64 {vr(kf,2)}, v{vK1} offset:{kt*MT}')
            for mt in range(kt, 2):
                c = vr(SA + 4*(kt+mt), 4)
                ops.append(f'{MF} {c}, {vr(kf,4)}, {vr(ut(p,mt),4)}, {c if p else 0}' if p < 3 else f'{MH} {c}, {vr(kf,2)}, {vr(ut(3,mt),2)}, {c}')
    emit(a, ops, 'PA gemm', L=dict(ds=100))
    stamp(a, 1, diag)
    ml = [f'buffer_load_dwordx4 {vr(KF+4*p,4)}, v{vMK}, {wsr()}, s{sMEM} offen offset:{512*p} sc1' for p in range(3)] + \
         [f'buffer_load_dwordx2 {vr(KF+12,2)}, v{vMK1}, {wsr()}, s{sMEM} offen sc1']
    a(f's_add_u32 s{sS}, s{sS}, 2\ns_cmp_lt_u32 s{sS}, 64\ns_cselect_b32 s38, {2*SEGB}, 0\ns_add_u32 s{sXS}, s{sXS}, s38\ns_add_u32 s{sB}, s{sXS}, 4096')
    for l in ml: a(l)
    for l in xl: a(l)
    spin(a, 'PA_M', ml, range(KF, KF+14), vt, sC, 9, first_issued=True, nafter=7)
    stamp(a, 2, diag)
    for p in range(4):
        for mt in range(2):
            c = vr(SA + 4*(3+mt), 4)
            a(f'{MF} {c}, {vr(KF+4*p,4)}, {vr(ut(p,mt),4)}, {c if p else 0}' if p < 3 else f'{MH} {c}, {vr(KF+12,2)}, {vr(ut(3,mt),2)}, {c}')
        if p < 3: a(f'ds_write_b128 v{vSW}, {vr(SA+4*p,4)} offset:{1024*p}')
    for k in (3, 4): a(f'ds_write_b128 v{vSW}, {vr(SA+4*k,4)} offset:{1024*k}')
    a('s_waitcnt lgkmcnt(0)\ns_barrier')
    R = SA
    for k, tile in enumerate((0, 1, 3)):
        for pp in range(2): a(f'ds_read2st64_b64 {vr(R+8*k+4*pp,4)}, v{vSR} offset0:{2*tile+20*pp} offset1:{2*tile+20*pp+10}')
    for k in range(3):
        b = R+8*k
        a(f's_waitcnt lgkmcnt({4-2*k})')
        a(f'v_pk_add_f32 {vr(b,2)}, {vr(b,2)}, {vr(b+2,2)}\nv_pk_add_f32 {vr(b+4,2)}, {vr(b+4,2)}, {vr(b+6,2)}\nv_pk_add_f32 {vr(b,2)}, {vr(b,2)}, {vr(b+4,2)}')
    x = [R, R+1, R+8, R+9, R+16, R+17]; m, t = R+2, R+3
    a(f'v_mov_b32 v{t}, s39')
    for k in range(4): a(f'v_cndmask_b32 v{x[k]}, v{x[k]}, v{t}, s[{MK+2*k}:{MK+2*k+1}]')
    a(f'v_max3_f32 v{m}, v{x[0]}, v{x[1]}, v{x[2]}\nv_max3_f32 v{t}, v{x[3]}, v{x[4]}, v{x[5]}\nv_max_f32 v{m}, v{m}, v{t}')
    a(f'v_max_f32_dpp v{m}, v{m}, v{m} row_ror:8 row_mask:0xf bank_mask:0xf')
    cross_rows(a, m, t, 'v_max_f32')
    for k in range(3): a(f'v_pk_add_f32 {vr(x[2*k],2)}, {vr(x[2*k],2)}, {vr(m,2)} op_sel_hi:[1,0] neg_lo:[0,1] neg_hi:[0,1]')
    for i in (4, 5, 0, 1, 2, 3): a(f'v_exp_f32 v{x[i]}, v{x[i]}')
    a(f'v_add_f32 v{m}, v{x[4]}, v{x[5]}\nv_add_f32 v{t}, v{x[0]}, v{x[1]}\nv_fma_f32 v{m}, v{m}, 0.5, v{x[2]}\nv_add_f32 v{t}, v{t}, v{x[3]}\nv_add_f32 v{m}, v{m}, v{t}')
    a(f'v_add_f32_dpp v{m}, v{m}, v{m} row_ror:8 row_mask:0xf bank_mask:0xf')
    cross_rows(a, m, t, 'v_add_f32')
    a(f'v_rcp_f32 v{m}, v{m}')
    for k in range(3): a(f'v_pk_mul_f32 {vr(x[2*k],2)}, {vr(x[2*k],2)}, {vr(m,2)} op_sel_hi:[1,0]')
    o = R+4
    for k, d in enumerate((o, o+2, o+8)): a(f'v_cvt_pk_bf16_f32 v{d}, v{x[2*k]}, v{x[2*k+1]}')
    for d in (o, o+2, o+8): a(f'v_mov_b32_dpp v{d+1}, v{d} row_ror:8 row_mask:0xf bank_mask:0xf')
    a('s_mov_b32 exec_lo, 0x00ff00ff\ns_mov_b32 exec_hi, 0x00ff00ff')
    a(f's_cmp_eq_u32 s{sQ}, 0\ns_cbranch_scc1 PA_Q0')
    a(f'buffer_store_dwordx4 {vr(o,4)}, v{vPA}, {wsr()}, s{sPP} offen sc1\nbuffer_store_dwordx2 {vr(o+8,2)}, v{vPC}, {wsr()}, s{sPP} offen sc1')
    a('s_branch PA_STD')
    a.label('PA_Q0')
    a(f's_bitcmp1_b32 s{sI}, 0\ns_cbranch_scc1 PA_Q0ODD')
    a(f'v_mov_b32 v{o+2}, v{o+8}\nv_mov_b32 v{o+3}, v{o+9}\nbuffer_store_dwordx4 {vr(o,4)}, v{vPA}, {wsr()}, s{sPP} offen sc1\ns_branch PA_STD')
    a.label('PA_Q0ODD')
    a(f'v_mov_b32 v{o+10}, v{o}\nv_mov_b32 v{o+11}, v{o+1}\nbuffer_store_dwordx4 {vr(o+8,4)}, v{vPA}, {wsr()}, s{sPP} offen sc1')
    a.label('PA_STD')
    a('s_mov_b64 exec, -1')
    if diag: stamp(a, 3, diag); a(f's_sub_u32 s59, s{sS}, 2'); dump(a, diag, 2, 59, m, vt)
    a(f's_add_u32 s{sMEM}, s{sMEM}, {2*MEM_STEP}\ns_add_u32 s{sPP}, s{sPP}, {2*PP_STEP}\ns_cmp_lt_u32 s{sS}, 64\ns_cbranch_scc1 PA_TASK\ns_endpgm')

def gen_PB(a, diag=False):
    vL16, vXW, vt, vIDX, vWL, vVW, vVR, vL8, vZ = 2, 3, 4, 5, 6, 7, 8, 9, 10
    XB, WL, VB = 0, 28*KB, 84*KB
    sXS, sB, sVP, sFL, sS, sC, sMEM, sPP, sXR, sX1, sPRE, sT, sT2 = 21, 22, 23, 24, 25, 26, 27, 28, 29, 30, 31, 32, 33
    a.label('PB')
    a(f'v_lshlrev_b32 v{vL16}, 4, v1\nv_lshlrev_b32 v{vL8}, 3, v1\nv_mov_b32 v{vZ}, 0')
    a(f'v_and_b32 v{vt}, 1, v1\nv_cmp_eq_u32 vcc, 0, v{vt}\nv_mov_b32 v{vIDX}, 0xeeee\nv_mov_b32 v{vt}, 0x4444\nv_cndmask_b32 v{vIDX}, v{vIDX}, v{vt}, vcc')
    a(f's_lshl_b32 s34, s{sI}, 2\ns_add_u32 s34, s34, s3\ns_mul_i32 s20, s34, {112*KB}\ns_add_u32 s20, s20, {BIMG}')
    a(f's_mul_i32 s35, s3, {14*KB}\ns_add_u32 s35, s35, {WL}\nv_add_u32 v{vWL}, s35, v{vL16}')
    load_weights(a, 20, 98, vL16, 14, 35); wstamp(a, diag)
    a(f's_mul_i32 s36, s3, 7168\ns_add_u32 s37, s36, {XB}\nv_add_u32 v{vXW}, s37, v{vL16}')
    a(f's_lshl_b32 s37, s3, 13\ns_add_u32 s37, s37, {VB}\nv_add_u32 v{vVW}, s37, v{vL16}')
    a(f's_lshl_b32 s37, s3, 10\ns_add_u32 s37, s37, {VB}\nv_add_u32 v{vVR}, s37, v{vL16}')
    a(f's_lshl_b32 s38, s{sL}, 6\ns_add_u32 s38, s38, s{sREP}')
    a(f's_mov_b32 s{sXS}, {XS1}\ns_cmp_eq_u32 s{sL}, 1\ns_cselect_b32 s{sXS}, {XS2}, s{sXS}\ns_mov_b32 s{sXR}, {XR1}\ns_cselect_b32 s{sXR}, {XR2}, s{sXR}')
    a(f's_mul_i32 s37, s{sREP}, {SEGB}\ns_add_u32 s{sXS}, s{sXS}, s37\ns_add_u32 s{sXS}, s{sXS}, s36')
    a(f's_mul_i32 s39, s3, {MT}\ns_lshl_b32 s40, s{sI}, 10\ns_add_u32 s39, s39, s40\ns_add_u32 s{sXR}, s{sXR}, s37\ns_add_u32 s{sXR}, s{sXR}, s39')
    a(f's_mul_i32 s{sX1}, s38, {SEGB}\ns_add_u32 s{sX1}, s{sX1}, s39\ns_add_u32 s{sX1}, s{sX1}, {X1}')
    a(f's_mul_i32 s{sVP}, s38, {VP_STEP}\ns_lshl_b32 s37, s34, 13\ns_add_u32 s{sVP}, s{sVP}, s37\ns_add_u32 s{sVP}, s{sVP}, {VP}')
    a(f's_mul_i32 s{sFL}, s38, {FL_STEP}\ns_lshl_b32 s37, s{sI}, 7\ns_add_u32 s{sFL}, s{sFL}, s37\ns_lshl_b32 s37, s3, 2\ns_add_u32 s{sFL}, s{sFL}, s37\ns_add_u32 s{sFL}, s{sFL}, {VF}')
    a(f's_mul_i32 s{sMEM}, s{sL}, {MEM_L}\ns_mul_i32 s37, s{sREP}, {MEM_STEP}\ns_add_u32 s{sMEM}, s{sMEM}, s37\ns_add_u32 s{sMEM}, s{sMEM}, {MEMX+MEM_ONE}')
    a(f's_mul_i32 s{sPP}, s38, {PP_STEP}\ns_mul_i32 s37, s3, {4*PP_HEAD}\ns_add_u32 s{sPP}, s{sPP}, s37\ns_add_u32 s{sPP}, s{sPP}, {PP}')
    a(f's_mov_b32 s{sS}, s{sREP}\ns_mov_b32 s41, 32768\ns_waitcnt vmcnt(0)')
    XF, WSt, ACC, PK = 12, 28, 40, 72
    STG = [12+4*i for i in range(7)]
    def xdma():
        a(f's_add_u32 s{sB}, s{sXS}, 4096\ns_mov_b32 m0, s36')
        for i in range(7):
            if i == 4: a('s_add_u32 m0, s36, 4096')
            a(f'buffer_load_dwordx4 v{vL16}, {wsr()}, s{sXS if i < 4 else sB} offen offset:{1024*(i%4)} sc1 lds')
    xdma()
    a.label('PB_PRE')
    a('s_waitcnt vmcnt(0)')
    for i, q in enumerate(STG): a(f'ds_read_b128 {vr(q,4)}, v{vXW} offset:{1024*i}')
    a(f's_add_u32 s{sT}, s{sVP}, 4096\ns_waitcnt lgkmcnt(0)')
    allset(a, vt, qregs(STG))
    a('s_cbranch_vccz PB_XOK')
    spin(a, 'PB_X', seg_loads(STG, vL16, sXS, sB), qregs(STG), vt, sC, 10, sleep=1)
    for i, q in enumerate(STG): a(f'ds_write_b128 v{vXW}, {vr(q,4)} offset:{1024*i}')
    a('s_waitcnt lgkmcnt(0)')
    a.label('PB_XOK')
    a('s_barrier')
    stamp(a, 0, diag)
    ops = []; n = 0
    for be in range(2):
        for T in range(14):
            for mt in range(2): ops.append(f'ds_read_b128 {vr(XF+8*(T&1)+4*mt,4)}, v{vL16} offset:{XB+mt*MT+T*1024}')
            for uu in range(4):
                f = b_frag(T, 4*be+uu)
                if f < 98: w = wreg(f)
                else:
                    w = vr(WSt+4*(n % 3), 4); n += 1
                    ops.append(f'ds_read_b128 {w}, v{vWL} offset:{(f-98)*1024}')
                for mt in range(2):
                    c = vr(ACC+8*uu+4*mt, 4)
                    ops.append(f'{MF} {c}, {vr(XF+8*(T&1)+4*mt,4)}, {w}, {c if T else 0}')
        for uu in range(4):
            ph, nt = uu >> 1, uu & 1; i = nt*2+ph; d = PK+4*i
            ops += cvt(d, ACC+8*uu) + cvt(d+2, ACC+8*uu+4)
            ops.append(f'buffer_store_dwordx4 {vr(d,4)}, v{vL16}, {wsr()}, s{sT if be else sVP} offen offset:{1024*i} sc1')
            ops.append(f'ds_write_b128 v{vVW}, {vr(d,4)} offset:{4096*be+1024*i}')
    emit(a, ops, 'PB gemm', L=dict(ds=100))
    stamp(a, 1, diag)
    a(f's_mov_b32 s{sPRE}, 1\nv_add_u32 v{vVW}, s41, v{vVW}\ns_sub_u32 s41, 0, s41')
    a(f's_add_u32 s{sS}, s{sS}, 3\ns_add_u32 s{sXS}, s{sXS}, {3*SEGB}\ns_add_u32 s{sVP}, s{sVP}, {3*VP_STEP}')
    a(f's_cmp_lt_u32 s{sS}, 64\ns_cselect_b32 s{sT}, 0, {3*SEGB}\ns_sub_u32 s{sXS}, s{sXS}, s{sT}\ns_waitcnt lgkmcnt(0)\ns_barrier')
    xdma()
    a(f's_sub_u32 s{sT}, s{sS}, s{sREP}\ns_cmp_gt_u32 s{sT}, 3\ns_cbranch_scc1 PB_POST')
    a(f's_waitcnt vmcnt(7)\nbuffer_store_dword v{vZ}, v{vZ}, {wsr()}, s{sFL} offen sc1\ns_add_u32 s{sFL}, s{sFL}, {3*FL_STEP}\ns_branch PB_PRE')
    ME, WA, WS8, PQ = 12, 40, 72, 80
    a.label('PB_POST')
    a(f's_add_u32 s{sT}, s{sMEM}, 4096\ns_add_u32 s{sT2}, s{sPP}, {2*PP_HEAD}')
    ml = seg_loads([ME+4*i for i in range(7)], vL16, sMEM, sT)
    pA = lambda hh: PQ + 4*hh; pB = lambda hh: PQ + 16 + 4*hh; pC = lambda hh: PQ + 32 + 2*hh
    pl = []
    for hh in range(4):
        sb = sPP if hh < 2 else sT2; o = (hh & 1)*PP_HEAD
        if hh & 1:
            pl.append(f's_add_u32 s42, s{sb}, {PP_HEAD}'); sb = 42
        pl += [f'buffer_load_dwordx4 {vr(pA(hh),4)}, v{vL16}, {wsr()}, s{sb} offen sc1', f'buffer_load_dwordx4 {vr(pB(hh),4)}, v{vL16}, {wsr()}, s{sb} offen offset:1024 sc1',
               f'buffer_load_dwordx2 {vr(pC(hh),2)}, v{vL8}, {wsr()}, s{sb} offen offset:2048 sc1']
    for l in ml + pl: a(l)
    a(f's_cmp_eq_u32 s{sPRE}, 0\ns_cbranch_scc1 PB_NOFL')
    a(f's_waitcnt vmcnt(26)\nbuffer_store_dword v{vZ}, v{vZ}, {wsr()}, s{sFL} offen sc1\ns_add_u32 s{sFL}, s{sFL}, {3*FL_STEP}')
    a.label('PB_NOFL')
    for i in range(32): a(f'v_mov_b32 v{WA+i}, 0')
    spin(a, 'PB_M', ml, range(ME, ME+28), vt, sC, 11, first_issued=True, nafter=12)
    stamp(a, 2, diag)
    WK = ME; OUT = [28, 32, 36, 72]; VS = WA; RS = 76
    ops = []
    for b in range(7):
        for u in range(8):
            f = (b*8+u)*2
            if f < 98: w = wreg(f, 8)
            else:
                w = vr(WS8, 8)
                ops += [f'ds_read_b128 {vr(WS8,4)}, v{vWL} offset:{(f-98)*1024}', f'ds_read_b128 {vr(WS8+4,4)}, v{vWL} offset:{(f-97)*1024}']
            ops.append(f'{SM} {vr(WA+4*u,4)}, {vr(ME+4*b,4)}, {w}, v{vIDX}')
    lead = [o for o in ops if 'ds_read' in o or vr(WS8, 8) in o]; rest = [o for o in ops if o not in lead]
    mixed = []
    for i in range(7): mixed += lead[3*i:3*i+3] + rest[7*i:7*i+7]
    ops = mixed
    for u in range(8): ops += cvt(WK+8*(u & 1)+2*(u >> 1), WA+4*u)
    for i in range(8): ops.append(f'ds_read_b128 {vr(VS+4*i,4)}, v{vVW} offset:{1024*i}')
    emit(a, ops, 'PB w', L=dict(ds=100))
    a(f'buffer_load_dwordx4 {vr(RS,4)}, v{vL16}, {wsr()}, s{sXR} offen sc1')
    spin(a, 'PB_P', pl, range(PQ, PQ+40), vt, sC, 12, first_issued=True, nafter=1)
    stamp(a, 3, diag)
    a('s_waitcnt lgkmcnt(0)')
    ops = []
    for nt in range(2):
        for mt in range(2):
            c = vr(OUT[nt*2+mt], 4); first = True
            for be in range(2):
                pm = vr(pC(2*be), 4) if mt else vr(pB(2*be)+2, 4)
                ops.append(f'{MF} {c}, {vr(WK+8*nt+4*be,4)}, {pm}, {0 if first else c}'); first = False
                for ph in range(2):
                    hh = 2*be+ph; v = VS+4*((be*2+nt)*2+ph)
                    if mt: ops.append(f'{MF} {c}, {vr(v,4)}, {vr(pA(hh),4)}, {c}')
                    else: ops.append(f'{MH} {c}, {vr(v,2)}, {vr(pB(hh)+2*ph,2)}, {c}')
    for k in range(4): ops.append(f'ds_write_b128 v{vVW}, {vr(OUT[k],4)} offset:{1024*k}')
    emit(a, ops, 'PB post')
    a('s_waitcnt lgkmcnt(0)\ns_barrier')
    a('s_cmp_ge_u32 s3, 2\ns_cbranch_scc1 PB_NEXT')
    a(f's_max_i32 s42, s41, 0\ns_sub_u32 s42, 32768, s42\nv_add_u32 v{vt}, s42, v{vVR}')
    F = 40
    for p in range(4):
        for nt in range(2): a(f'ds_read_b128 {vr(F+8*p+4*nt,4)}, v{vt} offset:{8192*p+2048*nt}')
    a(f's_mov_b32 s{sC}, 0')
    a.label('PB_R')
    a(f's_waitcnt vmcnt(0)'); allset(a, vt, range(RS, RS+4)); a('s_cbranch_vccz PB_ROK')
    a(f'buffer_load_dwordx4 {vr(RS,4)}, v{vL16}, {wsr()}, s{sXR} offen sc1'); guard(a, sC, 13); a('s_branch PB_R')
    a.label('PB_ROK')
    unpack8(a, 12, RS)
    for p in range(4):
        a(f's_waitcnt lgkmcnt({6-2*p})')
        for i in range(4): a(f'v_pk_add_f32 {vr(12+2*i,2)}, {vr(12+2*i,2)}, {vr(F+8*p+2*i,2)}')
    pack8(a, 20, 12)
    a(f'buffer_store_dwordx4 v[20:23], v{vL16}, {wsr()}, s{sX1} offen sc1')
    if diag: stamp(a, 4, diag); a(f's_sub_u32 s59, s{sS}, 6\ns_and_b32 s59, s59, 63'); dump(a, diag, 3, 59, 24, vt)
    a.label('PB_NEXT')
    a(f's_add_u32 s{sMEM}, s{sMEM}, {3*MEM_STEP}\ns_add_u32 s{sPP}, s{sPP}, {3*PP_STEP}\ns_add_u32 s{sXR}, s{sXR}, {3*SEGB}\ns_add_u32 s{sX1}, s{sX1}, {3*SEGB}')
    a(f's_cmp_lt_u32 s{sS}, 64\ns_cbranch_scc1 PB_PRE')
    a(f's_cmp_eq_u32 s{sPRE}, 0\ns_cbranch_scc1 END')
    a(f's_mov_b32 s{sPRE}, 0\nv_add_u32 v{vVW}, s41, v{vVW}\ns_sub_u32 s41, 0, s41\ns_add_u32 s{sS}, s{sS}, 3\ns_waitcnt vmcnt(0)\ns_barrier\ns_branch PB_POST')

def gen_FF(a, diag=False):
    vL16, vXW, vt, vWL, vHW, vHR, vRO, vR0, vR1, vMK, vO = 2, 3, 4, 5, 6, 7, 8, 9, 10, 11, 0
    XB, WL, HB, STB = 0, 28*KB, 84*KB, 100*KB
    sX1, sB, sS, sC, sRW, sRR, sOUT, sT, sT2, sXO = 21, 22, 23, 24, 25, 26, 27, 28, 29, 30
    OS = 44
    XF, WSt, B1, TM, AC2 = 12, 28, 40, 56, 64
    a.label('FF')
    srd(a, OS, 8, XS_SZ)
    a(f'v_lshlrev_b32 v{vL16}, 4, v1')
    a(f's_lshl_b32 s34, s{sI}, 2\ns_add_u32 s34, s34, s3\ns_mul_i32 s20, s34, {112*KB}\ns_add_u32 s20, s20, {FIMG}')
    a(f's_mul_i32 s35, s3, {14*KB}\ns_add_u32 s35, s35, {WL}\nv_add_u32 v{vWL}, s35, v{vL16}')
    a(f's_cmp_eq_u32 s{sI}, 7\ns_cbranch_scc1 FF_NOW')
    load_weights(a, 20, 98, vL16, 14, 35); wstamp(a, diag)
    a.label('FF_NOW')
    a(f's_and_b32 s36, s3, 1\ns_mul_i32 s36, s36, {MT}\ns_lshr_b32 s37, s3, 1\ns_mul_i32 s37, s37, 7168\ns_add_u32 s36, s36, s37\nv_add_u32 v{vXW}, s36, v{vL16}')
    a(f's_lshl_b32 s37, s3, 11\ns_add_u32 s37, s37, {HB}\nv_add_u32 v{vHW}, s37, v{vL16}\nv_add_u32 v{vHR}, {HB}, v{vL16}')
    a(f's_lshl_b32 s38, s{sL}, 6\ns_add_u32 s38, s38, s{sREP}\ns_mul_i32 s{sX1}, s38, {SEGB}\ns_add_u32 s{sX1}, s{sX1}, s36\ns_add_u32 s{sX1}, s{sX1}, {X1}')
    a(f's_mul_i32 s37, s{sL}, 3\ns_add_u32 s37, s37, s{sREP}\ns_mul_i32 s{sRR}, s37, {RING_SET}\ns_add_u32 s{sRR}, s{sRR}, {RING}\ns_mul_i32 s37, s{sI}, {RING_J}\ns_add_u32 s{sRW}, s{sRR}, s37')
    a('s_mul_i32 s48, s3, 7\ns_add_u32 s48, s48, 1\ns_lshr_b32 s48, s48, 1\ns_lshl_b32 s48, s48, 10')
    a('s_lshr_b32 s49, s3, 1\ns_mul_i32 s49, s49, 7\ns_add_u32 s49, s49, 3\ns_lshl_b32 s49, s49, 10\ns_and_b32 s37, s3, 1\ns_lshl_b32 s37, s37, 3\ns_add_u32 s49, s49, s37')
    a(f'v_lshrrev_b32 v{vt}, 2, v1\nv_cmp_gt_u32 vcc, 14, v{vt}\nv_min_u32 v{vt}, 13, v{vt}\nv_cndmask_b32 v{vMK}, 0, 1.0, vcc\ns_mov_b64 s[50:51], vcc')
    a(f's_mul_i32 s37, s3, 14\nv_add_u32 v{vt}, s37, v{vt}\nv_and_b32 v{TM}, 3, v1')
    a(f'v_lshlrev_b32 v{vRO}, 8, v{vt}\nv_lshl_add_u32 v{vRO}, v{TM}, 4, v{vRO}')
    a(f'v_lshrrev_b32 v{TM+1}, 2, v{vt}\nv_lshlrev_b32 v{vO}, 6, v{TM+1}\nv_and_b32 v{TM+1}, 3, v{vt}\nv_lshl_add_u32 v{vO}, v{TM+1}, 3, v{vO}\nv_mul_u32_u24 v{TM}, {ROW}, v{TM}\nv_add_u32 v{vO}, v{vO}, v{TM}')
    a(f's_lshr_b32 s37, s{sI}, 2\ns_mul_i32 s37, s37, {MT}\ns_and_b32 s39, s{sI}, 3\ns_lshl_b32 s39, s39, 6\ns_add_u32 s37, s37, s39\nv_add_u32 v{vRO}, s37, v{vRO}')
    a(f's_mul_i32 s37, s{sI}, {4*ROW}\nv_add_u32 v{vO}, s37, v{vO}')
    a(f's_mul_i32 s{sOUT}, s{sREP}, {SEGB}\ns_mov_b32 s{sS}, s{sREP}\ns_mov_b32 s41, 0\ns_mov_b32 s52, 0x3f803f80\ns_mov_b32 s61, 0x3f80\ns_mov_b32 s62, 0x3f800000\ns_waitcnt vmcnt(0)')
    a(f's_mov_b32 s53, {f2u(1/448):#x}\ns_cmp_eq_u32 s{sI}, 7\ns_cbranch_scc1 FR')
    STG = [92+4*i for i in range(7)]
    xl = seg_loads(STG, vL16, sX1, sB)
    vAK = 63
    ack = f'buffer_load_dword v{vAK}, off, {wsr()}, s43 sc1'
    a(f's_mul_i32 s43, s{sL}, 3\ns_add_u32 s43, s43, s{sREP}\ns_lshl_b32 s43, s43, 7\ns_add_u32 s43, s43, {TKT+8*128}\ns_mov_b32 s63, -2\nv_mov_b32 v{vAK}, -1')
    a(f's_add_u32 s{sB}, s{sX1}, 4096')
    for l in xl: a(l)
    a('s_waitcnt vmcnt(0)')
    a.label('FF_TASK')
    a(f's_waitcnt vmcnt(2)\nv_cmp_gt_i32 vcc, s63, v{vAK}\ns_cbranch_vccnz FF_ACK')
    a.label('FF_ACKED')
    spin(a, 'FF_X', xl, qregs(STG), vt, sC, 14, sleep=1, first_issued=True, nafter=2)
    stamp(a, 0, diag)
    s1, s2 = TM, TM+1
    for k in range(4): a(f'v_mov_b32 v{TM+k}, 0')
    for i in range(28):
        if i % 4 == 0: a(f'ds_write_b128 v{vXW}, {vr(92+i,4)} offset:{256*i}')
        a(f'v_dot2_f32_bf16 v{s1+2*(i&1)}, v{92+i}, s52, v{s1+2*(i&1)}\nv_dot2_f32_bf16 v{s2+2*(i&1)}, v{92+i}, v{92+i}, v{s2+2*(i&1)}')
    a(f'v_and_b32 v{vt}, 15, v1\nv_lshlrev_b32 v{vt}, 3, v{vt}\ns_lshl_b32 s37, s3, 7\ns_add_u32 s37, s37, {STB}\nv_add_u32 v{TM+4}, s37, v{vt}')
    a(f'v_add_f32 v{s1}, v{s1}, v{s1+2}\nv_add_f32 v{s2}, v{s2}, v{s2+2}')
    for sw in ('v_permlane16_swap_b32', 'v_permlane32_swap_b32'):
        a(f'v_mov_b32 v{s1+2}, v{s1}\nv_mov_b32 v{s2+2}, v{s2}\n{sw} v{s1}, v{s1+2}\n{sw} v{s2}, v{s2+2}\nv_add_f32 v{s1}, v{s1}, v{s1+2}\nv_add_f32 v{s2}, v{s2}, v{s2+2}')
    a(f'ds_write_b64 v{TM+4}, {vr(s1,2)}\nv_add_u32 v{vt}, {STB}, v{vt}')
    a('s_waitcnt lgkmcnt(0)\ns_barrier')
    A1 = AC2
    LOG2E = 1.4426950408889634
    def gemm1(ps, Ts):
        o = []
        for T in Ts:
            for mt in range(2): o.append(f'ds_read_b128 {vr(XF+8*(T&1)+4*mt,4)}, v{vL16} offset:{XB+mt*MT+T*1024}')
            for p in ps:
                for ft in range(2):
                    for mt in range(2):
                        c = vr((A1, B1)[p]+8*ft+4*mt, 4)
                        o.append(f'{MF} {c}, {wreg(T*4+2*p+ft)}, {vr(XF+8*(T&1)+4*mt,4)}, {c if T else 0}')
        return o
    def silu(p, acc):
        o = []; n = 0
        for mt in range(2):
            for ft in range(2):
                for j in range(4):
                    z = acc+8*ft+4*mt+j; e = (TM, TM+1, WSt+8, WSt+9, WSt+10, WSt+11)[n % 6]; n += 1
                    o += [f'v_mul_f32 v{e}, v{z}, v{vR0+mt}', f'v_exp_f32 v{e}, v{e}', f'v_fma_f32 v{e}, v{e}, v{TM+2+mt}, v{TM+2+mt}',
                          f'v_rcp_f32 v{e}, v{e}', f'v_mul_f32 v{z}, v{z}, v{e}']
            d = TM+4
            o += cvt(d, acc+4*mt) + cvt(d+2, acc+8+4*mt)
            o.append(f'ds_write_b128 v{vHW}, {vr(d,4)} offset:{8192*p+1024*mt}')
        return o
    def gemm2(ks):
        o = []; n = 0
        for kp in ks:
            for mt in range(2): o.append(f'ds_read_b128 {vr(XF+8*(kp&1)+4*mt,4)}, v{vHR} offset:{2048*kp+1024*mt}')
            for tl in range(7):
                f = 56+kp*7+tl
                if f < 98: w = wreg(f)
                else:
                    w = vr(WSt+4*(n % 3), 4); n += 1
                    o.append(f'ds_read_b128 {w}, v{vWL} offset:{(f-98)*1024}')
                for mt in range(2):
                    c = vr(AC2+8*tl+4*mt, 4)
                    o.append(f'{MF} {c}, {w}, {vr(XF+8*(kp&1)+4*mt,4)}, {c if kp else 0}')
        return o
    st = [f'ds_read2_b64 {vr(WSt,4)}, v{vt} offset0:0 offset1:32', f'ds_read2_b64 {vr(WSt+4,4)}, v{vt} offset0:16 offset1:48']
    for mt in range(2):
        b = WSt+4*mt
        st += [f'v_pk_add_f32 {vr(b,2)}, {vr(b,2)}, {vr(b+2,2)}', f'v_mul_f32 v{b}, {f2u(1/448):#x}, v{b}', f'v_mul_f32 v{b}, v{b}, v{b}',
               f'v_fma_f32 v{b}, v{b+1}, s53, -v{b}', f'v_max_f32 v{b}, 0, v{b}', f'v_add_f32 v{b}, {f2u(1e-5):#x}, v{b}', f'v_rsq_f32 v{vR0+mt}, v{b}',
               f'v_mul_f32 v{TM+2+mt}, v{b}, v{vR0+mt}', f'v_mul_f32 v{vR0+mt}, {f2u(-LOG2E):#x}, v{vR0+mt}']
    a(f's_cmp_eq_u32 s41, 2\ns_mov_b32 s56, {RING_SLOT}\ns_cselect_b32 s56, {(-2*RING_SLOT) & 0xffffffff:#x}, s56\ns_add_u32 s57, s{sRW}, s56\ns_mul_i32 s37, s3, 7168\ns_add_u32 s57, s57, s37\ns_add_u32 s58, s57, 4096')
    po = [f'v_mov_b32 v{WSt+8+k}, -1' for k in range(4)]
    po += [f'buffer_store_dwordx4 {vr(WSt+8,4)}, v{vL16}, {wsr()}, s{57 if i < 4 else 58} offen offset:{1024*(i%4)}' for i in range(7)]
    K1 = OPT.get('ff_k1', 0)
    emit(a, st + po + gemm1((0, 1), range(K1)) + gemm1((0,), range(K1, 14)) + gemm1((1,), range(K1, 14)) + silu(0, A1), 'FF gemm1', L=dict(ds=100, vmgap=60))
    a('s_waitcnt lgkmcnt(0)\ns_barrier')
    stamp(a, 1, diag)
    emit(a, gemm2(range(4)) + silu(1, B1), 'FF gemm2a', L=dict(ds=100))
    a('s_waitcnt lgkmcnt(0)\ns_barrier')
    a('s_waitcnt vmcnt(0)')
    ops = gemm2(range(4, 8))
    a(f's_add_u32 s{sT}, s{sRW}, s48\ns_add_u32 s54, s{sT}, {MT}\ns_add_u32 s{sT2}, s{sRW}, s49\ns_add_u32 s55, s{sT2}, {MT}')
    n = 0
    for p in range(4):
        for mt in range(2):
            d = B1 + 4*(n % 4); n += 1
            ops += cvt(d, AC2+16*p+4*mt)
            if p < 3:
                ops += cvt(d+2, AC2+16*p+8+4*mt)
                ops.append(f'buffer_store_dwordx4 {vr(d,4)}, v{vL16}, {wsr()}, s{54 if mt else sT} offen offset:{1024*p}')
            else: ops.append(f'buffer_store_dwordx2 {vr(d,2)}, v{vL16}, {wsr()}, s{55 if mt else sT2} offen')
    emit(a, ops, 'FF gemm2b', L=dict(ds=100))
    stamp(a, 2, diag)
    def reduce(tag, extra):
        PT, XR, V = 64, 40, 48
        ld = []
        for j in range(7):
            ld += [f's_add_u32 s42, s{sRR}, {j*RING_J}', f'buffer_load_dwordx4 {vr(PT+4*j,4)}, v{vRO}, {wsr()}, s42 offen sc1']
        if extra: ld.append(f'buffer_load_dwordx4 {vr(XR,4)}, v{vRO}, {wsr()}, s{sX1} offen sc1')
        else: a(f'ds_read_b128 {vr(XR,4)}, v{vRO} offset:{XB}')
        spin(a, tag, ld, list(range(PT, PT+28)) + (list(range(XR, XR+4)) if extra else []), vt, sC, 15, sleep=2 if extra else 0)
        if not extra:
            stamp(a, 3, diag)
            a(f's_add_u32 s{sS}, s{sS}, 3\ns_cmp_lt_u32 s{sS}, 64\ns_cselect_b32 s37, {3*SEGB}, 0\ns_add_u32 s{sX1}, s{sX1}, s37\ns_add_u32 s{sB}, s{sX1}, 4096')
            for l in xl + [ack]: a(l)
            a('s_waitcnt lgkmcnt(0)')
        unpack8(a, V, XR)
        for j in range(7):
            for i in range(4):
                q = PT+4*j+i
                a(f'v_dot2_f32_bf16 v{V+2*i}, v{q}, s61, v{V+2*i}\nv_dot2_f32_bf16 v{V+2*i+1}, v{q}, s62, v{V+2*i+1}')
        pack8(a, XR, V)
        a(f's_cmp_eq_u32 s{sL}, 0\ns_cbranch_scc1 {tag}_LN')
        a('s_mov_b64 exec, s[50:51]')
        a(f'buffer_store_dwordx2 {vr(XR,2)}, v{vO}, s[{OS}:{OS+3}], s{sOUT} offen\nbuffer_store_dwordx2 {vr(XR+2,2)}, v{vO}, s[{OS}:{OS+3}], s{sOUT} offen offset:32')
        a(f's_mov_b64 exec, -1\ns_barrier\ns_branch {tag}_E')
        a.label(f'{tag}_LN')
        S = PT
        a(f'v_mov_b32 v{S}, 0\nv_mov_b32 v{S+1}, 0')
        for i in range(4): a(f'v_dot2_f32_bf16 v{S}, v{XR+i}, s52, v{S}\nv_dot2_f32_bf16 v{S+1}, v{XR+i}, v{XR+i}, v{S+1}')
        a(f'v_and_b32 v{vt}, 3, v1\nv_lshlrev_b32 v{vt}, 3, v{vt}\nv_add_u32 v{vt}, {STB+512}, v{vt}\ns_lshl_b32 s37, s3, 5\nv_add_u32 v{S+4}, s37, v{vt}')
        a(f'v_mul_f32 v{S}, v{S}, v{vMK}\nv_mul_f32 v{S+1}, v{S+1}, v{vMK}\ns_add_u32 s42, s{sOUT}, {XR2}')
        for r in (4, 8):
            for k in range(2): a(f'v_add_f32_dpp v{S+k}, v{S+k}, v{S+k} row_ror:{r} row_mask:0xf bank_mask:0xf')
        for sw in ('v_permlane16_swap_b32', 'v_permlane32_swap_b32'):
            a(f'v_mov_b32 v{S+2}, v{S}\nv_mov_b32 v{S+3}, v{S+1}\n{sw} v{S}, v{S+2}\n{sw} v{S+1}, v{S+3}\nv_add_f32 v{S}, v{S}, v{S+2}\nv_add_f32 v{S+1}, v{S+1}, v{S+3}')
        a(f'ds_write_b64 v{S+4}, {vr(S,2)}')
        a(f'buffer_store_dwordx4 {vr(XR,4)}, v{vRO}, {wsr()}, s42 offen sc1')
        unpack8(a, V, XR)
        a('s_waitcnt lgkmcnt(0)\ns_barrier')
        a(f'ds_read2_b64 {vr(S,4)}, v{vt} offset0:0 offset1:4\nds_read2_b64 {vr(S+4,4)}, v{vt} offset0:8 offset1:12\ns_add_u32 s42, s{sOUT}, {XS2}')
        a('s_waitcnt lgkmcnt(0)')
        a(f'v_pk_add_f32 {vr(S,2)}, {vr(S,2)}, {vr(S+2,2)}\nv_pk_add_f32 {vr(S+4,2)}, {vr(S+4,2)}, {vr(S+6,2)}\nv_pk_add_f32 {vr(S,2)}, {vr(S,2)}, {vr(S+4,2)}')
        a(f'v_mul_f32 v{S}, s53, v{S}\nv_mul_f32 v{S+2}, v{S}, v{S}\nv_fma_f32 v{S+2}, v{S+1}, s53, -v{S+2}\nv_max_f32 v{S+2}, 0, v{S+2}\nv_add_f32 v{S+2}, {f2u(1e-5):#x}, v{S+2}\nv_rsq_f32 v{S+2}, v{S+2}')
        for i in range(4): a(f'v_pk_add_f32 {vr(V+2*i,2)}, {vr(V+2*i,2)}, {vr(S,2)} op_sel_hi:[1,0] neg_lo:[0,1] neg_hi:[0,1]')
        for i in range(4): a(f'v_pk_mul_f32 {vr(V+2*i,2)}, {vr(V+2*i,2)}, {vr(S+2,2)} op_sel_hi:[1,0]')
        pack8(a, S+4, V)
        a(f'buffer_store_dwordx4 {vr(S+4,4)}, v{vRO}, {wsr()}, s42 offen sc1')
        a.label(f'{tag}_E')
    reduce('FF_R', False)
    if diag: stamp(a, 4, diag); a(f's_sub_u32 s59, s{sS}, 3'); dump(a, diag, 4, 59, 64, vt); a('s_waitcnt vmcnt(0)')
    a(f's_add_u32 s{sRW}, s{sRW}, s56\ns_add_u32 s{sRR}, s{sRR}, s56\ns_add_u32 s41, s41, 1\ns_cmp_eq_u32 s41, 3\ns_cselect_b32 s41, 0, s41')
    a(f's_add_u32 s{sOUT}, s{sOUT}, {3*SEGB}\ns_add_u32 s63, s63, 1\ns_cmp_lt_u32 s{sS}, 64\ns_cbranch_scc1 FF_TASK\ns_endpgm')
    a.label('FF_ACK')
    a(f's_mov_b32 s{sC}, 0')
    a.label('FF_ACK_L')
    a(ack); guard(a, sC, 16)
    a(f's_waitcnt vmcnt(0)\nv_cmp_gt_i32 vcc, s63, v{vAK}\ns_cbranch_vccnz FF_ACK_L\ns_branch FF_ACKED')
    a.label('FR')
    a(f's_mul_i32 s{sX1}, s{sL}, {64*SEGB}\ns_add_u32 s{sX1}, s{sX1}, {X1}\ns_mov_b32 s{sOUT}, 0\ns_mov_b32 s{sS}, 0\ns_mov_b32 s63, 0\ns_mov_b32 s54, 0')
    a.label('FR_L')
    a(f's_mul_i32 s37, s{sL}, 3\ns_add_u32 s37, s37, s54\ns_mul_i32 s{sRR}, s37, {RING_SET}\ns_mul_i32 s39, s41, {RING_SLOT}\ns_add_u32 s{sRR}, s{sRR}, s39\ns_add_u32 s{sRR}, s{sRR}, {RING}')
    a(f's_lshl_b32 s55, s37, 7\ns_add_u32 s55, s55, {TKT+8*128}')
    reduce('FR_R', True)
    a(f'v_mov_b32 v{vAK}, s63\nbuffer_store_dword v{vAK}, off, {wsr()}, s55')
    a(f's_add_u32 s{sX1}, s{sX1}, {SEGB}\ns_add_u32 s{sOUT}, s{sOUT}, {SEGB}\ns_add_u32 s{sS}, s{sS}, 1\ns_add_u32 s54, s54, 1\ns_cmp_lt_u32 s54, 3\ns_cbranch_scc1 FR_N')
    a('s_mov_b32 s54, 0\ns_add_u32 s63, s63, 1\ns_add_u32 s41, s41, 1\ns_cmp_eq_u32 s41, 3\ns_cselect_b32 s41, 0, s41')
    a.label('FR_N')
    a(f's_barrier\ns_cmp_lt_u32 s{sS}, 64\ns_cbranch_scc1 FR_L\ns_endpgm')
```

```python
from common import *
from layout import *
from lsched import schedule
from asmlib import regs_of
WS = 12
sL, sI = 16, 17
sREP = 18
SPIN = 1 << 17
OPT = dict(ra_k=2, ra_sleep=8, ra_gap=40, rb_k=1, rb_msleep=0, rb_pk=2, rb_psleep=0, rb_gap=48, gap=0, ra_dma=0, ra_touch=0)
def wsr(): return f's[{WS}:{WS+3}]'
def wreg(f, n=4):
    return ar(4*f, n) if f < 64 else vr(120 + 4*(f-64), n)
def load_weights(a, sbase, nreg, vL16, lds_frags=0, lds_base_s=None):
    for f in range(nreg):
        if f and f % 4 == 0: a(f's_add_u32 s{sbase}, s{sbase}, 4096')
        a(f'buffer_load_dwordx4 {wreg(f)}, v{vL16}, {wsr()}, s{sbase} offen offset:{(f%4)*1024}')
    a(f's_add_u32 s{sbase}, s{sbase}, {((nreg-1)%4+1)*1024}')
    for i in range(lds_frags):
        a(f's_add_u32 m0, s{lds_base_s}, {i*1024}')
        a(f'buffer_load_dwordx4 v{vL16}, {wsr()}, s{sbase} offen lds')
        a(f's_add_u32 s{sbase}, s{sbase}, 1024')
def wstamp(a, diag):
    if not diag: return
    a(f's_waitcnt vmcnt(0)\ns_memrealtime s[84:85]\ns_waitcnt lgkmcnt(0)\nv_mov_b32 v12, s80\nv_mov_b32 v13, s82\nv_mov_b32 v14, s84\nv_mov_b32 v15, s19')
    a(f's_lshl_b32 s60, s2, 2\ns_add_u32 s60, s60, s3\ns_lshl_b32 s60, s60, 4\ns_add_u32 s60, s60, {DBG + (1<<20) + 16384}\nv_mov_b32 v16, 0\nbuffer_store_dwordx4 v[12:15], v16, {wsr()}, s60 offen\ns_waitcnt vmcnt(0)')
def allset(a, dst, regs):
    regs = list(regs); cur = None
    while regs:
        if cur is None:
            if len(regs) >= 3: a(f'v_max3_u32 v{dst}, v{regs[0]}, v{regs[1]}, v{regs[2]}'); regs = regs[3:]
            elif len(regs) == 2: a(f'v_max_u32 v{dst}, v{regs[0]}, v{regs[1]}'); regs = []
            else: a(f'v_cmp_eq_u32 vcc, -1, v{regs[0]}'); return
            cur = dst
        elif len(regs) >= 2: a(f'v_max3_u32 v{dst}, v{dst}, v{regs[0]}, v{regs[1]}'); regs = regs[2:]
        else: a(f'v_max_u32 v{dst}, v{dst}, v{regs[0]}'); regs = []
    a(f'v_cmp_eq_u32 vcc, -1, v{dst}')
def guard(a, s, code):
    a(f's_add_u32 s{s}, s{s}, 1\ns_cmp_gt_u32 s{s}, {SPIN}\ns_mov_b32 s99, {code}\ns_cbranch_scc1 FAIL')
def poll(a, tag, sets, issue, vt, scnt, code, gap=0, shadow=()):
    n = None
    a(f's_mov_b32 s{scnt}, 0')
    for k in range(len(sets)):
        n = issue(k)
        if gap and k < len(sets)-1:
            for _ in range(gap // 16): a('s_nop 15')
            if gap % 16: a(f's_nop {gap % 16 - 1}')
    for l in shadow: a(l)
    a.label(f'{tag}_L')
    for k in range(len(sets)):
        a(f's_waitcnt vmcnt({n*(len(sets)-1)})')
        allset(a, vt, sets[k])
        a(f's_cbranch_vccz {tag}_OK{k}')
        if OPT['gap']: a(f's_sleep {OPT["gap"]}')
        issue(k)
    guard(a, scnt, code)
    a(f's_branch {tag}_L')
def stamp(a, n, diag, role=None):
    if diag == 3:
        iv = OPT.get('iv')
        if iv and role == iv[0]:
            if n == iv[2]: a('s_waitcnt lgkmcnt(0)\ns_memtime s[88:89]\ns_waitcnt lgkmcnt(0)\ns_sub_u32 s88, s88, s86\ns_cmp_lt_u32 s88, 20000\ns_cselect_b32 s88, s88, 0\ns_add_u32 s78, s78, s88')
            if n == iv[1]: a('s_waitcnt lgkmcnt(0)\ns_memtime s[86:87]\ns_waitcnt lgkmcnt(0)')
        return
    op = 's_memrealtime' if diag == 2 else 's_memtime'
    if diag: a(f's_waitcnt lgkmcnt(0)\n{op} s[{64+2*n}:{65+2*n}]\ns_waitcnt lgkmcnt(0)')
def dump(a, diag, role, sStep, v, vz, n=7, tag=''):
    if not diag or diag == 3: return
    t = f'DUMP{role}{tag}'
    a(f's_cmp_lg_u32 s3, 0\ns_cbranch_scc1 {t}')
    a(f's_lshl_b32 s60, s{sL}, 4\ns_add_u32 s60, s60, s{sI}\ns_add_u32 s60, s60, {role*32}\ns_lshl_b32 s60, s60, 6\ns_add_u32 s60, s60, s{sStep}\ns_lshl_b32 s60, s60, 5\ns_add_u32 s60, s60, {DBG}')
    for i in range(n):
        a(f'v_mov_b32 v{v}, s{64+2*i}\nv_mov_b32 v{vz}, {4*i}\nbuffer_store_dword v{v}, v{vz}, {wsr()}, s60 offen')
    a.label(t)

def mem_gather(a, tag, sMEM, vP1, vP2, ST, vt, scnt, code, K=2, gap=0, shadow=()):
    def issue(k):
        a(f'buffer_load_dwordx4 {vr(ST+8*k,4)}, v{vP1}, {wsr()}, s{sMEM} offen sc1')
        a(f'buffer_load_dwordx4 {vr(ST+8*k+4,4)}, v{vP2}, {wsr()}, s{sMEM} offen sc1'); return 2
    poll(a, tag, [range(ST, ST+8), range(ST+8, ST+16)][:K], issue, vt, scnt, code, gap, shadow)
    for k in range(K):
        a.label(f'{tag}_OK{k}')
        a(f'ds_write_b128 v{vP1}, {vr(ST+8*k,4)}\nds_write_b128 v{vP2}, {vr(ST+8*k+4,4)}')
        if k < K-1: a(f's_branch {tag}_DONE')
    a.label(f'{tag}_DONE')
def rec_common(a, vL16, vP1, vP2, vIDX, vt):
    a(f'v_lshlrev_b32 v{vL16}, 4, v1\ns_mul_i32 s20, s3, 1792\nv_add_u32 v{vP1}, s20, v{vL16}')
    a(f'v_add_u32 v{vP2}, 1024, v{vP1}\nv_cmp_gt_u32 vcc, 48, v1\nv_cndmask_b32 v{vP2}, v{vP1}, v{vP2}, vcc')
    a(f'v_and_b32 v{vt}, 1, v1\nv_cmp_eq_u32 vcc, 0, v{vt}\nv_mov_b32 v{vIDX}, 0xeeee\nv_mov_b32 v{vt}, 0x4444\nv_cndmask_b32 v{vIDX}, v{vIDX}, v{vt}, vcc')

def gen_RA(a, diag=False):
    vL16, vP1, vP2, vIDX, vt, vK, vMK, vSW, vSR, vPS, vPM = 2, 3, 4, 5, 6, 7, 8, 9, 10, 11, 0
    ME, KM, UA, XK, FO, TP = 12, 40, 56, 84, 112, 116
    vK1, vMK1, vA0, vA1, vTH = 114, 115, 54, 55, 1
    vKL, vK1a, vTO, vTD = 118, 119, 117, 116
    ST = KM
    MB = 7424; RED = 3 * MB; KB0 = 32768
    sMEM, sXS, sPM, sS, sC, sC2, sM0, sBUF = 21, 22, 23, 24, 25, 26, 33, 35
    HB = 36
    a.label('RA')
    rec_common(a, vL16, vP1, vP2, vIDX, vt)
    a(f's_mov_b32 s{sM0}, s20')
    a(f's_lshl_b32 s34, s{sI}, 2\ns_add_u32 s34, s34, s3\ns_mul_i32 s20, s34, {98*KB}')
    if AIMG: a(f's_add_u32 s20, s20, {AIMG}')
    load_weights(a, 20, 98, vL16); wstamp(a, diag)
    a(f'v_and_b32 v{vt}, 14, v1\nv_lshlrev_b32 v{vMK}, 4, v{vt}\nv_lshrrev_b32 v{vt}, 5, v1\nv_lshl_add_u32 v{vMK}, v{vt}, 8, v{vMK}\nv_bfe_u32 v{vt}, v1, 4, 1\nv_lshl_add_u32 v{vMK}, v{vt}, 3, v{vMK}')
    a('s_lshr_b32 s27, s3, 1\ns_mul_i32 s27, s27, 7\ns_add_u32 s27, s27, 3\ns_and_b32 s28, s3, 1')
    a(f's_lshl_b32 s29, s27, 10\ns_lshl_b32 s30, s28, 3\ns_add_u32 s29, s29, s30\nv_add_u32 v{vK1}, s29, v{vL16}\ns_lshl_b32 s29, s27, 9\ns_lshl_b32 s30, s28, 2\ns_add_u32 s29, s29, s30\nv_add_u32 v{vMK1}, s29, v{vMK}')
    a('s_mul_i32 s27, s3, 7\ns_add_u32 s27, s27, 1\ns_lshr_b32 s27, s27, 1\ns_lshl_b32 s28, s27, 10\ns_lshl_b32 s27, s27, 9')
    a(f'v_add_u32 v{vK}, s28, v{vL16}\nv_add_u32 v{vMK}, s27, v{vMK}')
    a(f'v_lshrrev_b32 v{vt}, 4, v1\nv_lshlrev_b32 v{vt}, 1, v{vt}\nv_and_b32 v{ST}, 7, v1\nv_sub_u32 v{vt}, v{ST}, v{vt}\nv_mov_b32 v{ST}, 0x3f803f80')
    for d in range(2): a(f'v_cmp_eq_u32 vcc, {d}, v{vt}\nv_cndmask_b32 v{FO+d}, 0, v{ST}, vcc')
    a(f'v_and_b32 v{vt}, 7, v1\nv_bfe_u32 v{ST}, v1, 3, 1\nv_cmp_eq_u32 s[{HB}:{HB+1}], 1, v{ST}\nv_lshl_add_u32 v{vt}, v{vt}, 1, v{ST}')
    a(f'v_lshrrev_b32 v{ST}, 5, v1\nv_lshlrev_b32 v{ST}, 3, v{ST}\nv_xor_b32 v{vt}, v{vt}, v{ST}\nv_and_b32 v{ST}, 48, v1\nv_add_lshl_u32 v{vt}, v{vt}, v{ST}, 3')
    a(f's_mul_i32 s27, s3, 1536\ns_add_u32 s27, s27, {RED}\nv_add_u32 v{vSW}, s27, v{vt}')
    a(f'v_lshrrev_b32 v{vt}, 4, v1\nv_lshlrev_b32 v{vt}, 2, v{vt}\nv_bfe_u32 v{ST}, v1, 1, 2\nv_add_u32 v{vt}, v{vt}, v{ST}\nv_and_b32 v{ST}, 8, v1\nv_xor_b32 v{vt}, v{vt}, v{ST}')
    a(f'v_lshl_add_u32 v{vt}, v{ST}, 2, v{vt}\nv_and_b32 v{ST}, 1, v1\nv_lshl_add_u32 v{vt}, v{ST}, 4, v{vt}\nv_lshlrev_b32 v{vt}, 3, v{vt}\nv_add_u32 v{vSR}, {RED}, v{vt}\nv_lshlrev_b32 v{vt}, 3, v1')
    a(f's_lshr_b32 s27, s{sI}, 2\ns_mul_i32 s27, s27, 3072\ns_bfe_u32 s28, s{sI}, 0x10001\ns_and_b32 s29, s{sI}, 1')
    a(f's_lshl_b32 s30, s28, 10\ns_lshl_b32 s31, s29, 9\ns_add_u32 s30, s30, s31\ns_add_u32 s30, s30, s27\nv_add_u32 v{vPS}, s30, v{vt}')
    a(f's_lshl_b32 s30, s28, 9\ns_lshl_b32 s31, s29, 2\ns_add_u32 s30, s30, s31\ns_add_u32 s30, s30, s27\ns_add_u32 s30, s30, 2048\nv_add_u32 v{vPM}, s30, v{vt}')
    a(f's_mul_i32 s{sMEM}, s{sL}, {MEM_L}\ns_add_u32 s{sMEM}, s{sMEM}, {MEMX}')
    a(f's_mov_b32 s{sXS}, {XS1}\ns_cmp_eq_u32 s{sL}, 1\ns_cselect_b32 s{sXS}, {XS2}, s{sXS}')
    a(f's_mul_i32 s{sPM}, s{sL}, {64*PM_STEP}\ns_add_u32 s{sPM}, s{sPM}, {PM}\ns_mov_b32 s{sS}, 0\nv_mov_b32 v{vTH}, {f2u(OPT.get("th", 64.0)):#x}')
    def keyl(base_s, voff, voff1, dst, st):
        return [f'buffer_load_dwordx4 {vr(dst+4*p,4)}, v{voff}, {wsr()}, s{base_s} offen offset:{st*p} sc1' for p in range(3)] + \
               [f'buffer_load_dwordx2 {vr(dst+12,2)}, v{voff1}, {wsr()}, s{base_s} offen sc1']
    a(f's_lshl_b32 s38, s3, 13\ns_add_u32 s38, s38, {KB0}\nv_add_u32 v{vKL}, s38, v{vL16}\ns_and_b32 s39, s3, 1\ns_lshl_b32 s39, s39, 3')
    def kdma():
        o = []
        for kt in range(2):
            for p in range(4):
                o += [f's_add_u32 m0, s38, {4096*kt + (0 if p < 3 else 3072)}'] if p in (0, 3) else []
                o.append(f'buffer_load_dwordx4 v{vK if p < 3 else vK1a}, {wsr()}, s{27 if kt else sXS} offen offset:{1024*p if p < 3 else 0} sc1 lds')
        return o
    a(f's_mul_i32 s40, s{sL}, {64*VP_STEP}\ns_mul_i32 s27, s34, {56*128}\ns_add_u32 s40, s40, s27\ns_add_u32 s40, s40, {VP+VP_STEP*OPT.get("ra_ahead", 1)}')
    a(f'v_lshrrev_b32 v{vTO}, 4, v{vL16}\nv_min_u32 v{vTO}, 55, v{vTO}\nv_lshlrev_b32 v{vTO}, 7, v{vTO}')
    a(f'v_and_b32 v{vK1a}, -16, v{vK1}\ns_add_u32 s27, s{sXS}, {MT}')
    for l in kdma(): a(l)
    a('s_waitcnt vmcnt(0)')
    if diag == 3: a('s_memtime s[64:65]\ns_memrealtime s[68:69]\ns_waitcnt lgkmcnt(0)\ns_mov_b32 s72, 0\ns_mov_b32 s74, 0\ns_mov_b32 s78, 0\ns_mov_b32 s86, 0')
    a.label('RA_STEP')
    a(f'v_add_u32 v{vt}, s39, v{vKL}')
    for kt in range(2):
        for p in range(3): a(f'ds_read_b128 {vr(XK+14*kt+4*p,4)}, v{vKL} offset:{4096*kt+1024*p}')
        a(f'ds_read_b64 {vr(XK+14*kt+12,2)}, v{vt} offset:{4096*kt+3072}')
    for i in range(28): a(f'v_mov_b32 v{UA+i}, 0')
    a(f's_mov_b32 s{sC2}, 0\ns_waitcnt lgkmcnt(0)')
    allset(a, vt, range(XK, XK+28))
    a('s_cbranch_vccnz RA_KL')
    a.label('RA_KOK')
    a(f's_add_u32 s{sXS}, s{sXS}, {SEGB}\ns_add_u32 s27, s{sXS}, {MT}')
    stamp(a, 3, diag, 'RA')
    if OPT['ra_sleep']: a(f's_sleep {OPT["ra_sleep"]}')
    def dma(k):
        a(f's_add_u32 m0, s{sM0}, {k*MB}' if k else f's_mov_b32 m0, s{sM0}')
        a(f'buffer_load_dwordx4 v{vP1}, {wsr()}, s{sMEM} offen sc1 lds\nbuffer_load_dwordx4 v{vP1}, {wsr()}, s{sMEM} offen offset:1024 sc1 lds')
    pre = []
    if OPT.get('ra_dma', 1):
        a(f's_mov_b32 s{sC}, 0')
        dma(0)
        for _ in range(OPT['ra_gap'] // 16): a('s_nop 15')
        if OPT['ra_gap'] % 16: a(f's_nop {OPT["ra_gap"] % 16 - 1}')
        a.label('RA_M_L')
        for k in range(3):
            dma((k+1) % 3)
            a(f's_mov_b32 s{sBUF}, {k*MB}\ns_waitcnt vmcnt(2)\ns_barrier')
            for b in range(7): a(f'ds_read_b128 {vr(ME+4*b,4)}, v{vL16} offset:{k*MB+1024*b}')
            for b in range(7):
                q = ME+4*b
                a(f's_waitcnt lgkmcnt({6-b})')
                a(f'v_max3_u32 v{vt}, v{q}, v{q+1}, v{q+2 if b == 0 else vt}')
                a(f'v_max_u32 v{vt}, v{vt}, v{q+3}' if b == 0 else f'v_max3_u32 v{vt}, v{q+2}, v{q+3}, v{vt}')
            a(f'v_cmp_eq_u32 vcc, -1, v{vt}\ns_cbranch_vccz RA_M_OK')
            if diag == 3: a('s_add_u32 s72, s72, 1')
        guard(a, sC, 1)
        a('s_branch RA_M_L')
    else:
        a(f's_mov_b32 s{sBUF}, 0')
        mem_gather(a, 'RA_M', sMEM, vP1, vP2, ST, vt, sC, 1, OPT['ra_k'], OPT['ra_gap'])
        a('s_waitcnt lgkmcnt(0)\ns_barrier')
        pre = [f'ds_read_b128 {vr(ME+4*b,4)}, v{vL16} offset:{1024*b}' for b in range(7)]
    a.label('RA_M_OK')
    stamp(a, 0, diag, 'RA')
    if diag == 3: a(f's_add_u32 s72, s72, s{sC}\ns_add_u32 s74, s74, s{sC2}')
    stamp(a, 1, diag, 'RA')
    SA = [UA+4, UA+12, UA+20]
    UT = lambda p: UA + 8*p
    ops = list(pre); bias = {}
    assert pre
    ops.append(f'v_add_u32 v{vt}, 1024, v{vMK}')
    nk = len(ops)
    for p in range(3):
        for nt in range(2): ops.append(f'ds_read2_b32 {vr(KM+4*p+2*nt,2)}, v{vMK if p < 2 else vt} offset0:{(128*p+nt) % 256} offset1:{(128*p+nt) % 256 + 4}')
    ops.append(f'ds_read2_b32 {vr(KM+12,2)}, v{vMK1} offset0:0 offset1:4')
    nd = len(ops)
    if OPT.get('ra_touch', 1):
        ops += [f'buffer_load_dword v{vTD}, v{vTO}, {wsr()}, s40 offen sc1', f's_add_u32 s40, s40, {VP_STEP}']
    ops += kdma()
    n0 = len(ops)
    for tl in range(7):
        c = UA+4*tl; tp = vA0; ut = UT(tl >> 1) + 2*(tl & 1)
        for b in range(7):
            bias[len(ops)] = OPT.get('ra_bias', 60) * (6 - max(tl, 1 if pre else 0)) if b == 6 else 0
            ops.append(f'v_smfmac_f32_16x16x64_bf16 {vr(c,4)}, {vr(ME+4*b,4)}, {wreg((b*7+tl)*2, 8)}, v{vIDX}')
        ops += [f'v_cvt_pk_bf16_f32 v{tp}, v{c}, v{c+1}', f'v_cvt_pk_bf16_f32 v{tp+1}, v{c+2}, v{c+3}']
        ops.append(f'v_mfma_f32_16x16x16_bf16 {vr(c,4)}, {vr(tp,2)}, {vr(FO,2)}, 0')
        ops += [f'v_cvt_pk_bf16_f32 v{ut}, v{c}, v{c+1}', f'v_cvt_pk_bf16_f32 v{ut+1}, v{c+2}, v{c+3}']
    for kt in (2, 0, 1):
        kb = (XK, XK+14, KM)[kt]; c = vr(SA[kt], 4)
        for p in range(4):
            if p < 3: ops.append(f'v_mfma_f32_16x16x32_bf16 {c}, {vr(kb+4*p,4)}, {vr(UT(p),4)}, {c if p else 0}')
            else: ops.append(f'v_mfma_f32_16x16x16_bf16 {c}, {vr(kb+12,2)}, {vr(UT(3),2)}, {c}')
    ops += [f's_add_u32 s{sMEM}, s{sMEM}, {MEM_STEP}', f's_add_u32 s{sS}, s{sS}, 1']
    for kt in (2, 0, 1):
        c = SA[kt]
        ops.append(f'v_cndmask_b32 v{c}, v{c}, v{c+2}, s[{HB}:{HB+1}]')
        if kt < 2: ops += [f'v_cndmask_b32 v{c+1}, v{c+1}, v{c+3}, s[{HB}:{HB+1}]', f'ds_write_b64 v{vSW}, {vr(c,2)} offset:{512*kt}']
        else: ops.append(f'ds_write_b32 v{vSW}, v{c} offset:{512*kt}')
    out, vm, lg = schedule(ops, L=dict(ds=80, vmgap=80), prio_bias=bias, vm_in=[set(regs_of(vr(ST, 16)))], late={nk: 300, nd: 100})
    print('RA core estimate', schedule.cycles)
    for l in out:
        if not (OPT.get('x_nou') and 'smfmac' in l): a(l)
    stamp(a, 2, diag, 'RA')
    a('s_cmp_lg_u32 s3, 0\ns_waitcnt lgkmcnt(0)\ns_barrier')
    if diag: stamp(a, 4, diag, 'RA'); a('s_cmp_lg_u32 s3, 0')
    a('s_cbranch_scc1 RA_NEXT')
    R = UA
    for kt in (2, 0, 1):
        for pp in range(2):
            a(f'ds_read2st64_b64 {vr(R+8*kt+4*pp,4)}, v{vSR} offset0:{kt+6*pp} offset1:{kt+6*pp+3}')
    x = [R, R+1, R+8, R+9, R+16]; m, t = R+2, R+3
    y = [R+4, R+5, R+12, R+13, R+20]
    b = R+16
    a(f's_waitcnt lgkmcnt(4)\nv_add_f32 v{b}, v{b}, v{b+2}\nv_add_f32 v{b+4}, v{b+4}, v{b+6}\nv_add_f32 v{b}, v{b}, v{b+4}\nv_exp_f32 v{y[4]}, v{x[4]}')
    for n, kt in enumerate((0, 1)):
        b = R+8*kt
        a(f's_waitcnt lgkmcnt({2-2*n})')
        a(f'v_pk_add_f32 {vr(b,2)}, {vr(b,2)}, {vr(b+2,2)}\nv_pk_add_f32 {vr(b+4,2)}, {vr(b+4,2)}, {vr(b+6,2)}\nv_pk_add_f32 {vr(b,2)}, {vr(b,2)}, {vr(b+4,2)}')
        a(f'v_exp_f32 v{y[2*kt]}, v{x[2*kt]}')
        a(f'v_max3_f32 v{m}, |v{x[2*kt]}|, |v{x[2*kt+1]}|, |v{x[4] if n == 0 else m}|')
        a(f'v_exp_f32 v{y[2*kt+1]}, v{x[2*kt+1]}')
    a(f'v_cmp_nle_f32 vcc, v{m}, v{vTH}\nv_add_f32 v{t}, v{y[0]}, v{y[1]}\ns_cbranch_vccnz RA_SHIFT')
    a.label('RA_SUM')
    a(f'v_add_f32 v{m}, v{y[4]}, v{y[2]}\nv_add_f32 v{t}, v{t}, v{y[3]}\nv_add_f32 v{m}, v{m}, v{t}')
    DP = ('quad_perm:[1,0,3,2]', 'quad_perm:[2,3,0,1]', 'row_ror:8')
    for ctl in DP: a(f'v_add_f32_dpp v{m}, v{m}, v{m} {ctl} row_mask:0xf bank_mask:0xf')
    a(f'v_rcp_f32 v{m}, v{m}')
    o = R+8
    for k in range(2): a(f'v_pk_mul_f32 {vr(y[2*k],2)}, {vr(y[2*k],2)}, {vr(m,2)} op_sel_hi:[1,0]')
    a(f'v_mul_f32 v{y[4]}, v{y[4]}, v{m}')
    for k in range(2): a(f'v_cvt_pk_bf16_f32 v{o+k}, v{y[2*k]}, v{y[2*k+1]}')
    a(f'buffer_store_dwordx2 {vr(o,2)}, v{vPS}, {wsr()}, s{sPM} offen\nv_cvt_pk_bf16_f32 v{o+2}, v{y[4]}, v{y[4]}\nbuffer_store_dword v{o+2}, v{vPM}, {wsr()}, s{sPM} offen')
    stamp(a, 5, diag, 'RA'); dump(a, diag, 0, sS, m, vt)
    a.label('RA_NEXT')
    a('s_waitcnt vmcnt(2)\ns_cmp_eq_u32 s3, 0\ns_cbranch_scc1 RA_N2\ns_waitcnt vmcnt(0)')
    a.label('RA_N2')
    a('s_barrier')
    a(f's_add_u32 s{sPM}, s{sPM}, {PM_STEP}\ns_cmp_lt_u32 s{sS}, 63\ns_cbranch_scc1 RA_STEP')
    if diag == 3:
        a('s_memtime s[66:67]\ns_memrealtime s[70:71]\ns_waitcnt lgkmcnt(0)'); a(f's_mov_b32 s{sS}, 0'); dump(a, 1, 0, sS, UA, vt, n=8, tag='E')
    a('s_endpgm')
    a.label('RA_KL')
    for l in keyl(sXS, vK, vK1, XK, 1024) + keyl(27, vK, vK1, XK+14, 1024): a(l)
    guard(a, sC2, 2)
    a('s_waitcnt vmcnt(0)')
    allset(a, vt, range(XK, XK+28))
    a('s_cbranch_vccnz RA_KL\ns_branch RA_KOK')
    a.label('RA_SHIFT')
    a(f'v_max3_f32 v{m}, v{x[0]}, v{x[1]}, v{x[2]}\nv_max3_f32 v{m}, v{x[3]}, v{x[4]}, v{m}')
    for ctl in DP: a(f'v_max_f32_dpp v{m}, v{m}, v{m} {ctl} row_mask:0xf bank_mask:0xf')
    for i in range(5): a(f'v_sub_f32 v{y[i]}, v{x[i]}, v{m}')
    for i in range(5): a(f'v_exp_f32 v{y[i]}, v{y[i]}')
    a(f'v_add_f32 v{t}, v{y[0]}, v{y[1]}\ns_branch RA_SUM')

def gen_RB(a, diag=False):
    vL16, vP1, vP2, vIDX, vt, vRW, vRR, vO, vWL, vPL, vF, vX = 2, 3, 4, 5, 6, 7, 8, 9, 10, 11, 0, 1
    ME, ST, WA, VV = 12, 40, 56, 88
    RED, WL = 8192, 16384
    sMEM, sVP, sPM, sFL, sS, sC, sO = 21, 22, 24, 25, 26, 27, 28
    a.label('RB')
    rec_common(a, vL16, vP1, vP2, vIDX, vt)
    a(f's_lshl_b32 s30, s{sI}, 2\ns_add_u32 s30, s30, s3\ns_mul_i32 s20, s30, {112*KB}\ns_add_u32 s20, s20, {BIMG}')
    a(f's_mul_i32 s31, s3, {14*KB}\ns_add_u32 s31, s31, {WL}\nv_add_u32 v{vWL}, s31, v{vL16}')
    load_weights(a, 20, 98, vL16, 14, 31); wstamp(a, diag)
    a(f's_mul_i32 s{sMEM}, s{sL}, {MEM_L}\ns_add_u32 s{sMEM}, s{sMEM}, {MEMX}')
    a(f's_mul_i32 s{sVP}, s{sL}, {64*VP_STEP}\ns_lshl_b32 s32, s30, 13\ns_add_u32 s{sVP}, s{sVP}, s32\ns_add_u32 s{sVP}, s{sVP}, {VP}')
    a(f's_mul_i32 s{sPM}, s{sL}, {64*PM_STEP}\ns_mul_i32 s32, s3, 3072\ns_add_u32 s{sPM}, s{sPM}, s32\ns_add_u32 s{sPM}, s{sPM}, {PM}')
    a(f's_mul_i32 s{sFL}, s{sL}, {64*FL_STEP}\ns_lshl_b32 s32, s{sI}, 7\ns_add_u32 s{sFL}, s{sFL}, s32\ns_lshl_b32 s32, s3, 2\ns_add_u32 s{sFL}, s{sFL}, s32\ns_add_u32 s{sFL}, s{sFL}, {VF}')
    a(f'v_and_b32 v{vt}, 15, v1\nv_lshlrev_b32 v{vt}, 2, v{vt}\nv_lshrrev_b32 v{ST}, 4, v1\nv_lshl_add_u32 v{vt}, v{ST}, 8, v{vt}')
    a(f's_lshl_b32 s32, s3, 10\ns_add_u32 s32, s32, {RED}\nv_add_u32 v{vRW}, s32, v{vt}')
    a(f'v_lshrrev_b32 v{vt}, 5, v1\nv_lshlrev_b32 v{vPL}, 9, v{vt}\nv_bfe_u32 v{vt}, v1, 2, 2\nv_lshl_add_u32 v{vPL}, v{vt}, 7, v{vPL}\nv_bfe_u32 v{vt}, v1, 4, 1\nv_lshl_add_u32 v{vPL}, v{vt}, 6, v{vPL}\nv_and_b32 v{vt}, 3, v1\nv_lshl_add_u32 v{vPL}, v{vt}, 4, v{vPL}')
    T = ST
    a(f'v_and_b32 v{T}, 127, v0')
    a('s_cmp_ge_u32 s3, 2\ns_cbranch_scc1 RB_INIT_F')
    a(f'v_bfe_u32 v{T+1}, v{T}, 3, 3\nv_lshlrev_b32 v{vRR}, 7, v{T+1}\nv_and_b32 v{T+1}, 1, v{T}\nv_lshl_add_u32 v{vRR}, v{T+1}, 6, v{vRR}')
    a(f'v_lshrrev_b32 v{T+1}, 6, v{T}\nv_lshl_add_u32 v{vRR}, v{T+1}, 5, v{vRR}\nv_bfe_u32 v{T+1}, v{T}, 1, 1\nv_lshl_add_u32 v{vRR}, v{T+1}, 4, v{vRR}\nv_bfe_u32 v{T+1}, v{T}, 2, 1\nv_lshl_add_u32 v{vRR}, v{T+1}, 3, v{vRR}')
    a(f's_lshl_b32 s32, s{sI}, 9\nv_lshl_add_u32 v{vO}, v{T}, 2, s32\ns_branch RB_INIT_D')
    a.label('RB_INIT_F')
    a(f'v_bfe_u32 v{T+1}, v{T}, 2, 3\nv_lshlrev_b32 v{vRR}, 7, v{T+1}\nv_bfe_u32 v{T+1}, v{T}, 1, 1\nv_lshl_add_u32 v{vRR}, v{T+1}, 6, v{vRR}')
    a(f'v_lshrrev_b32 v{T+1}, 5, v{T}\nv_lshl_add_u32 v{vRR}, v{T+1}, 4, v{vRR}\nv_and_b32 v{T+1}, 1, v{T}\nv_lshl_add_u32 v{vRR}, v{T+1}, 3, v{vRR}')
    a(f's_lshl_b32 s32, s{sI}, 9\ns_add_u32 s32, s32, {MEM_ONE}\nv_lshl_add_u32 v{vO}, v{T}, 2, s32')
    a.label('RB_INIT_D')
    a(f's_add_u32 s{sO}, s{sMEM}, {MEM_ONE}\nbuffer_load_dword v{vX}, v{vO}, {wsr()}, s{sO} offen sc1')
    a(f'v_add_u32 v{vRR}, {RED}, v{vRR}\ns_mov_b32 s{sS}, 0\nv_mov_b32 v{vF}, -1\ns_waitcnt vmcnt(0)')
    if diag == 3: a('s_mov_b32 s72, 0\ns_mov_b32 s74, 0\ns_mov_b32 s76, 0\ns_mov_b32 s78, 0\ns_mov_b32 s86, 0')
    a.label('RB_STEP')
    a(f'v_cmp_eq_u32 vcc, -1, v{vF}\ns_cbranch_vccnz RB_VSLOW')
    a.label('RB_VOK')
    stamp(a, 0, diag, 'RB')
    if OPT['rb_msleep']: a(f's_sleep {OPT["rb_msleep"]}')
    mem_gather(a, 'RB_M', sMEM, vP1, vP2, ST, vt, sC, 4, OPT['rb_k'], shadow=[f'v_mov_b32 v{WA+i}, 0' for i in range(32)])
    stamp(a, 1, diag, 'RB')
    if diag == 3: a(f's_add_u32 s72, s72, s{sC}')
    a(f's_add_u32 s32, s{sVP}, 4096\ns_add_u32 s{sFL}, s{sFL}, {FL_STEP}')
    a('s_waitcnt lgkmcnt(0)\ns_barrier')
    ops = [f'ds_read_b128 {vr(ME+4*b,4)}, v{vL16} offset:{1024*b}' for b in (0, 6, 1, 2, 3, 4, 5)]
    nv = len(ops)
    ops.append(f'buffer_store_dword v{vX}, v{vO}, {wsr()}, s{sO} offen sc1')
    if not OPT.get('x_nov'): ops += [f'buffer_load_dwordx4 {vr(VV+4*i,4)}, v{vL16}, {wsr()}, s{sVP if i < 4 else 32} offen offset:{1024*(i%4)} sc1' for i in range(8)]
    ops.append(f'buffer_load_dword v{vF}, off, {wsr()}, s{sFL} sc1')
    lead = []; rest = []
    for b in range(7):
        for u in range(8):
            f = (b*8+u)*2
            if f < 98: rest.append(f'v_smfmac_f32_16x16x64_bf16 {vr(WA+4*u,4)}, {vr(ME+4*b,4)}, {wreg(f, 8)}, v{vIDX}')
            else:
                w = ST+8*(u % 2)
                lead += [f'ds_read_b128 {vr(w,4)}, v{vWL} offset:{(f-98)*1024}', f'ds_read_b128 {vr(w+4,4)}, v{vWL} offset:{(f-97)*1024}',
                         f'v_smfmac_f32_16x16x64_bf16 {vr(WA+4*u,4)}, {vr(ME+4*b,4)}, {vr(w,8)}, v{vIDX}']
    for i in range(7): ops += rest[7*i:7*i+7] + lead[3*i:3*i+3]
    if OPT.get('x_now'): ops = [o for o in ops if 'smfmac' not in o]
    for u in range(8):
        c = WA+4*u; o = ME+8*(u & 1)+2*(u >> 1)
        ops += [f'v_cvt_pk_bf16_f32 v{o}, v{c}, v{c+1}', f'v_cvt_pk_bf16_f32 v{o+1}, v{c+2}, v{c+3}']
    ops += [f'v_mov_b32 v{ME+16+i}, 0' for i in range(8)]
    out, vm, lg = schedule(ops, L=dict(ds=80, vmgap=OPT.get('rb_vgap', 64)), vm_in=[set(regs_of(vr(ST, 16)))] if OPT['rb_k'] > 1 else [], late={nv: 90})
    print('RB w estimate', schedule.cycles)
    for l in out: a(l)
    WK, OA = ME, ME+16
    stamp(a, 2, diag, 'RB')
    sets = [ST, WA, WA+12][:OPT['rb_pk']]
    if diag in (1, 2): a('s_waitcnt vmcnt(0)')
    stamp(a, 3, diag, 'RB')
    if OPT['rb_psleep']: a(f's_sleep {OPT["rb_psleep"]}')
    def issue(k):
        for i in range(3): a(f'buffer_load_dwordx4 {vr(sets[k]+4*i,4)}, v{vPL}, {wsr()}, s{sPM} offen offset:{1024*i} sc1')
        return 3
    poll(a, 'RB_P', [range(s, s+12) for s in sets], issue, vt, sC, 5, OPT['rb_gap'])
    for k in range(len(sets)):
        a.label(f'RB_P_OK{k}')
        for blk in range(3):
            for nt in range(2):
                B = vr(VV+8*(blk*2+nt), 8) if blk < 2 else vr(WK+8*nt, 8)
                a(f'v_smfmac_f32_16x16x64_bf16 {vr(OA+4*nt,4)}, {vr(sets[k]+4*blk,4)}, {B}, v{vIDX}')
        if k < len(sets)-1: a('s_branch RB_P_DONE')
    a.label('RB_P_DONE')
    if diag == 3: a(f's_add_u32 s74, s74, s{sC}')
    stamp(a, 4, diag, 'RB')
    a(f's_add_u32 s{sMEM}, s{sMEM}, {MEM_STEP}\ns_add_u32 s{sO}, s{sMEM}, {MEM_ONE}')
    for nt in range(2):
        for jj in range(2):
            c = OA+4*nt+2*jj
            a(f'v_add_f32 v{c}, v{c}, v{c+1}\nds_write_b32 v{vRW}, v{c} offset:{128*jj+64*nt}')
    a('s_cmp_ge_u32 s3, 2\ns_waitcnt lgkmcnt(0)\ns_barrier')
    R = OA
    a('s_waitcnt vmcnt(0)')
    a(f'ds_read2st64_b64 {vr(R,4)}, v{vRR} offset0:0 offset1:2\nds_read2st64_b64 {vr(R+4,4)}, v{vRR} offset0:4 offset1:6')
    a(f's_waitcnt lgkmcnt(1)\nv_pk_add_f32 {vr(R,2)}, {vr(R,2)}, {vr(R+2,2)}\ns_waitcnt lgkmcnt(0)\nv_pk_add_f32 {vr(R+4,2)}, {vr(R+4,2)}, {vr(R+6,2)}\nv_pk_add_f32 {vr(R,2)}, {vr(R,2)}, {vr(R+4,2)}')
    a(f'v_cvt_pk_bf16_f32 v{vX}, v{R}, v{R+1}')
    a('s_cbranch_scc1 RB_NOLOC')
    a(f'buffer_store_dword v{vX}, v{vO}, {wsr()}, s{sMEM} offen')
    a.label('RB_NOLOC')
    a(f's_add_u32 s{sVP}, s{sVP}, {VP_STEP}\ns_add_u32 s{sPM}, s{sPM}, {PM_STEP}\ns_add_u32 s{sS}, s{sS}, 1')
    stamp(a, 5, diag, 'RB'); dump(a, diag, 1, sS, OA+1, vt)
    a(f's_cmp_lt_u32 s{sS}, 63\ns_cbranch_scc1 RB_STEP')
    a(f'buffer_store_dword v{vX}, v{vO}, {wsr()}, s{sO} offen sc1')
    if diag == 3: a(f's_mov_b32 s{sS}, 0'); dump(a, 1, 1, sS, OA+1, vt, n=8, tag='E')
    a('s_endpgm')
    a.label('RB_VSLOW')
    if diag == 3: a('s_add_u32 s76, s76, 1')
    a(f's_mov_b32 s{sC}, 0')
    a.label('RB_VF')
    a(f'buffer_load_dword v{vF}, off, {wsr()}, s{sFL} sc1')
    guard(a, sC, 3)
    a(f's_waitcnt vmcnt(0)\nv_cmp_eq_u32 vcc, -1, v{vF}\ns_cbranch_vccnz RB_VF\ns_branch RB_VOK')

def gen_PF(a, diag=False):
    vB, vt, vZ = 3, 5, 6
    sXS, sMEM, sS, sC = 23, 24, 25, 26
    AH = OPT.get('pf_ahead', 2)
    a.label('PF')
    a(f's_lshl_b32 s30, s{sI}, 2\ns_add_u32 s30, s30, s3\nv_mov_b32 v{vZ}, 0')
    a(f's_mov_b32 s{sXS}, {XS1}\ns_cmp_eq_u32 s{sL}, 1\ns_cselect_b32 s{sXS}, {XS2}, s{sXS}\ns_mul_i32 s32, s30, 3584\ns_add_u32 s{sXS}, s{sXS}, s32')
    a(f'v_min_u32 v{vB}, 27, v1\nv_lshlrev_b32 v{vB}, 7, v{vB}')
    a(f's_mul_i32 s{sMEM}, s{sL}, {MEM_L}\ns_add_u32 s{sMEM}, s{sMEM}, {MEMX}\ns_mov_b32 s{sS}, 0')
    a(f'v_min_u32 v7, 11, v1\nv_lshlrev_b32 v7, 7, v7\nv_min_u32 v8, 6, v1\nv_lshlrev_b32 v8, 7, v8')
    a(f's_mul_i32 s27, s{sL}, {64*PM_STEP}\ns_mul_i32 s32, s30, 1536\ns_add_u32 s27, s27, s32\ns_add_u32 s27, s27, {PM}')
    a(f's_mul_i32 s32, s30, 896\ns_add_u32 s28, s{sMEM}, s32\ns_add_u32 s28, s28, {MEM_STEP}')
    def slots():
        a(f'buffer_load_dword v9, v7, {wsr()}, s27 offen sc1\nbuffer_load_dword v9, v8, {wsr()}, s28 offen sc1')
        a(f's_add_u32 s27, s27, {PM_STEP}\ns_add_u32 s28, s28, {MEM_STEP}')
    slots(); slots()
    a.label('PF_STEP')
    a(f's_mov_b32 s{sC}, 0\ns_cmp_le_u32 s{sS}, {AH}\ns_cbranch_scc1 PF_SL\ns_add_u32 s{sMEM}, s{sMEM}, {MEM_STEP}')
    a.label('PF_TH')
    a(f'buffer_load_dword v{vt}, v{vZ}, {wsr()}, s{sMEM} offen sc1')
    guard(a, sC, 6)
    a(f's_waitcnt vmcnt(0)\nv_cmp_eq_u32 vcc, -1, v{vt}\ns_cbranch_vccz PF_SL\ns_sleep 4\ns_branch PF_TH')
    a.label('PF_SL')
    slots()
    a.label('PF_X')
    a(f'buffer_load_dword v{vt}, v{vB}, {wsr()}, s{sXS} offen sc1')
    guard(a, sC, 7)
    a(f's_waitcnt vmcnt(0)\nv_cmp_eq_u32 vcc, -1, v{vt}\ns_cbranch_vccz PF_GO\ns_sleep 4\ns_branch PF_X')
    a.label('PF_GO')
    a(f's_add_u32 s{sXS}, s{sXS}, {SEGB}\ns_add_u32 s{sS}, s{sS}, 1')
    a(f's_cmp_lt_u32 s{sS}, 63\ns_cbranch_scc1 PF_STEP\ns_endpgm')
```

```python
KB = 1024
ROW = 896
SEGB = 32 * ROW
AIMG = 0;                      AIMG_SZ = 16 * 4 * 98 * KB
BIMG = AIMG + AIMG_SZ;         BIMG_SZ = 14 * 4 * 112 * KB
FIMG = BIMG + BIMG_SZ;         FIMG_SZ = 7 * 4 * 112 * KB
XS1  = FIMG + FIMG_SZ;         XS_SZ = 2048 * ROW
SYNC = XS1 + XS_SZ
EPOCH = SYNC; FLA = SYNC + 4096; FLH = SYNC + 8192
VP   = SYNC + 12288;           VP_STEP = 14 * 4 * 8 * KB;  VP_SZ = 128 * VP_STEP
MEMX = VP + VP_SZ;             MEM_ONE = 8 * ROW; MEM_L = 3 * MEM_ONE; MEM_STEP = 2 * MEM_L
POI0 = MEMX + MEM_STEP
XS2  = MEMX + 64 * MEM_STEP
X1   = XS2 + XS_SZ
XR2  = X1 + 2 * XS_SZ
PM   = XR2 + XS_SZ;            PM_STEP = 12 * KB
PP   = PM + 128 * PM_STEP;     PP_HEAD = 2560; PP_STEP = 16 * PP_HEAD
FLG  = PP + 128 * PP_STEP
VF   = FLG;                    FL_STEP = 14 * 128
TKT  = VF + 128 * FL_STEP
RING = TKT + 16 * 128;         RING_J = SEGB; RING_SET = 7 * RING_J; RING_SLOT = 6 * RING_SET
POI1 = RING + RING_SLOT
POI_PER_WAVE = -(-(POI1 - POI0) // (768 * KB))
POI_W0 = -(-(POI1 - POI0) // (1024 * KB))
WS_USED = max(POI0 + POI_W0 * 1024 * KB, POI0 + POI_PER_WAVE * 768 * KB, RING + 3 * RING_SLOT)
INIT = [(MEMX + MEM_STEP, 6 * MEM_STEP), (XS2, 6 * SEGB), (XR2, 6 * SEGB), (X1, 3 * SEGB), (X1 + XS_SZ, 3 * SEGB),
        (PM, 2 * PM_STEP), (PM + 64 * PM_STEP, 2 * PM_STEP), (PP, 6 * PP_STEP), (PP + 64 * PP_STEP, 6 * PP_STEP), (VF, RING + RING_SLOT - VF)]
INIT_W = 3
INIT_N = [-(-n // (INIT_W * KB)) for _, n in INIT]
assert sum(INIT_N) <= 1024
OOB = 0x7fff0000
DBG = WS_USED
assert WS_USED + (1 << 22) < (1 << 28)

P0 = [0, 4, 7, 11]; SINGLE = [6, 7, 20, 21]
def a_tile(w, tl): return SINGLE[w] if tl == 6 else 2 * (P0[w] + (tl >> 1)) + (tl & 1)
def pi(g, e): return 4 * g + e if e < 4 else 16 + 4 * g + e - 4
def a_frag(T, tl): return ((T >> 1) * 7 + tl) * 2 + (T & 1)
def b_frag(T, u): return ((T >> 1) * 8 + u) * 2 + (T & 1)
def kseq(kp): return 2 * kp if kp < 4 else 2 * (kp - 4) + 1
MT = 14 * KB
SCALE = (1.0 / 16) * 1.4426950408889634
if __name__ == '__main__':
    for k, v in list(globals().items()):
        if isinstance(v, int): print(k, v, hex(v))
```

```python
from common import *
from layout import *
import rec, p0
from rec import WS, sL, sI, sREP, wsr
NAME = 'interleave_layers__memory_aug_recurrent_mem_tr__dense_activation_silu__prompt_kernel'
LDS = 160 * KB
NCH = 9
def gen(roles=('RA', 'RB', 'PF', 'PA', 'PB', 'FF'), diag=False):
    a = Asm()
    a('s_cmp_ge_u32 s2, 256\ns_cbranch_scc1 END')
    if diag: a('s_memrealtime s[80:81]')
    a('s_load_dwordx4 s[40:43], s[0:1], 0\ns_load_dwordx4 s[44:47], s[0:1], 16\ns_load_dwordx4 s[48:51], s[0:1], 32\ns_load_dwordx4 s[52:55], s[0:1], 64')
    a('s_load_dwordx4 s[8:11], s[0:1], 80\ns_load_dwordx2 s[4:5], s[0:1], 96')
    a('s_getreg_b32 s19, hwreg(HW_REG_XCC_ID, 0, 4)')
    a('v_and_b32 v1, 63, v0\nv_lshrrev_b32 v2, 6, v0\ns_nop 0\nv_readfirstlane_b32 s3, v2')
    a('s_and_b32 s19, s19, 7\ns_waitcnt lgkmcnt(0)\ns_mov_b32 s6, s40\ns_mov_b32 s7, s41')
    srd(a, WS, 4, 1 << 28); srd(a, 92, 10, 256)
    rec.dstamp(a, 's_cmp_eq_u32 s2, 0\ns_cselect_b32 s88, 0, 512')
    if rec.OPT.get('warm', 1):
        a('s_getpc_b64 s[56:57]')
        a.label('PC0')
        a('s_lshr_b32 s20, s2, 3\ns_lshl_b32 s20, s20, 2\ns_add_u32 s20, s20, s3\ns_lshl_b32 s20, s20, 9')
        a('v_and_b32 v2, 3, v1\nv_lshlrev_b32 v2, 7, v2\nv_add_u32 v2, s20, v2\nv_min_u32 v2, CODE_END-PC0-4, v2\nglobal_load_dword v252, v2, s[56:57]')
    a(f's_lshl_b32 s20, s2, 2\ns_add_u32 s20, s20, s3\ns_cmp_lg_u32 s20, 1023\ns_cbranch_scc1 TAG_NO\ns_mov_b32 s20, {EPOCH}')
    a(f'buffer_load_dword v2, off, {wsr()}, s20 sc1\ns_waitcnt vmcnt(0)\nv_or_b32 v2, 7, v2\nv_add_u32 v2, 1, v2\nv_max_u32 v2, 8, v2')
    a(f'buffer_store_dword v2, off, {wsr()}, s20 sc1\ns_waitcnt vmcnt(0)\nbuffer_store_dword v2, off, s[92:95], 0 offset:128 sc1')
    a.label('TAG_NO')
    p0.gen(a, WS, diag)
    if diag: a('s_memrealtime s[82:83]')
    a('s_waitcnt vmcnt(0)\ns_barrier\ns_cmp_lg_u32 s3, 0\ns_cbranch_scc1 TK_WAIT')
    a(f'v_mov_b32 v251, s{rec.sNON}\ns_lshl_b32 s20, s2, 2\ns_add_u32 s20, s20, {FLA}\nbuffer_store_dword v251, off, {wsr()}, s20 sc1')
    a(f'v_lshlrev_b32 v16, 4, v1\ns_mov_b32 s58, {FLH}\ns_mov_b32 s59, 0')
    a.label('TA_L')
    a(f'buffer_load_dwordx4 v[12:15], v16, {wsr()}, s58 offen sc1')
    rec.guard(a, 59, 17)
    a('s_waitcnt vmcnt(0)')
    for i in range(4): a(f'v_subrev_u32 v{12+i}, s{rec.sNON}, v{12+i}')
    a('v_or3_b32 v17, v12, v13, v14\nv_or_b32 v17, v17, v15\nv_cmp_lt_u32 vcc, 7, v17\ns_cbranch_vccz TA_OK\ns_sleep 1\ns_branch TA_L')
    a.label('TA_OK')
    a('s_mov_b32 s91, 0')
    for i in range(4):
        a(f'v_cmp_eq_u32 vcc, s19, v{12+i}\ns_add_u32 s20, s2, {3-i}\ns_lshr_b32 s20, s20, 2\ns_bfm_b64 s[56:57], s20, 0\ns_cmp_eq_u32 s20, 64\ns_cselect_b64 s[56:57], -1, s[56:57]')
        a('s_and_b64 s[56:57], s[56:57], vcc\ns_bcnt1_i32_b64 s20, s[56:57]\ns_add_u32 s91, s91, s20')
    a('v_mov_b32 v3, 0\nv_mov_b32 v12, s91\nds_write_b32 v3, v12\ns_waitcnt lgkmcnt(0)')
    a.label('TK_WAIT')
    a('s_barrier\nv_mov_b32 v3, 0\nds_read_b32 v12, v3\ns_waitcnt lgkmcnt(0)\nv_readfirstlane_b32 s91, v12\ns_barrier')
    if diag:
        a(f's_memrealtime s[84:85]\ns_waitcnt lgkmcnt(0)\nv_mov_b32 v12, s80\nv_mov_b32 v13, s82\nv_mov_b32 v14, s84\nv_mov_b32 v15, s86')
        a(f's_lshl_b32 s60, s2, 2\ns_add_u32 s60, s60, s3\ns_lshl_b32 s60, s60, 4\ns_add_u32 s60, s60, {DBG + (1<<20)}\nbuffer_store_dwordx4 v[12:15], off, {wsr()}, s60\ns_mov_b32 s82, s84')
    rec.dstamp(a, 's_cmp_eq_u32 s2, 0\ns_cselect_b32 s88, 4, 512')
    a('s_mov_b32 s20, s91\ns_cmp_ge_u32 s20, 32\ns_cbranch_scc1 END')
    tgt = lambda r: r if r in roles else 'END'
    a('s_cmp_ge_u32 s19, 2\ns_cbranch_scc1 NOT_R')
    a(f's_mov_b32 s{sL}, s19\ns_mov_b32 s{sI}, s20\ns_cmp_lt_u32 s20, 16\ns_cbranch_scc1 {tgt("RA")}')
    a(f's_sub_u32 s{sI}, s20, 16\ns_cmp_lt_u32 s20, 30\ns_cbranch_scc1 {tgt("RB")}\ns_sub_u32 s{sI}, s20, 30\ns_branch {tgt("PF")}')
    a.label('NOT_R')
    a('s_cmp_ge_u32 s19, 4\ns_cbranch_scc1 NOT_PA')
    a(f's_and_b32 s{sI}, s20, 7\ns_and_b32 s21, s19, 1\ns_lshl_b32 s21, s21, 3\ns_add_u32 s{sI}, s{sI}, s21\ns_lshr_b32 s{sL}, s20, 4\ns_bfe_u32 s{sREP}, s20, 0x10003\ns_branch {tgt("PA")}')
    a.label('NOT_PA')
    a('s_and_b32 s21, s19, 1\ns_cmp_ge_u32 s19, 6\ns_cbranch_scc1 PB_HI')
    a('s_cmp_ge_u32 s20, 21\ns_cbranch_scc1 PB_LO')
    a(f's_mov_b32 s{sL}, s21\ns_mul_i32 s{sREP}, s20, 37\ns_lshr_b32 s{sREP}, s{sREP}, 8\ns_mul_i32 s22, s{sREP}, 7\ns_sub_u32 s{sI}, s20, s22\ns_branch {tgt("FF")}')
    a.label('PB_LO')
    a(f's_mov_b32 s{sL}, s21\ns_mov_b32 s{sI}, 7\ns_mov_b32 s{sREP}, 0\ns_cmp_ge_u32 s20, 31\ns_cbranch_scc1 {tgt("FF")}\ns_mul_i32 s21, s21, 10\ns_add_u32 s21, s21, 43\ns_add_u32 s21, s21, s20\ns_branch PB_IDX')
    a.label('PB_HI')
    a('s_lshl_b32 s21, s21, 5\ns_add_u32 s21, s21, s20')
    a.label('PB_IDX')
    a(f's_mul_i32 s{sI}, s21, 43\ns_lshr_b32 s{sI}, s{sI}, 8\ns_mul_i32 s22, s{sI}, 6\ns_sub_u32 s22, s21, s22')
    a(f's_cmp_ge_u32 s22, 3\ns_cselect_b32 s{sL}, 1, 0\ns_mul_i32 s23, s{sL}, 3\ns_sub_u32 s{sREP}, s22, s23\ns_branch {tgt("PB")}')
    a.label('FAIL')
    a('s_lshl_b32 s99, s99, 2\nv_mov_b32 v3, s2\nv_add_u32 v3, 1, v3\nbuffer_store_dword v3, off, s[92:95], s99 offset:160')
    a.label('END')
    a('s_endpgm')
    if 'RA' in roles: rec.gen_RA(a, diag)
    if 'RB' in roles: rec.gen_RB(a, diag)
    if 'PF' in roles: rec.gen_PF(a, diag)
    if set(roles) & {'PA', 'PB', 'FF'}:
        import par
        if 'PA' in roles: par.gen_PA(a, diag)
        if 'PB' in roles: par.gen_PB(a, diag)
        if 'FF' in roles: par.gen_FF(a, diag)
    a.label('CODE_END')
    return khead(NAME) + a.finish(), kdesc(NAME, 512, 256)
def full(roles=('RA', 'RB', 'PF', 'PA', 'PB', 'FF'), diag=False, header=''):
    c1, d1 = gen(roles, diag)
    return (header + f'; @launch grid=(256,1,1) block=(256,1,1) lds={LDS}\n'
            '.amdgcn_target "amdgcn-amd-amdhsa--gfx950"\n' + c1 + d1)
if __name__ == '__main__':
    import sys
    open('m.s', 'w').write(full(tuple(sys.argv[1].split(',')), True))
```

```python
from common import *
from layout import *
from rec import OPT, guard, sNON
MF = 'v_mfma_f32_16x16x32_bf16'
def gen(a, WS, diag=0):
    ws = f's[{WS}:{WS+3}]'
    SA, SB, SX = 24, 28, 32
    NT = OPT.get('p0pol', 'nt'); SP = OPT.get('p0st', 'sc1'); NB = OPT.get('p0b', '')
    def st(n):
        if diag and (n in (0, 3, 12, 13, 14) or OPT.get('p0all')): a(f's_memrealtime s[88:89]\ns_waitcnt lgkmcnt(0)\nv_writelane_b32 v253, s88, {n}')
    vX, vG, vL16, vOFF, vT, vRD = 2, 3, 4, 5, 6, 11
    AL, RING0, LNB = 0, 32*KB, 144*KB
    a(f'v_and_b32 v{vX}, 15, v1\nv_lshrrev_b32 v{vG}, 4, v1\nv_lshlrev_b32 v{vL16}, 4, v1')
    a('s_and_b32 s20, s2, 7\ns_lshr_b32 s21, s2, 3')
    srd(a, SX, 40, XS_SZ)
    if OPT.get('p0page'):
        a(f'v_lshlrev_b32 v7, 16, v1\ns_lshl_b32 s22, s3, 22\nbuffer_load_dword v249, v7, {ws}, s22 offen nt')
    a(f'v_lshrrev_b32 v{vT}, 2, v1\nv_lshlrev_b32 v{vT}, 6, v{vT}\nv_and_b32 v7, 3, v1\nv_lshl_add_u32 v8, v7, 3, v{vT}')
    a('v_cmp_gt_u32 vcc, 56, v1')
    a('v_mov_b32 v7, 0x7fffffff\nv_cndmask_b32 v8, v7, v8, vcc\nv_cndmask_b32 v9, 0, 1.0, vcc')
    a(f's_lshl_b32 s22, s2, 3\ns_lshl_b32 s23, s3, 1\ns_add_u32 s22, s22, s23\ns_mul_i32 s22, s22, {ROW}')
    for t in range(2):
        for hf in range(2): a(f'buffer_load_dwordx2 {vr(12+4*t+2*hf,2)}, v8, s[{SX}:{SX+3}], s22 offen offset:{ROW*t+32*hf} {NT}')
    NP = INIT_W
    def poison(later=False):
        a(f's_lshl_b32 s22, s2, 2\ns_add_u32 s22, s22, s3\ns_mov_b32 s23, {OOB}')
        n0 = 0
        for (base, _), n in zip(INIT, INIT_N):
            a(f's_sub_u32 s70, s22, {n0}\ns_mul_i32 s71, s70, {INIT_W*KB}\ns_add_u32 s71, s71, {base}\ns_cmp_lt_u32 s70, {n}\ns_cselect_b32 s23, s71, s23'); n0 += n
        for i in range(4): a(f'v_mov_b32 v{228+i}, -1')
        for i in range(NP): a(f'buffer_store_dwordx4 v[228:231], v{vL16}, {ws}, s23 offen offset:{i*1024} sc1')
        return []
    def hello(k):
        a('s_mov_b32 s23, 0')
        a.label(f'TAG_L{k}')
        a('buffer_load_dword v251, off, s[92:95], 0 offset:128 sc1')
        guard(a, 23, 19)
        a(f's_waitcnt vmcnt(0)\nv_cmp_eq_u32 vcc, 0, v251\ns_cbranch_vccnz TAG_L{k}')
        a(f'v_readfirstlane_b32 s{sNON}, v251\nv_add_u32 v251, s19, v251\ns_lshl_b32 s23, s2, 2\ns_add_u32 s23, s23, {FLH}\nbuffer_store_dword v251, off, {ws}, s23 sc1')
    def ln_compute():
        a(f'v_mul_u32_u24 v10, 144, v1\ns_lshl_b32 s23, s3, 5\ns_add_u32 s23, s23, {LNB}\nv_add_u32 v10, s23, v10')
        for t in range(2):
            unpack8(a, 232, 12+4*t); layernorm8(a, 232, 240, 9); pack8(a, 244, 232)
            a(f'ds_write_b128 v10, v[244:247] offset:{16*t}')
    def ln_store():
        a(f'v_lshrrev_b32 v10, 3, v1\nv_and_b32 v7, 7, v1\nv_mul_u32_u24 v8, 144, v10\nv_lshl_add_u32 v8, v7, 4, v8\nv_lshlrev_b32 v10, 8, v10\nv_lshl_add_u32 v10, v7, 4, v10')
        a(f's_mul_i32 s23, s3, {8*144}\ns_add_u32 s23, s23, {LNB}\nv_add_u32 v8, s23, v8')
        a(f'ds_read_b128 v[232:235], v8\nds_read_b128 v[236:239], v8 offset:{32*144}')
        a(f's_lshr_b32 s22, s2, 1\ns_mul_i32 s22, s22, {MT}\ns_and_b32 s23, s2, 1\ns_lshl_b32 s23, s23, 7\ns_add_u32 s22, s22, s23\ns_lshl_b32 s23, s3, 11\ns_add_u32 s22, s22, s23\ns_add_u32 s22, s22, {XS1}')
        a(f's_cmp_eq_u32 s3, 3\ns_cselect_b32 s23, 0x7fff0000, 0\ns_add_u32 s23, s23, 8192\nv_add_u32 v7, s23, v10')
        a(f's_waitcnt lgkmcnt(0)\nbuffer_store_dwordx4 v[232:235], v10, {ws}, s22 offen {SP}\nbuffer_store_dwordx4 v[236:239], v7, {ws}, s22 offen {SP}')
    a(f'v_sub_u32 v7, 4, v{vG}\nv_xor_b32 v7, v7, v1\nv_and_b32 v7, 3, v7\nv_lshrrev_b32 v{vT}, 2, v1')
    a(f'v_lshrrev_b32 v10, 2, v{vX}\nv_sub_u32 v10, 4, v10\nv_xor_b32 v10, v10, v{vG}\nv_and_b32 v10, 3, v10\nv_lshl_add_u32 v10, v{vX}, 2, v10\nv_lshlrev_b32 v{vRD}, 4, v10')
    a('s_cmp_ge_u32 s21, 28\ns_cbranch_scc1 P0_W')
    a('s_mul_i32 s34+2, s21, 37'.replace('s34+2', 's36')); a('s_lshr_b32 s36, s36, 8\ns_mul_i32 s37, s36, 7\ns_sub_u32 s37, s21, s37')
    a('s_lshr_b32 s38, s36, 1\ns_lshl_b32 s39, s20, 1\ns_add_u32 s38, s38, s39')
    hm = OPT.get('p0map', 0)
    if hm == 1: a('s_and_b32 s39, s36, 1\ns_lshl_b32 s39, s39, 1\ns_add_u32 s38, s38, s39\ns_and_b32 s38, s38, 15')
    if hm == 2: a('s_and_b32 s38, s20, 3\ns_lshl_b32 s38, s38, 2\ns_add_u32 s38, s38, s36\ns_lshr_b32 s36, s20, 2')
    a(f'v_lshlrev_b32 v{vOFF}, 13, v{vT}\nv_lshl_add_u32 v{vOFF}, v7, 4, v{vOFF}')
    a('s_lshl_b32 s56, s37, 2\ns_add_u32 s56, s56, s3\ns_lshl_b32 s56, s56, 17\ns_lshl_b32 s57, s38, 9\ns_add_u32 s56, s56, s57')
    a('s_and_b32 s58, s36, 1\ns_cmp_eq_u32 s58, 1\ns_cselect_b32 s60, s48, s44\ns_cselect_b32 s61, s49, s45')
    srd(a, SA, 60, 448 * 8192)
    for i in range(8): a(f's_lshl_b32 s{62+i}, s37, {OPT.get("p0rot", 1)}\ns_add_u32 s{62+i}, s{62+i}, {i}\ns_and_b32 s{62+i}, s{62+i}, 7')
    if OPT.get('p0touch', 1):
        a('s_cselect_b32 s70, s50, s46\ns_cselect_b32 s71, s51, s47'.replace('s_cselect_b32 s70', 's_cmp_eq_u32 s58, 1\ns_cselect_b32 s70'))
        srd(a, SB, 70, 448 * 8192)
        a(f's_lshl_b32 s70, s37, 2\ns_add_u32 s70, s70, s3\ns_lshl_b32 s70, s70, 6\nv_add_u32 v10, s70, v1\nv_lshrrev_b32 v8, 2, v10\nv_lshlrev_b32 v8, 13, v8\nv_and_b32 v227, 3, v10\nv_lshl_add_u32 v8, v227, 7, v8')
        a(f'v_add_u32 v8, s57, v8\nv_lshlrev_b32 v10, 7, v10\ns_mul_i32 s70, s38, {256*ROW}\nv_add_u32 v10, s70, v10\ns_cmp_eq_u32 s58, 1\ns_cselect_b64 vcc, -1, 0\nv_cndmask_b32 v8, v8, v10, vcc')
        a(f'buffer_load_dword v227, v8, s[{SB}:{SB+3}], 0 offen {OPT.get("p0t", "nt")}')
    a('s_lshl_b32 s59, s3, 13')
    for i in range(8):
        a(f's_lshl_b32 s70, s{62+i}, 6\ns_add_u32 s70, s70, s56\ns_add_u32 m0, s59, {AL+i*1024}')
        a(f'buffer_load_dwordx4 v{vOFF}, s[{SA}:{SA+3}], s70 offen {NT} lds')
    TR0 = 220
    ACC = 20
    AFB = [132, 148]; BFB = [164, 192]
    def kloop(kind, R, n, slot, dma, reads):
        q = 0
        pos = {}
        st(0); a('s_waitcnt vmcnt(9)'); st(1); ln_compute(); st(2)
        hello(kind)
        for i in range(R): dma(i); q += n; pos[i] = q
        a(f's_waitcnt vmcnt({q}) lgkmcnt(0)'); st(3); a('s_barrier'); st(4)
        ln_store(); q += 2
        pois = poison(); q += NP
        def rd(i): return [f'ds_read_b128 {vr(AFB[i&1]+4*it,4)}, v{vRD} offset:{AL+it*8192+i*1024}' for it in range(4)] + reads(i, BFB[i&1])
        a(f's_waitcnt vmcnt({q-pos[0]})')
        for l in rd(0): a(l)
        for i in range(8):
            a('s_waitcnt lgkmcnt(0)'); st(5+i)
            if i + R < 8: dma(i+R); q += n; pos[i+R] = q
            nxt = []
            if i < 7: a(f's_waitcnt vmcnt({q-pos[i+1]})'); nxt = rd(i+1)
            for tl in range(7):
                for it in range(4):
                    c = vr(ACC+4*(it*7+tl), 4)
                    a(f'{MF} {c}, {vr(AFB[i&1]+4*it,4)}, {vr(BFB[i&1]+4*tl,4)}, {c if i else 0}')
                    if nxt: a(nxt.pop(0))
                    elif pois and it == 3: a(pois.pop(0)); q += 1
        for l in pois: a(l)
    a('s_cmp_eq_u32 s58, 1\ns_cbranch_scc1 P0_B')
    srd(a, SB, 46, 448 * 8192)
    a('s_mul_i32 s71, s3, 7\ns_add_u32 s71, s71, 1\ns_lshr_b32 s71, s71, 1\ns_lshl_b32 s71, s71, 18\ns_add_u32 s71, s71, s57')
    for tl in range(6): a(f's_add_u32 s{72+tl}, s71, {tl*131072}')
    a('s_lshr_b32 s71, s3, 1\ns_mul_i32 s71, s71, 14\ns_and_b32 s79, s3, 1\ns_add_u32 s71, s71, s79\ns_add_u32 s71, s71, 6\ns_lshl_b32 s71, s71, 17\ns_add_u32 s78, s71, s57')
    a(f's_mul_i32 s59, s3, {28*KB}\ns_add_u32 s59, s59, {RING0}\nv_add_u32 v220, s59, v{vRD}')
    def dmaA(i):
        a(f's_lshl_b32 s71, s{62+i}, 6')
        for tl in range(7):
            a(f's_add_u32 s70, s71, s{72+tl}\ns_add_u32 m0, s59, {(i % 4)*7168+tl*1024}\nbuffer_load_dwordx4 v{vOFF}, s[{SB}:{SB+3}], s70 offen {NB} lds')
    kloop(0, 4, 7, 7168, dmaA, lambda i, d: [f'ds_read_b128 {vr(d+4*tl,4)}, v220 offset:{(i % 4)*7168+tl*1024}' for tl in range(7)])
    if diag: a('s_memrealtime s[86:87]')
    a(f's_mov_b32 s79, {f2u(SCALE):#x}')
    a(f's_lshl_b32 s71, s38, 2\ns_add_u32 s71, s71, s3\ns_mul_i32 s71, s71, {98*KB}\ns_mul_i32 s70, s37, {14*KB}\ns_add_u32 s71, s71, s70')
    if AIMG: a(f's_add_u32 s71, s71, {AIMG}')
    for tl in range(7):
        for Tp in range(2):
            o = 132 + 4 * ((tl*2+Tp) % 8)
            for hf in range(2):
                c = ACC + 4*((2*Tp+hf)*7+tl)
                for i in range(4): a(f'v_mul_f32 v{c+i}, s79, v{c+i}')
                a(f'v_cvt_pk_bf16_f32 v{o+2*hf}, v{c}, v{c+1}\nv_cvt_pk_bf16_f32 v{o+2*hf+1}, v{c+2}, v{c+3}')
            f = tl*2+Tp
            if f and f % 4 == 0: a('s_add_u32 s71, s71, 4096')
            a(f'buffer_store_dwordx4 {vr(o,4)}, v{vL16}, {ws}, s71 offen offset:{(f%4)*1024} {SP}')
    a('s_branch P0_END')
    a.label('P0_B')
    srd(a, SB, 50, 4096 * ROW)
    for v in range(2):
        a(f'v_lshlrev_b32 v7, 1, v{vG}\nv_xor_b32 v7, {8*v}, v7\nv_xor_b32 v7, v7, v{vX}\nv_mul_u32_u24 v{248+v}, {ROW}, v{vG}\nv_lshl_add_u32 v{248+v}, v7, 4, v{248+v}')
    a(f's_mul_i32 s72, s38, {256*ROW}\ns_mul_i32 s71, s3, 224\ns_add_u32 s72, s72, s71')
    a(f's_mul_i32 s59, s3, {24*KB}\ns_add_u32 s59, s59, {RING0}')
    a(f'v_lshrrev_b32 v7, 2, v{vX}\nv_and_b32 v8, 1, v{vG}\nv_lshl_add_u32 v8, v8, 2, v7\nv_lshl_add_u32 v7, v{vG}, 3, v7\nv_lshlrev_b32 v7, 8, v7\nv_and_b32 v10, 3, v1\nv_lshl_add_u32 v7, v10, 3, v7\nv_add_u32 v7, s59, v7')
    for tl in range(7): a(f'v_xor_b32 v10, {tl}, v8\nv_lshl_add_u32 v{TR0+tl}, v10, 5, v7')
    def dmaB(i):
        a(f's_mul_i32 s71, s{62+i}, {32*ROW}\ns_add_u32 s71, s71, s72')
        for j in range(8):
            a(f's_add_u32 s70, s71, {4*j*ROW}\ns_add_u32 m0, s59, {(i % 3)*8192+j*1024}\nbuffer_load_dwordx4 v{248+((j>>1)&1)}, s[{SB}:{SB+3}], s70 offen {NB} lds')
    kloop(1, 3, 8, 8192, dmaB, lambda i, d: [f'ds_read_b64_tr_b16 {vr(d+4*tl+2*hf,2)}, v{TR0+tl} offset:{(i % 3)*8192+1024*hf}' for tl in range(7) for hf in range(2)])
    if diag: a('s_memrealtime s[86:87]')
    a(f's_lshr_b32 s71, s38, 2\ns_mul_i32 s71, s71, {112*KB}\ns_lshl_b32 s70, s37, 14\ns_add_u32 s71, s71, s70')
    a(f's_and_b32 s70, s38, 3\ns_lshl_b32 s70, s70, 12\ns_add_u32 s71, s71, s70\ns_add_u32 s71, s71, {BIMG}\ns_mul_i32 s72, s3, 7')
    for tl in range(7):
        a(f's_add_u32 s73, s72, {tl}\ns_lshr_b32 s74, s73, 1\ns_mul_i32 s74, s74, {4*112*KB}\ns_and_b32 s73, s73, 1\ns_lshl_b32 s73, s73, 11\ns_add_u32 s74, s74, s73\ns_add_u32 s74, s74, s71')
        for Tp in range(2):
            o = 132 + 4 * ((tl*2+Tp) % 8)
            for hf in range(2):
                c = ACC + 4*((2*Tp+hf)*7+tl)
                a(f'v_cvt_pk_bf16_f32 v{o+2*hf}, v{c}, v{c+1}\nv_cvt_pk_bf16_f32 v{o+2*hf+1}, v{c+2}, v{c+3}')
            a(f'buffer_store_dwordx4 {vr(o,4)}, v{vL16}, {ws}, s74 offen offset:{Tp*1024} {SP}')
    a('s_branch P0_END')
    a.label('P0_W')
    a('s_sub_u32 s36, s21, 28\ns_lshl_b32 s36, s36, 3\ns_add_u32 s36, s36, s20')
    a('s_cmp_ge_u32 s36, 28\ns_cbranch_scc1 P0_MEM')
    a('s_lshl_b32 s36, s36, 2\ns_add_u32 s36, s36, s3')
    a('s_cmp_ge_u32 s36, 56\ns_cselect_b32 s58, 1, 0\ns_cselect_b32 s60, s54, s52\ns_cselect_b32 s61, s55, s53')
    srd(a, SB, 60, 448 * 3584)
    a(f's_mov_b32 s62, 3584\ns_cselect_b32 s62, {ROW}, s62')
    a('s_sub_u32 s37, s36, 56\ns_mul_i32 s38, s37, 37\ns_lshr_b32 s38, s38, 8\ns_mul_i32 s39, s38, 7\ns_sub_u32 s39, s37, s39')
    a('s_lshr_b32 s63, s36, 1\ns_and_b32 s64, s36, 1\ns_cmp_eq_u32 s58, 1\ns_cselect_b32 s39, s39, s63\ns_cselect_b32 s38, s38, s64')
    a('s_mul_i32 s63, s38, 224\ns_mul_i32 s63, s63, s62\ns_lshl_b32 s64, s39, 7\ns_add_u32 s63, s63, s64\ns_lshl_b32 s65, s62, 3')
    a(f'v_lshrrev_b32 v7, 3, v1\nv_mul_lo_u32 v{vOFF}, s62, v7\nv_bfe_u32 v7, v1, 1, 2\nv_xor_b32 v7, v7, v{vG}\nv_lshl_add_u32 v{vOFF}, v7, 5, v{vOFF}\nv_and_b32 v7, 1, v1\nv_lshl_add_u32 v{vOFF}, v7, 4, v{vOFF}')
    a(f's_mul_i32 s59, s3, {28*KB}')
    for it in range(28):
        if it: a('s_add_u32 s63, s63, s65')
        a(f's_add_u32 m0, s59, {it*1024}\nbuffer_load_dwordx4 v{vOFF}, s[{SB}:{SB+3}], s63 offen {NT} lds')
    a(f'v_lshlrev_b32 v8, 7, v{vT}\nv_and_b32 v7, 3, v1\nv_lshl_add_u32 v8, v7, 3, v8\nv_add_u32 v8, s59, v8\nv_bfe_u32 v7, v1, 3, 2')
    for t in range(4): a(f'v_xor_b32 v10, {t}, v7\nv_lshl_add_u32 v{TR0+t}, v10, 5, v8')
    st(0); a('s_waitcnt vmcnt(28)'); st(1); ln_compute(); st(2)
    hello(2)
    a('s_waitcnt lgkmcnt(0)\ns_barrier'); st(4); ln_store()
    a(f's_mul_i32 s66, s39, {112*KB}\ns_mul_i32 s67, s38, {28*KB}\ns_add_u32 s66, s66, s67\ns_add_u32 s66, s66, {FIMG}')
    for t in range(4):
        a(f's_lshl_b32 s70, s39, 1\ns_add_u32 s70, s70, {t >> 1}\ns_cmp_ge_u32 s70, 7\ns_cselect_b32 s72, 7, 0\ns_cselect_b32 s71, 2, 0\ns_sub_u32 s70, s70, s72')
        a(f's_lshl_b32 s72, s70, 1\ns_add_u32 s72, s72, {t & 1}\ns_sub_u32 s74, s72, 8\ns_cmp_gt_u32 s70, 3\ns_cselect_b32 s72, s74, s72\ns_cselect_b32 s75, 1, 0')
        a(f's_cmp_eq_u32 s70, 3\ns_cselect_b32 s72, 6, s72\ns_cselect_b32 s75, {t & 1}, s75\ns_add_u32 s75, s75, s71')
        a(f's_mul_i32 s75, s75, {112*KB}\ns_lshl_b32 s72, s72, 10\ns_add_u32 s75, s75, s72\ns_add_u32 s75, s75, {FIMG+56*KB}\ns_add_u32 s72, s66, {t*KB}\ns_cmp_eq_u32 s58, 1\ns_cselect_b32 s{76+t}, s75, s72')
    a('s_mul_i32 s73, s38, 7')
    D = 20
    q = 0
    for T in range(7):
        for t in range(4):
            for p in range(2): a(f'ds_read_b64_tr_b16 {vr(D+16*T+4*t+2*p,2)}, v{TR0+t} offset:{4096*T+2048*p}')
        a(f's_add_u32 s70, s73, {T}\ns_lshr_b32 s71, s70, 3\ns_mul_i32 s71, s71, {4*112*KB}\ns_and_b32 s72, s70, 1\ns_lshl_b32 s72, s72, 2\ns_bfe_u32 s70, s70, 0x20001\ns_add_u32 s70, s70, s72\ns_mul_i32 s70, s70, {7*KB}\ns_add_u32 s71, s71, s70')
        a(f's_cmp_eq_u32 s58, 1\ns_cselect_b32 s71, s71, {4*T*KB}')
        for t in range(4):
            a(f's_add_u32 s74, s71, s{76+t}\ns_waitcnt lgkmcnt({6-2*t})\nbuffer_store_dwordx4 {vr(D+16*T+4*t,4)}, v{vL16}, {ws}, s74 offen {SP}'); q += 1
        st(5+T)
    poison()
    a('s_branch P0_END')
    a.label('P0_MEM')
    poison()
    a(f's_waitcnt vmcnt({NP})'); ln_compute(); hello(3)
    a('s_waitcnt lgkmcnt(0)\ns_barrier'); ln_store()
    a('s_cmp_lg_u32 s36, 31\ns_cbranch_scc1 P0_END')
    srd(a, SB, 42, MEM_ONE)
    a('v_lshrrev_b32 v32, 2, v0\nv_and_b32 v33, 3, v0\nv_bfe_u32 v34, v32, 1, 3\nv_and_b32 v35, 1, v32\nv_lshrrev_b32 v36, 4, v32')
    a(f'v_mul_u32_u24 v37, {ROW}, v34')
    a('v_lshrrev_b32 v38, 1, v36\nv_lshl_add_u32 v37, v38, 6, v37\nv_and_b32 v38, 1, v33\nv_lshl_add_u32 v37, v38, 5, v37')
    a('v_and_b32 v38, 1, v36\nv_lshl_add_u32 v37, v38, 4, v37\nv_lshrrev_b32 v38, 1, v33\nv_lshl_add_u32 v37, v38, 3, v37\nv_lshl_add_u32 v37, v35, 2, v37')
    for i in range(7): a(f'buffer_load_dword v{40+i}, v37, s[{SB}:{SB+3}], 0 offen offset:{128*i}')
    a(f'v_bfe_u32 v33, v0, 2, 3\nv_mul_u32_u24 v35, {ROW}, v33\nv_lshrrev_b32 v36, 7, v0\nv_lshl_add_u32 v35, v36, 6, v35\nv_bfe_u32 v36, v0, 1, 1\nv_lshl_add_u32 v35, v36, 5, v35')
    a('v_bfe_u32 v36, v0, 5, 2\nv_lshl_add_u32 v35, v36, 3, v35\nv_and_b32 v36, 1, v0\nv_lshl_add_u32 v35, v36, 2, v35')
    for i in range(7): a(f'buffer_load_dword v{48+i}, v35, s[{SB}:{SB+3}], 0 offen offset:{128*i}')
    a('v_lshlrev_b32 v32, 2, v0\ns_waitcnt vmcnt(0)')
    for l in range(6):
        for i in range(7):
            a(f's_mov_b32 s70, {MEMX + l*MEM_ONE + 1024*i}\nbuffer_store_dword v{40+8*int(l % 3 == 2)+i}, v32, {ws}, s70 offen {SP}')
    a.label('P0_END')
    if diag:
        st(13); a('s_waitcnt vmcnt(0)'); st(14)
        a(f'v_lshlrev_b32 v2, 2, v1\ns_lshl_b32 s70, s2, 2\ns_add_u32 s70, s70, s3\ns_lshl_b32 s70, s70, 8\ns_add_u32 s70, s70, {DBG + (1<<21)}\nbuffer_store_dword v253, v2, {ws}, s70 offen')
```

```python
from common import *
from layout import *
from lsched import schedule
from asmlib import regs_of
from rec import WS, sL, sI, sREP, wsr, wreg, load_weights, allset, guard, stamp, dump, OPT, wstamp, dstamp, prod_A, prod_B, wait_tags
MF = 'v_mfma_f32_16x16x32_bf16'; MH = 'v_mfma_f32_16x16x16_bf16'; SM = 'v_smfmac_f32_16x16x64_bf16'
def emit(a, ops, name=None, **kw):
    out, vm, lg = schedule(ops, **kw)
    if name: print(name, 'estimate', schedule.cycles)
    for l in out: a(l)
    return vm, lg
def cvt(d, c): return [f'v_cvt_pk_bf16_f32 v{d}, v{c}, v{c+1}', f'v_cvt_pk_bf16_f32 v{d+1}, v{c+2}, v{c+3}']
def spin(a, tag, loads, regs, vt, sC, code, sleep=2, first_issued=False, nafter=0):
    a(f's_mov_b32 s{sC}, 0')
    if first_issued:
        a(f's_waitcnt vmcnt({nafter})'); allset(a, vt, regs); a(f's_cbranch_vccz {tag}_OK')
    a.label(f'{tag}_L')
    for l in loads: a(l)
    guard(a, sC, code)
    a('s_waitcnt vmcnt(0)'); allset(a, vt, regs); a(f's_cbranch_vccz {tag}_OK')
    if sleep: a(f's_sleep {sleep}')
    a(f's_branch {tag}_L')
    a.label(f'{tag}_OK')
def seg_loads(quads, vL16, sA, sB):
    return [f'buffer_load_dwordx4 {vr(q,4)}, v{vL16}, {wsr()}, s{sA if i < 4 else sB} offen offset:{1024*(i%4)} sc1' for i, q in enumerate(quads)]
def qregs(quads): return [q + i for q in quads for i in range(4)]

def gen_PA(a, diag=False):
    vL16, vXW, vt, vK, vK1, vMK, vMK1, vSW, vSR, vPA, vPC = 2, 3, 4, 5, 6, 7, 8, 9, 10, 11, 0
    ACC, XF, SA, KF = 12, 68, 84, 104
    RED = SEGB
    sXS, sMEM, sPP, sS, sC, sA, sB, sQ = 21, 22, 23, 24, 25, 26, 27, 28
    MK = 30
    a.label('PA')
    a(f'v_lshlrev_b32 v{vL16}, 4, v1')
    a(f's_lshl_b32 s20, s{sI}, 2\ns_add_u32 s20, s20, s3\ns_mul_i32 s20, s20, {98*KB}')
    if AIMG: a(f's_add_u32 s20, s20, {AIMG}')
    load_weights(a, 'PA', 20, 98, vL16, blocks=(14, 1, prod_A(a, sI))); wstamp(a, diag)
    a(f's_mul_i32 s29, s3, 7168\nv_add_u32 v{vXW}, s29, v{vL16}')
    a(f'v_bfe_u32 v{vt}, v1, 1, 3\nv_lshlrev_b32 v{vMK}, 4, v{vt}\nv_lshrrev_b32 v{vt}, 4, v1\nv_lshl_add_u32 v{vMK}, v{vt}, 7, v{vMK}')
    a('s_lshr_b32 s27, s3, 1\ns_mul_i32 s27, s27, 7\ns_add_u32 s27, s27, 3\ns_and_b32 s28, s3, 1\ns_lshl_b32 s28, s28, 3')
    a(f's_lshl_b32 s38, s27, 10\ns_add_u32 s38, s38, s28\nv_add_u32 v{vK1}, s38, v{vL16}\ns_lshl_b32 s38, s27, 9\ns_add_u32 s38, s38, s28\nv_add_u32 v{vMK1}, s38, v{vMK}')
    a('s_mul_i32 s27, s3, 7\ns_add_u32 s27, s27, 1\ns_lshr_b32 s27, s27, 1\ns_lshl_b32 s28, s27, 10\ns_lshl_b32 s27, s27, 9')
    a(f'v_add_u32 v{vK}, s28, v{vL16}\nv_add_u32 v{vMK}, s27, v{vMK}')
    a(f's_mul_i32 s27, s3, 5120\ns_add_u32 s27, s27, {RED}\nv_add_u32 v{vSW}, s27, v{vL16}')
    T0, T1, T2 = ACC, ACC+1, ACC+2
    a(f's_and_b32 s27, s3, 1\ns_lshl_b32 s27, s27, 3\nv_and_b32 v{T0}, 7, v1\nv_add_u32 v{T0}, s27, v{T0}')
    a(f'v_lshrrev_b32 v{T1}, 4, v1\nv_lshl_add_u32 v{vPA}, v{T1}, 4, v{T0}\nv_lshlrev_b32 v{vPC}, 3, v{vPA}\nv_lshlrev_b32 v{vPA}, 4, v{vPA}')
    a(f'v_bfe_u32 v{T2}, v1, 3, 1\nv_lshl_add_u32 v{vSR}, v{T2}, 3, v{vPA}')
    a(f's_lshr_b32 s{sQ}, s3, 1\ns_lshl_b32 s27, s{sQ}, 10\ns_add_u32 s27, s27, {RED}\nv_add_u32 v{vSR}, s27, v{vSR}')
    a(f'v_lshlrev_b32 v{T1}, 2, v{T1}\nv_lshl_add_u32 v{T1}, v{T2}, 1, v{T1}\ns_lshl_b32 s27, s{sQ}, 4\nv_add_u32 v{T0}, s27, v{T0}')
    for k in range(4):
        a(f'v_add_u32 v{T2}, {16*(k>>1) + (k&1)}, v{T1}\nv_cmp_gt_u32 s[{MK+2*k}:{MK+2*k+1}], v{T2}, v{T0}')
    a(f'v_add_u32 v{vPC}, 2048, v{vPC}\ns_cmp_eq_u32 s{sQ}, 0\ns_cselect_b32 s27, 1024, 0\nv_add_u32 v{vPA}, s27, v{vPA}')
    a(f's_mov_b32 s{sXS}, {XS1}\ns_cmp_eq_u32 s{sL}, 1\ns_cselect_b32 s{sXS}, {XS2}, s{sXS}\ns_mul_i32 s27, s{sREP}, {SEGB}\ns_add_u32 s{sXS}, s{sXS}, s27\ns_add_u32 s{sXS}, s{sXS}, s29')
    a(f's_mul_i32 s{sMEM}, s{sL}, {MEM_L}\ns_mul_i32 s27, s{sREP}, {MEM_STEP}\ns_add_u32 s{sMEM}, s{sMEM}, s27\ns_add_u32 s{sMEM}, s{sMEM}, {MEMX+2*MEM_ONE}')
    a(f's_lshl_b32 s27, s{sL}, 6\ns_add_u32 s27, s27, s{sREP}\ns_mul_i32 s{sPP}, s27, {PP_STEP}\ns_mul_i32 s27, s{sI}, {PP_HEAD}\ns_add_u32 s{sPP}, s{sPP}, s27\ns_add_u32 s{sPP}, s{sPP}, {PP}')
    a(f's_mov_b32 s{sS}, s{sREP}\ns_mov_b32 s39, 0xf149f2ca')
    a(f's_lshl_b32 s27, s3, 10\nv_add_u32 v118, s27, v{vL16}\nv_cmp_gt_u32 vcc, {PP_HEAD}, v118\nv_mov_b32 v119, {OOB}\nv_cndmask_b32 v118, v119, v118, vcc')
    acc = lambda tl, mt: ACC + 8*tl + 4*mt
    STG = [acc(1,0), acc(1,1), acc(3,0), acc(3,1), acc(5,0), acc(5,1), XF]
    xl = seg_loads(STG, vL16, sXS, sB)
    a(f's_add_u32 s{sB}, s{sXS}, 4096')
    for l in xl: a(l)
    a.label('PA_TASK')
    spin(a, 'PA_X', xl, qregs(STG), vt, sC, 8, first_issued=True)
    for i, q in enumerate(STG): a(f'ds_write_b128 v{vXW}, {vr(q,4)} offset:{1024*i}')
    a(f's_add_u32 s38, s{sPP}, {6*PP_STEP}\ns_cmp_lt_u32 s{sS}, 58\ns_cselect_b32 s38, s38, {OOB}')
    for i in range(4): a(f'v_mov_b32 v{SA+i}, -1')
    a(f'buffer_store_dwordx4 {vr(SA,4)}, v118, {wsr()}, s38 offen sc1')
    a('s_waitcnt lgkmcnt(0)\ns_barrier')
    stamp(a, 0, diag)
    ops = []
    for T in range(14):
        for mt in range(2): ops.append(f'ds_read_b128 {vr(XF+8*(T&1)+4*mt,4)}, v{vL16} offset:{mt*MT+T*1024}')
        for mt in range(2):
            for tl in range(7):
                c = vr(acc(tl, mt), 4)
                ops.append(f'{MF} {c}, {wreg(a_frag(T, tl))}, {vr(XF+8*(T&1)+4*mt,4)}, {c if T else 0}')
    for tl in range(7):
        for mt in range(2): ops += cvt(acc(tl & ~1, mt) + 2*(tl & 1), acc(tl, mt))
    ut = lambda p, mt: acc(2*p, mt)
    n = 0
    for p in range(4):
        for kt in range(2):
            kf = KF + 4*(n % 3); n += 1
            ops.append(f'ds_read_b128 {vr(kf,4)}, v{vK} offset:{kt*MT+1024*p}' if p < 3 else f'ds_read_b64 {vr(kf,2)}, v{vK1} offset:{kt*MT}')
            for mt in range(kt, 2):
                c = vr(SA + 4*(kt+mt), 4)
                ops.append(f'{MF} {c}, {vr(kf,4)}, {vr(ut(p,mt),4)}, {c if p else 0}' if p < 3 else f'{MH} {c}, {vr(kf,2)}, {vr(ut(3,mt),2)}, {c}')
    emit(a, ops, 'PA gemm', L=dict(ds=100))
    stamp(a, 1, diag)
    ml = [f'buffer_load_dwordx4 {vr(KF+4*p,4)}, v{vMK}, {wsr()}, s{sMEM} offen offset:{512*p} sc1' for p in range(3)] + \
         [f'buffer_load_dwordx2 {vr(KF+12,2)}, v{vMK1}, {wsr()}, s{sMEM} offen sc1']
    a(f's_add_u32 s{sS}, s{sS}, 2\ns_cmp_lt_u32 s{sS}, 64\ns_cselect_b32 s38, {2*SEGB}, 0\ns_add_u32 s{sXS}, s{sXS}, s38\ns_add_u32 s{sB}, s{sXS}, 4096')
    for l in ml: a(l)
    for l in xl: a(l)
    spin(a, 'PA_M', ml, range(KF, KF+14), vt, sC, 9, first_issued=True, nafter=7)
    stamp(a, 2, diag)
    for p in range(4):
        for mt in range(2):
            c = vr(SA + 4*(3+mt), 4)
            a(f'{MF} {c}, {vr(KF+4*p,4)}, {vr(ut(p,mt),4)}, {c if p else 0}' if p < 3 else f'{MH} {c}, {vr(KF+12,2)}, {vr(ut(3,mt),2)}, {c}')
        if p < 3: a(f'ds_write_b128 v{vSW}, {vr(SA+4*p,4)} offset:{1024*p}')
    for k in (3, 4): a(f'ds_write_b128 v{vSW}, {vr(SA+4*k,4)} offset:{1024*k}')
    a('s_waitcnt lgkmcnt(0)\ns_barrier')
    R = SA
    for k, tile in enumerate((0, 1, 3)):
        for pp in range(2): a(f'ds_read2st64_b64 {vr(R+8*k+4*pp,4)}, v{vSR} offset0:{2*tile+20*pp} offset1:{2*tile+20*pp+10}')
    for k in range(3):
        b = R+8*k
        a(f's_waitcnt lgkmcnt({4-2*k})')
        a(f'v_pk_add_f32 {vr(b,2)}, {vr(b,2)}, {vr(b+2,2)}\nv_pk_add_f32 {vr(b+4,2)}, {vr(b+4,2)}, {vr(b+6,2)}\nv_pk_add_f32 {vr(b,2)}, {vr(b,2)}, {vr(b+4,2)}')
    x = [R, R+1, R+8, R+9, R+16, R+17]; m, t = R+2, R+3
    a(f'v_mov_b32 v{t}, s39')
    for k in range(4): a(f'v_cndmask_b32 v{x[k]}, v{x[k]}, v{t}, s[{MK+2*k}:{MK+2*k+1}]')
    a(f'v_max3_f32 v{m}, v{x[0]}, v{x[1]}, v{x[2]}\nv_max3_f32 v{t}, v{x[3]}, v{x[4]}, v{x[5]}\nv_max_f32 v{m}, v{m}, v{t}')
    a(f'v_max_f32_dpp v{m}, v{m}, v{m} row_ror:8 row_mask:0xf bank_mask:0xf')
    cross_rows(a, m, t, 'v_max_f32')
    for k in range(3): a(f'v_pk_add_f32 {vr(x[2*k],2)}, {vr(x[2*k],2)}, {vr(m,2)} op_sel_hi:[1,0] neg_lo:[0,1] neg_hi:[0,1]')
    for i in (4, 5, 0, 1, 2, 3): a(f'v_exp_f32 v{x[i]}, v{x[i]}')
    a(f'v_add_f32 v{m}, v{x[4]}, v{x[5]}\nv_add_f32 v{t}, v{x[0]}, v{x[1]}\nv_fma_f32 v{m}, v{m}, 0.5, v{x[2]}\nv_add_f32 v{t}, v{t}, v{x[3]}\nv_add_f32 v{m}, v{m}, v{t}')
    a(f'v_add_f32_dpp v{m}, v{m}, v{m} row_ror:8 row_mask:0xf bank_mask:0xf')
    cross_rows(a, m, t, 'v_add_f32')
    a(f'v_rcp_f32 v{m}, v{m}')
    for k in range(3): a(f'v_pk_mul_f32 {vr(x[2*k],2)}, {vr(x[2*k],2)}, {vr(m,2)} op_sel_hi:[1,0]')
    o = R+4
    for k, d in enumerate((o, o+2, o+8)): a(f'v_cvt_pk_bf16_f32 v{d}, v{x[2*k]}, v{x[2*k+1]}')
    for d in (o, o+2, o+8): a(f'v_mov_b32_dpp v{d+1}, v{d} row_ror:8 row_mask:0xf bank_mask:0xf')
    a('s_mov_b32 exec_lo, 0x00ff00ff\ns_mov_b32 exec_hi, 0x00ff00ff')
    a(f's_cmp_eq_u32 s{sQ}, 0\ns_cbranch_scc1 PA_Q0')
    a(f'buffer_store_dwordx4 {vr(o,4)}, v{vPA}, {wsr()}, s{sPP} offen sc1\nbuffer_store_dwordx2 {vr(o+8,2)}, v{vPC}, {wsr()}, s{sPP} offen sc1')
    a('s_branch PA_STD')
    a.label('PA_Q0')
    a(f's_bitcmp1_b32 s{sI}, 0\ns_cbranch_scc1 PA_Q0ODD')
    a(f'v_mov_b32 v{o+2}, v{o+8}\nv_mov_b32 v{o+3}, v{o+9}\nbuffer_store_dwordx4 {vr(o,4)}, v{vPA}, {wsr()}, s{sPP} offen sc1\ns_branch PA_STD')
    a.label('PA_Q0ODD')
    a(f'v_mov_b32 v{o+10}, v{o}\nv_mov_b32 v{o+11}, v{o+1}\nbuffer_store_dwordx4 {vr(o+8,4)}, v{vPA}, {wsr()}, s{sPP} offen sc1')
    a.label('PA_STD')
    a('s_mov_b64 exec, -1')
    if diag: stamp(a, 3, diag); a(f's_sub_u32 s59, s{sS}, 2'); dump(a, diag, 2, 59, m, vt)
    a(f's_add_u32 s{sMEM}, s{sMEM}, {2*MEM_STEP}\ns_add_u32 s{sPP}, s{sPP}, {2*PP_STEP}\ns_cmp_lt_u32 s{sS}, 64\ns_cbranch_scc1 PA_TASK\ns_endpgm')

def gen_PB(a, diag=False):
    vL16, vXW, vt, vIDX, vWL, vVW, vVR, vL8, vZ, vRa, vRb = 2, 3, 4, 5, 6, 7, 8, 9, 10, 11, 0
    RD = 44
    XB, WL, VB = 0, 28*KB, 84*KB
    sXS, sB, sVP, sFL, sS, sC, sMEM, sPP, sXR, sX1, sPRE, sT, sT2 = 21, 22, 23, 24, 25, 26, 27, 28, 29, 30, 31, 32, 33
    a.label('PB')
    a(f'v_lshlrev_b32 v{vL16}, 4, v1\nv_lshlrev_b32 v{vL8}, 3, v1\nv_mov_b32 v{vZ}, 0')
    a(f'v_and_b32 v{vt}, 1, v1\nv_cmp_eq_u32 vcc, 0, v{vt}\nv_mov_b32 v{vIDX}, 0xeeee\nv_mov_b32 v{vt}, 0x4444\nv_cndmask_b32 v{vIDX}, v{vIDX}, v{vt}, vcc')
    a(f's_lshl_b32 s34, s{sI}, 2\ns_add_u32 s34, s34, s3\ns_mul_i32 s20, s34, {112*KB}\ns_add_u32 s20, s20, {BIMG}')
    a(f's_mul_i32 s35, s3, {14*KB}\ns_add_u32 s35, s35, {WL}\nv_add_u32 v{vWL}, s35, v{vL16}')
    load_weights(a, 'PB', 20, 98, vL16, 14, 35, blocks=(16, 4, prod_B(a))); wstamp(a, diag)
    a(f's_mul_i32 s36, s3, 7168\ns_add_u32 s37, s36, {XB}\nv_add_u32 v{vXW}, s37, v{vL16}')
    a(f's_lshl_b32 s37, s3, 13\ns_add_u32 s37, s37, {VB}\nv_add_u32 v{vVW}, s37, v{vL16}')
    a(f's_lshl_b32 s37, s3, 10\ns_add_u32 s37, s37, {VB}\nv_add_u32 v{vVR}, s37, v{vL16}')
    a(f's_lshl_b32 s38, s{sL}, 6\ns_add_u32 s38, s38, s{sREP}')
    a(f's_mov_b32 s{sXS}, {XS1}\ns_cmp_eq_u32 s{sL}, 1\ns_cselect_b32 s{sXS}, {XS2}, s{sXS}\ns_cselect_b32 s{sXR}, {XR2}, 0')
    a(f's_cselect_b32 s{RD}, s4, s6\ns_cselect_b32 s{RD+1}, s5, s7\ns_mov_b32 s{RD+2}, {XS_SZ}\ns_cselect_b32 s{RD+2}, {1 << 28}, s{RD+2}\ns_mov_b32 s{RD+3}, 0x20000')
    a(f's_cselect_b32 s48, 10, 6\ns_cselect_b32 s49, 8, 32\ns_cselect_b64 vcc, -1, 0')
    a(f'v_and_b32 v{vt}, 15, v1\nv_mul_u32_u24 v{vRa}, {ROW}, v{vt}\nv_lshrrev_b32 v{vt}, 4, v1\nv_lshl_add_u32 v{vRa}, v{vt}, 3, v{vRa}\nv_cndmask_b32 v{vRa}, v{vRa}, v{vL16}, vcc\nv_add_u32 v{vRb}, s49, v{vRa}')
    a(f's_mul_i32 s37, s{sREP}, {SEGB}\ns_add_u32 s{sXS}, s{sXS}, s37\ns_add_u32 s{sXS}, s{sXS}, s36')
    a(f's_mul_i32 s39, s3, {MT}\ns_lshl_b32 s40, s{sI}, 10\ns_add_u32 s{sXR}, s{sXR}, s37\ns_add_u32 s{sXR}, s{sXR}, s39\ns_add_u32 s39, s39, s40\ns_lshl_b32 s40, s{sI}, s48\ns_add_u32 s{sXR}, s{sXR}, s40')
    a(f's_mul_i32 s{sX1}, s38, {SEGB}\ns_add_u32 s{sX1}, s{sX1}, s39\ns_add_u32 s{sX1}, s{sX1}, {X1}')
    a(f's_mul_i32 s{sVP}, s38, {VP_STEP}\ns_lshl_b32 s37, s34, 13\ns_add_u32 s{sVP}, s{sVP}, s37\ns_add_u32 s{sVP}, s{sVP}, {VP}')
    a(f's_mul_i32 s{sFL}, s38, {FL_STEP}\ns_lshl_b32 s37, s{sI}, 7\ns_add_u32 s{sFL}, s{sFL}, s37\ns_lshl_b32 s37, s3, 2\ns_add_u32 s{sFL}, s{sFL}, s37\ns_add_u32 s{sFL}, s{sFL}, {VF}')
    a(f's_mul_i32 s{sMEM}, s{sL}, {MEM_L}\ns_mul_i32 s37, s{sREP}, {MEM_STEP}\ns_add_u32 s{sMEM}, s{sMEM}, s37\ns_add_u32 s{sMEM}, s{sMEM}, {MEMX+MEM_ONE}')
    a(f's_mul_i32 s{sPP}, s38, {PP_STEP}\ns_mul_i32 s37, s3, {4*PP_HEAD}\ns_add_u32 s{sPP}, s{sPP}, s37\ns_add_u32 s{sPP}, s{sPP}, {PP}')
    a(f's_mov_b32 s{sS}, s{sREP}\ns_mov_b32 s41, 32768\ns_waitcnt vmcnt(0)')
    XF, WSt, ACC, PK = 12, 28, 40, 72
    STG = [12+4*i for i in range(7)]
    def xdma():
        a(f's_add_u32 s{sB}, s{sXS}, 4096\ns_mov_b32 m0, s36')
        for i in range(7):
            if i == 4: a('s_add_u32 m0, s36, 4096')
            a(f'buffer_load_dwordx4 v{vL16}, {wsr()}, s{sXS if i < 4 else sB} offen offset:{1024*(i%4)} sc1 lds')
    xdma()
    a.label('PB_PRE')
    a('s_waitcnt vmcnt(0)')
    for i, q in enumerate(STG): a(f'ds_read_b128 {vr(q,4)}, v{vXW} offset:{1024*i}')
    a(f's_add_u32 s{sT}, s{sVP}, 4096\ns_waitcnt lgkmcnt(0)')
    allset(a, vt, qregs(STG))
    a('s_cbranch_vccz PB_XOK')
    spin(a, 'PB_X', seg_loads(STG, vL16, sXS, sB), qregs(STG), vt, sC, 10, sleep=1)
    for i, q in enumerate(STG): a(f'ds_write_b128 v{vXW}, {vr(q,4)} offset:{1024*i}')
    a('s_waitcnt lgkmcnt(0)')
    a.label('PB_XOK')
    a('s_barrier')
    stamp(a, 0, diag)
    ops = []; n = 0
    for be in range(2):
        for T in range(14):
            for mt in range(2): ops.append(f'ds_read_b128 {vr(XF+8*(T&1)+4*mt,4)}, v{vL16} offset:{XB+mt*MT+T*1024}')
            for uu in range(4):
                f = b_frag(T, 4*be+uu)
                if f < 98: w = wreg(f)
                else:
                    w = vr(WSt+4*(n % 3), 4); n += 1
                    ops.append(f'ds_read_b128 {w}, v{vWL} offset:{(f-98)*1024}')
                for mt in range(2):
                    c = vr(ACC+8*uu+4*mt, 4)
                    ops.append(f'{MF} {c}, {vr(XF+8*(T&1)+4*mt,4)}, {w}, {c if T else 0}')
        for uu in range(4):
            ph, nt = uu >> 1, uu & 1; i = nt*2+ph; d = PK+4*i
            ops += cvt(d, ACC+8*uu) + cvt(d+2, ACC+8*uu+4)
            ops.append(f'buffer_store_dwordx4 {vr(d,4)}, v{vL16}, {wsr()}, s{sT if be else sVP} offen offset:{1024*i} sc1')
            ops.append(f'ds_write_b128 v{vVW}, {vr(d,4)} offset:{4096*be+1024*i}')
    emit(a, ops, 'PB gemm', L=dict(ds=100))
    stamp(a, 1, diag)
    a(f's_mov_b32 s{sPRE}, 1\nv_add_u32 v{vVW}, s41, v{vVW}\ns_sub_u32 s41, 0, s41')
    a(f's_add_u32 s{sS}, s{sS}, 3\ns_add_u32 s{sXS}, s{sXS}, {3*SEGB}\ns_add_u32 s{sVP}, s{sVP}, {3*VP_STEP}')
    a(f's_cmp_lt_u32 s{sS}, 64\ns_cselect_b32 s{sT}, 0, {3*SEGB}\ns_sub_u32 s{sXS}, s{sXS}, s{sT}\ns_waitcnt lgkmcnt(0)\ns_barrier')
    xdma()
    a(f's_sub_u32 s{sT}, s{sS}, s{sREP}\ns_cmp_gt_u32 s{sT}, 3\ns_cbranch_scc1 PB_POST')
    a(f's_waitcnt vmcnt(7)\nbuffer_store_dword v{vZ}, v{vZ}, {wsr()}, s{sFL} offen sc1\ns_add_u32 s{sFL}, s{sFL}, {3*FL_STEP}\ns_branch PB_PRE')
    ME, WA, WS8, PQ = 12, 40, 72, 80
    a.label('PB_POST')
    a(f's_add_u32 s{sT}, s{sMEM}, 4096\ns_add_u32 s{sT2}, s{sPP}, {2*PP_HEAD}')
    ml = seg_loads([ME+4*i for i in range(7)], vL16, sMEM, sT)
    pA = lambda hh: PQ + 4*hh; pB = lambda hh: PQ + 16 + 4*hh; pC = lambda hh: PQ + 32 + 2*hh
    pl = []
    for hh in range(4):
        sb = sPP if hh < 2 else sT2; o = (hh & 1)*PP_HEAD
        if hh & 1:
            pl.append(f's_add_u32 s42, s{sb}, {PP_HEAD}'); sb = 42
        pl += [f'buffer_load_dwordx4 {vr(pA(hh),4)}, v{vL16}, {wsr()}, s{sb} offen sc1', f'buffer_load_dwordx4 {vr(pB(hh),4)}, v{vL16}, {wsr()}, s{sb} offen offset:1024 sc1',
               f'buffer_load_dwordx2 {vr(pC(hh),2)}, v{vL8}, {wsr()}, s{sb} offen offset:2048 sc1']
    a(f's_add_u32 s42, s{sX1}, {3*SEGB}\ns_cmp_lt_u32 s{sS}, 67\ns_cselect_b32 s42, s42, {OOB}\ns_cmp_lt_u32 s3, 2\ns_cselect_b32 s42, s42, {OOB}')
    for i in range(4): a(f'v_mov_b32 v{WA+i}, -1')
    a(f'buffer_store_dwordx4 {vr(WA,4)}, v{vL16}, {wsr()}, s42 offen sc1')
    for l in ml + pl: a(l)
    a(f's_cmp_eq_u32 s{sPRE}, 0\ns_cbranch_scc1 PB_NOFL')
    a(f's_waitcnt vmcnt(27)\nbuffer_store_dword v{vZ}, v{vZ}, {wsr()}, s{sFL} offen sc1\ns_add_u32 s{sFL}, s{sFL}, {3*FL_STEP}')
    a.label('PB_NOFL')
    for i in range(32): a(f'v_mov_b32 v{WA+i}, 0')
    spin(a, 'PB_M', ml, range(ME, ME+28), vt, sC, 11, first_issued=True, nafter=12)
    stamp(a, 2, diag)
    WK = ME; OUT = [28, 32, 36, 72]; VS = WA; RS = 76
    ops = []
    for b in range(7):
        for u in range(8):
            f = (b*8+u)*2
            if f < 98: w = wreg(f, 8)
            else:
                w = vr(WS8, 8)
                ops += [f'ds_read_b128 {vr(WS8,4)}, v{vWL} offset:{(f-98)*1024}', f'ds_read_b128 {vr(WS8+4,4)}, v{vWL} offset:{(f-97)*1024}']
            ops.append(f'{SM} {vr(WA+4*u,4)}, {vr(ME+4*b,4)}, {w}, v{vIDX}')
    lead = [o for o in ops if 'ds_read' in o or vr(WS8, 8) in o]; rest = [o for o in ops if o not in lead]
    mixed = []
    for i in range(7): mixed += lead[3*i:3*i+3] + rest[7*i:7*i+7]
    ops = mixed
    for u in range(8): ops += cvt(WK+8*(u & 1)+2*(u >> 1), WA+4*u)
    for i in range(8): ops.append(f'ds_read_b128 {vr(VS+4*i,4)}, v{vVW} offset:{1024*i}')
    emit(a, ops, 'PB w', L=dict(ds=100))
    rl = f'buffer_load_dwordx2 {vr(RS,2)}, v{vRa}, s[{RD}:{RD+3}], s{sXR} offen sc1\nbuffer_load_dwordx2 {vr(RS+2,2)}, v{vRb}, s[{RD}:{RD+3}], s{sXR} offen sc1'
    a(rl)
    spin(a, 'PB_P', pl, range(PQ, PQ+40), vt, sC, 12, first_issued=True, nafter=2)
    stamp(a, 3, diag)
    a('s_waitcnt lgkmcnt(0)')
    ops = []
    for nt in range(2):
        for mt in range(2):
            c = vr(OUT[nt*2+mt], 4); first = True
            for be in range(2):
                pm = vr(pC(2*be), 4) if mt else vr(pB(2*be)+2, 4)
                ops.append(f'{MF} {c}, {vr(WK+8*nt+4*be,4)}, {pm}, {0 if first else c}'); first = False
                for ph in range(2):
                    hh = 2*be+ph; v = VS+4*((be*2+nt)*2+ph)
                    if mt: ops.append(f'{MF} {c}, {vr(v,4)}, {vr(pA(hh),4)}, {c}')
                    else: ops.append(f'{MH} {c}, {vr(v,2)}, {vr(pB(hh)+2*ph,2)}, {c}')
    for k in range(4): ops.append(f'ds_write_b128 v{vVW}, {vr(OUT[k],4)} offset:{1024*k}')
    emit(a, ops, 'PB post')
    a('s_waitcnt lgkmcnt(0)\ns_barrier')
    a('s_cmp_ge_u32 s3, 2\ns_cbranch_scc1 PB_NEXT')
    a(f's_max_i32 s42, s41, 0\ns_sub_u32 s42, 32768, s42\nv_add_u32 v{vt}, s42, v{vVR}')
    F = 40
    for p in range(4):
        for nt in range(2): a(f'ds_read_b128 {vr(F+8*p+4*nt,4)}, v{vt} offset:{8192*p+2048*nt}')
    a(f's_mov_b32 s{sC}, 0')
    a.label('PB_R')
    a(f's_waitcnt vmcnt(0)'); allset(a, vt, range(RS, RS+4)); a('s_cbranch_vccz PB_ROK')
    a(rl); guard(a, sC, 13); a('s_branch PB_R')
    a.label('PB_ROK')
    unpack8(a, 12, RS)
    for p in range(4):
        a(f's_waitcnt lgkmcnt({6-2*p})')
        for i in range(4): a(f'v_pk_add_f32 {vr(12+2*i,2)}, {vr(12+2*i,2)}, {vr(F+8*p+2*i,2)}')
    pack8(a, 20, 12)
    a(f'buffer_store_dwordx4 v[20:23], v{vL16}, {wsr()}, s{sX1} offen sc1')
    if diag: stamp(a, 4, diag); a(f's_sub_u32 s59, s{sS}, 6\ns_and_b32 s59, s59, 63'); dump(a, diag, 3, 59, 24, vt)
    a.label('PB_NEXT')
    a(f's_add_u32 s{sMEM}, s{sMEM}, {3*MEM_STEP}\ns_add_u32 s{sPP}, s{sPP}, {3*PP_STEP}\ns_add_u32 s{sXR}, s{sXR}, {3*SEGB}\ns_add_u32 s{sX1}, s{sX1}, {3*SEGB}')
    a(f's_cmp_lt_u32 s{sS}, 64\ns_cbranch_scc1 PB_PRE')
    a(f's_cmp_eq_u32 s{sPRE}, 0\ns_cbranch_scc1 END')
    a(f's_mov_b32 s{sPRE}, 0\nv_add_u32 v{vVW}, s41, v{vVW}\ns_sub_u32 s41, 0, s41\ns_add_u32 s{sS}, s{sS}, 3\ns_waitcnt vmcnt(0)\ns_barrier\ns_branch PB_POST')

def gen_FF(a, diag=False):
    vL16, vXW, vt, vWL, vHW, vHR, vRO, vR0, vR1, vMK, vO = 2, 3, 4, 5, 6, 7, 8, 9, 10, 11, 0
    XB, WL, HB, STB = 0, 28*KB, 84*KB, 100*KB
    sX1, sB, sS, sC, sRW, sRR, sOUT, sT, sT2, sXO = 21, 22, 23, 24, 25, 26, 27, 28, 29, 30
    OS = 44
    XF, WSt, B1, TM, AC2 = 12, 28, 40, 56, 64
    a.label('FF')
    srd(a, OS, 8, XS_SZ)
    a(f'v_lshlrev_b32 v{vL16}, 4, v1')
    a(f's_lshl_b32 s34, s{sI}, 2\ns_add_u32 s34, s34, s3\ns_mul_i32 s20, s34, {112*KB}\ns_add_u32 s20, s20, {FIMG}')
    a(f's_mul_i32 s35, s3, {14*KB}\ns_add_u32 s35, s35, {WL}\nv_add_u32 v{vWL}, s35, v{vL16}')
    a(f's_cmp_eq_u32 s{sI}, 7\ns_cbranch_scc1 FF_NOW')
    wait_tags(a, 'FF_TA', FLA, 256, 18)
    a(f's_mov_b32 s52, 0x3f803f80\ns_add_u32 s21, s20, {56*KB}')
    def w1(ft):
        a(f's_add_u32 s22, s20, {ft*KB}')
        for T in range(14): a(f'buffer_load_dwordx4 {vr(12+56*(ft&1)+4*T,4) if not (ft & 1) or T < 13 else vr(248,4)}, v{vL16}, {wsr()}, s22 offen\ns_add_u32 s22, s22, 4096')
    src = lambda ft, i: 12+56*(ft&1)+i if not (ft & 1) or i < 52 else 248+i-52
    w1(0); w1(1)
    for ft in range(4):
        if ft == 2:
            for f in list(range(56, 96)) + [97]: a(f's_add_u32 s22, s20, {f*KB}\nbuffer_load_dwordx4 {wreg(f)}, v{vL16}, {wsr()}, s22 offen')
            for i in range(14): a(f's_add_u32 s22, s20, {(98+i)*KB}\ns_add_u32 m0, s35, {i*1024}\nbuffer_load_dwordx4 v{vL16}, {wsr()}, s22 offen lds')
        a(f's_waitcnt vmcnt({(14, 14, 63, 55)[ft]})\nv_mov_b32 v8, 0\nv_mov_b32 v9, 0')
        for i in range(56): a(f'v_dot2_f32_bf16 v{8+(i&1)}, v{src(ft,i)}, s52, v{8+(i&1)}')
        a('v_add_f32 v8, v8, v9')
        cross_rows(a, 8, 9, 'v_add_f32')
        a(f'v_mul_f32 v8, {f2u(1/448):#x}, v8')
        for i in range(56):
            u = (10, 6)[i & 1]
            a(f'v_lshlrev_b32 v{u}, 16, v{src(ft,i)}\nv_and_b32 v{u+1}, 0xffff0000, v{src(ft,i)}\nv_pk_add_f32 {vr(u,2)}, {vr(u,2)}, v[8:9] op_sel_hi:[1,0] neg_lo:[0,1] neg_hi:[0,1]')
            a(f'v_cvt_pk_bf16_f32 v{u}, v{u}, v{u+1}\nv_accvgpr_write_b32 a{16*(i>>2)+4*ft+(i&3)}, v{u}')
        if ft < 2: w1(ft+2)
    a(f's_add_u32 s22, s20, {96*KB}\nbuffer_load_dwordx4 {wreg(96)}, v{vL16}, {wsr()}, s22 offen')
    a('s_waitcnt vmcnt(0)'); wstamp(a, diag)
    a('s_branch FF_W')
    a.label('FF_NOW')
    load_weights(a, 'FR', 20, 0, vL16)
    a.label('FF_W')
    a(f's_and_b32 s36, s3, 1\ns_mul_i32 s36, s36, {MT}\ns_lshr_b32 s37, s3, 1\ns_mul_i32 s37, s37, 7168\ns_add_u32 s36, s36, s37\nv_add_u32 v{vXW}, s36, v{vL16}')
    a(f's_lshl_b32 s37, s3, 11\ns_add_u32 s37, s37, {HB}\nv_add_u32 v{vHW}, s37, v{vL16}\nv_add_u32 v{vHR}, {HB}, v{vL16}')
    a(f's_lshl_b32 s38, s{sL}, 6\ns_add_u32 s38, s38, s{sREP}\ns_mul_i32 s{sX1}, s38, {SEGB}\ns_add_u32 s{sX1}, s{sX1}, s36\ns_add_u32 s{sX1}, s{sX1}, {X1}')
    a(f's_mul_i32 s37, s{sL}, 3\ns_add_u32 s37, s37, s{sREP}\ns_mul_i32 s{sRR}, s37, {RING_SET}\ns_add_u32 s{sRR}, s{sRR}, {RING}\ns_mul_i32 s37, s{sI}, {RING_J}\ns_add_u32 s{sRW}, s{sRR}, s37')
    a('s_mul_i32 s48, s3, 7\ns_add_u32 s48, s48, 1\ns_lshr_b32 s48, s48, 1\ns_lshl_b32 s48, s48, 10')
    a('s_lshr_b32 s49, s3, 1\ns_mul_i32 s49, s49, 7\ns_add_u32 s49, s49, 3\ns_lshl_b32 s49, s49, 10\ns_and_b32 s37, s3, 1\ns_lshl_b32 s37, s37, 3\ns_add_u32 s49, s49, s37')
    a(f'v_lshrrev_b32 v{vt}, 2, v1\nv_cmp_gt_u32 vcc, 14, v{vt}\nv_min_u32 v{vt}, 13, v{vt}\nv_cndmask_b32 v{vMK}, 0, 1.0, vcc\ns_mov_b64 s[50:51], vcc')
    a(f's_mul_i32 s37, s3, 14\nv_add_u32 v{vt}, s37, v{vt}\nv_and_b32 v{TM}, 3, v1')
    a(f'v_lshlrev_b32 v{vRO}, 8, v{vt}\nv_lshl_add_u32 v{vRO}, v{TM}, 4, v{vRO}')
    a(f'v_lshrrev_b32 v{TM+1}, 2, v{vt}\nv_lshlrev_b32 v{vO}, 6, v{TM+1}\nv_and_b32 v{TM+1}, 3, v{vt}\nv_lshl_add_u32 v{vO}, v{TM+1}, 3, v{vO}\nv_mul_u32_u24 v{TM}, {ROW}, v{TM}\nv_add_u32 v{vO}, v{vO}, v{TM}')
    a(f's_lshr_b32 s37, s{sI}, 2\ns_mul_i32 s37, s37, {MT}\ns_and_b32 s39, s{sI}, 3\ns_lshl_b32 s39, s39, 6\ns_add_u32 s37, s37, s39\nv_add_u32 v{vRO}, s37, v{vRO}')
    a(f's_mul_i32 s37, s{sI}, {4*ROW}\nv_add_u32 v{vO}, s37, v{vO}')
    a(f's_mul_i32 s{sOUT}, s{sREP}, {SEGB}\ns_mov_b32 s{sS}, s{sREP}\ns_mov_b32 s41, 0\ns_mov_b32 s52, 0x3f803f80\ns_mov_b32 s61, 0x3f80\ns_mov_b32 s62, 0x3f800000\ns_waitcnt vmcnt(0)')
    a(f's_mov_b32 s53, {f2u(1/448):#x}\ns_cmp_eq_u32 s{sI}, 7\ns_cbranch_scc1 FR')
    STG = [92+4*i for i in range(7)]
    xl = seg_loads(STG, vL16, sX1, sB)
    vAK = 63
    ack = f'buffer_load_dword v{vAK}, off, {wsr()}, s43 sc1'
    a(f's_mul_i32 s43, s{sL}, 3\ns_add_u32 s43, s43, s{sREP}\ns_lshl_b32 s43, s43, 7\ns_add_u32 s43, s43, {TKT+8*128}\ns_mov_b32 s63, -2\nv_mov_b32 v{vAK}, -1')
    a(f's_add_u32 s{sB}, s{sX1}, 4096')
    for l in xl: a(l)
    a('s_waitcnt vmcnt(0)')
    a.label('FF_TASK')
    a(f's_waitcnt vmcnt(2)\nv_cmp_gt_i32 vcc, s63, v{vAK}\ns_cbranch_vccnz FF_ACK')
    a.label('FF_ACKED')
    spin(a, 'FF_X', xl, qregs(STG), vt, sC, 14, sleep=1, first_issued=True, nafter=2)
    stamp(a, 0, diag)
    s1, s2 = TM, TM+1
    for k in range(4): a(f'v_mov_b32 v{TM+k}, 0')
    for i in range(28):
        if i % 4 == 0: a(f'ds_write_b128 v{vXW}, {vr(92+i,4)} offset:{256*i}')
        a(f'v_dot2_f32_bf16 v{s1+2*(i&1)}, v{92+i}, s52, v{s1+2*(i&1)}\nv_dot2_f32_bf16 v{s2+2*(i&1)}, v{92+i}, v{92+i}, v{s2+2*(i&1)}')
    a(f'v_and_b32 v{vt}, 15, v1\nv_lshlrev_b32 v{vt}, 3, v{vt}\ns_lshl_b32 s37, s3, 7\ns_add_u32 s37, s37, {STB}\nv_add_u32 v{TM+4}, s37, v{vt}')
    a(f'v_add_f32 v{s1}, v{s1}, v{s1+2}\nv_add_f32 v{s2}, v{s2}, v{s2+2}')
    for sw in ('v_permlane16_swap_b32', 'v_permlane32_swap_b32'):
        a(f'v_mov_b32 v{s1+2}, v{s1}\nv_mov_b32 v{s2+2}, v{s2}\n{sw} v{s1}, v{s1+2}\n{sw} v{s2}, v{s2+2}\nv_add_f32 v{s1}, v{s1}, v{s1+2}\nv_add_f32 v{s2}, v{s2}, v{s2+2}')
    a(f'ds_write_b64 v{TM+4}, {vr(s1,2)}\nv_add_u32 v{vt}, {STB}, v{vt}')
    a('s_waitcnt lgkmcnt(0)\ns_barrier')
    A1 = AC2
    LOG2E = 1.4426950408889634
    def gemm1(ps, Ts):
        o = []
        for T in Ts:
            for mt in range(2): o.append(f'ds_read_b128 {vr(XF+8*(T&1)+4*mt,4)}, v{vL16} offset:{XB+mt*MT+T*1024}')
            for p in ps:
                for ft in range(2):
                    for mt in range(2):
                        c = vr((A1, B1)[p]+8*ft+4*mt, 4)
                        o.append(f'{MF} {c}, {wreg(T*4+2*p+ft)}, {vr(XF+8*(T&1)+4*mt,4)}, {c if T else 0}')
        return o
    def silu(p, acc):
        o = []; n = 0
        for mt in range(2):
            for ft in range(2):
                for j in range(4):
                    z = acc+8*ft+4*mt+j; e = (TM, TM+1, WSt+8, WSt+9, WSt+10, WSt+11)[n % 6]; n += 1
                    o += [f'v_mul_f32 v{e}, v{z}, v{vR0+mt}', f'v_exp_f32 v{e}, v{e}', f'v_fma_f32 v{e}, v{e}, v{TM+2+mt}, v{TM+2+mt}',
                          f'v_rcp_f32 v{e}, v{e}', f'v_mul_f32 v{z}, v{z}, v{e}']
            d = TM+4
            o += cvt(d, acc+4*mt) + cvt(d+2, acc+8+4*mt)
            o.append(f'ds_write_b128 v{vHW}, {vr(d,4)} offset:{8192*p+1024*mt}')
        return o
    def gemm2(ks):
        o = []; n = 0
        for kp in ks:
            for mt in range(2): o.append(f'ds_read_b128 {vr(XF+8*(kp&1)+4*mt,4)}, v{vHR} offset:{2048*kp+1024*mt}')
            for tl in range(7):
                f = 56+kp*7+tl
                if f < 98: w = wreg(f)
                else:
                    w = vr(WSt+4*(n % 3), 4); n += 1
                    o.append(f'ds_read_b128 {w}, v{vWL} offset:{(f-98)*1024}')
                for mt in range(2):
                    c = vr(AC2+8*tl+4*mt, 4)
                    o.append(f'{MF} {c}, {w}, {vr(XF+8*(kp&1)+4*mt,4)}, {c if kp else 0}')
        return o
    st = [f'ds_read2_b64 {vr(WSt,4)}, v{vt} offset0:0 offset1:32', f'ds_read2_b64 {vr(WSt+4,4)}, v{vt} offset0:16 offset1:48']
    for mt in range(2):
        b = WSt+4*mt
        st += [f'v_pk_add_f32 {vr(b,2)}, {vr(b,2)}, {vr(b+2,2)}', f'v_mul_f32 v{b}, {f2u(1/448):#x}, v{b}', f'v_mul_f32 v{b}, v{b}, v{b}',
               f'v_fma_f32 v{b}, v{b+1}, s53, -v{b}', f'v_max_f32 v{b}, 0, v{b}', f'v_add_f32 v{b}, {f2u(1e-5):#x}, v{b}', f'v_rsq_f32 v{vR0+mt}, v{b}',
               f'v_mul_f32 v{TM+2+mt}, v{b}, v{vR0+mt}', f'v_mul_f32 v{vR0+mt}, {f2u(-LOG2E):#x}, v{vR0+mt}']
    a(f's_cmp_eq_u32 s41, 2\ns_mov_b32 s56, {RING_SLOT}\ns_cselect_b32 s56, {(-2*RING_SLOT) & 0xffffffff:#x}, s56\ns_add_u32 s57, s{sRW}, s56\ns_mul_i32 s37, s3, 7168\ns_add_u32 s57, s57, s37\ns_add_u32 s58, s57, 4096')
    po = [f'v_mov_b32 v{WSt+8+k}, -1' for k in range(4)]
    po += [f'buffer_store_dwordx4 {vr(WSt+8,4)}, v{vL16}, {wsr()}, s{57 if i < 4 else 58} offen offset:{1024*(i%4)}' for i in range(7)]
    mark = f's_add_u32 s59, s{sOUT}, {XS2+6*SEGB}\ns_add_u32 s60, s{sOUT}, {XR2+6*SEGB}\ns_lshl_b32 s37, s{sL}, 6\ns_add_u32 s37, s37, s{sS}\ns_cmp_lt_u32 s37, 58\ns_cselect_b32 s59, s59, {OOB}\ns_cselect_b32 s60, s60, {OOB}'
    a(mark)
    po += [f'buffer_store_dwordx4 {vr(WSt+8,4)}, v{vRO}, {wsr()}, s{k} offen sc1' for k in (59, 60)]
    K1 = OPT.get('ff_k1', 0)
    emit(a, st + po + gemm1((0, 1), range(K1)) + gemm1((0,), range(K1, 14)) + gemm1((1,), range(K1, 14)) + silu(0, A1), 'FF gemm1', L=dict(ds=100, vmgap=60))
    a('s_waitcnt lgkmcnt(0)\ns_barrier')
    stamp(a, 1, diag)
    emit(a, gemm2(range(4)) + silu(1, B1), 'FF gemm2a', L=dict(ds=100))
    a('s_waitcnt lgkmcnt(0)\ns_barrier')
    a('s_waitcnt vmcnt(0)')
    ops = gemm2(range(4, 8))
    a(f's_add_u32 s{sT}, s{sRW}, s48\ns_add_u32 s54, s{sT}, {MT}\ns_add_u32 s{sT2}, s{sRW}, s49\ns_add_u32 s55, s{sT2}, {MT}')
    n = 0
    for p in range(4):
        for mt in range(2):
            d = B1 + 4*(n % 4); n += 1
            ops += cvt(d, AC2+16*p+4*mt)
            if p < 3:
                ops += cvt(d+2, AC2+16*p+8+4*mt)
                ops.append(f'buffer_store_dwordx4 {vr(d,4)}, v{vL16}, {wsr()}, s{54 if mt else sT} offen offset:{1024*p}')
            else: ops.append(f'buffer_store_dwordx2 {vr(d,2)}, v{vL16}, {wsr()}, s{55 if mt else sT2} offen')
    emit(a, ops, 'FF gemm2b', L=dict(ds=100))
    stamp(a, 2, diag)
    def reduce(tag, extra):
        PT, XR, V = 64, 40, 48
        ld = []
        for j in range(7):
            ld += [f's_add_u32 s42, s{sRR}, {j*RING_J}', f'buffer_load_dwordx4 {vr(PT+4*j,4)}, v{vRO}, {wsr()}, s42 offen sc1']
        if extra: ld.append(f'buffer_load_dwordx4 {vr(XR,4)}, v{vRO}, {wsr()}, s{sX1} offen sc1')
        else: a(f'ds_read_b128 {vr(XR,4)}, v{vRO} offset:{XB}')
        spin(a, tag, ld, list(range(PT, PT+28)) + (list(range(XR, XR+4)) if extra else []), vt, sC, 15, sleep=2 if extra else 0)
        if not extra:
            stamp(a, 3, diag)
            a(f's_add_u32 s{sS}, s{sS}, 3\ns_cmp_lt_u32 s{sS}, 64\ns_cselect_b32 s37, {3*SEGB}, 0\ns_add_u32 s{sX1}, s{sX1}, s37\ns_add_u32 s{sB}, s{sX1}, 4096')
            for l in xl + [ack]: a(l)
            a('s_waitcnt lgkmcnt(0)')
        unpack8(a, V, XR)
        for j in range(7):
            for i in range(4):
                q = PT+4*j+i
                a(f'v_dot2_f32_bf16 v{V+2*i}, v{q}, s61, v{V+2*i}\nv_dot2_f32_bf16 v{V+2*i+1}, v{q}, s62, v{V+2*i+1}')
        pack8(a, XR, V)
        a(f's_cmp_eq_u32 s{sL}, 0\ns_cbranch_scc1 {tag}_LN')
        a('s_mov_b64 exec, s[50:51]')
        a(f'buffer_store_dwordx2 {vr(XR,2)}, v{vO}, s[{OS}:{OS+3}], s{sOUT} offen\nbuffer_store_dwordx2 {vr(XR+2,2)}, v{vO}, s[{OS}:{OS+3}], s{sOUT} offen offset:32')
        a(f's_mov_b64 exec, -1\ns_barrier\ns_branch {tag}_E')
        a.label(f'{tag}_LN')
        S = PT
        a(f'v_mov_b32 v{S}, 0\nv_mov_b32 v{S+1}, 0')
        for i in range(4): a(f'v_dot2_f32_bf16 v{S}, v{XR+i}, s52, v{S}\nv_dot2_f32_bf16 v{S+1}, v{XR+i}, v{XR+i}, v{S+1}')
        a(f'v_and_b32 v{vt}, 3, v1\nv_lshlrev_b32 v{vt}, 3, v{vt}\nv_add_u32 v{vt}, {STB+512}, v{vt}\ns_lshl_b32 s37, s3, 5\nv_add_u32 v{S+4}, s37, v{vt}')
        a(f'v_mul_f32 v{S}, v{S}, v{vMK}\nv_mul_f32 v{S+1}, v{S+1}, v{vMK}\ns_add_u32 s42, s{sOUT}, {XR2}')
        for r in (4, 8):
            for k in range(2): a(f'v_add_f32_dpp v{S+k}, v{S+k}, v{S+k} row_ror:{r} row_mask:0xf bank_mask:0xf')
        for sw in ('v_permlane16_swap_b32', 'v_permlane32_swap_b32'):
            a(f'v_mov_b32 v{S+2}, v{S}\nv_mov_b32 v{S+3}, v{S+1}\n{sw} v{S}, v{S+2}\n{sw} v{S+1}, v{S+3}\nv_add_f32 v{S}, v{S}, v{S+2}\nv_add_f32 v{S+1}, v{S+1}, v{S+3}')
        a(f'ds_write_b64 v{S+4}, {vr(S,2)}')
        a(f'buffer_store_dwordx4 {vr(XR,4)}, v{vRO}, {wsr()}, s42 offen sc1')
        unpack8(a, V, XR)
        a('s_waitcnt lgkmcnt(0)\ns_barrier')
        a(f'ds_read2_b64 {vr(S,4)}, v{vt} offset0:0 offset1:4\nds_read2_b64 {vr(S+4,4)}, v{vt} offset0:8 offset1:12\ns_add_u32 s42, s{sOUT}, {XS2}')
        a('s_waitcnt lgkmcnt(0)')
        a(f'v_pk_add_f32 {vr(S,2)}, {vr(S,2)}, {vr(S+2,2)}\nv_pk_add_f32 {vr(S+4,2)}, {vr(S+4,2)}, {vr(S+6,2)}\nv_pk_add_f32 {vr(S,2)}, {vr(S,2)}, {vr(S+4,2)}')
        a(f'v_mul_f32 v{S}, s53, v{S}\nv_mul_f32 v{S+2}, v{S}, v{S}\nv_fma_f32 v{S+2}, v{S+1}, s53, -v{S+2}\nv_max_f32 v{S+2}, 0, v{S+2}\nv_add_f32 v{S+2}, {f2u(1e-5):#x}, v{S+2}\nv_rsq_f32 v{S+2}, v{S+2}')
        for i in range(4): a(f'v_pk_add_f32 {vr(V+2*i,2)}, {vr(V+2*i,2)}, {vr(S,2)} op_sel_hi:[1,0] neg_lo:[0,1] neg_hi:[0,1]')
        for i in range(4): a(f'v_pk_mul_f32 {vr(V+2*i,2)}, {vr(V+2*i,2)}, {vr(S+2,2)} op_sel_hi:[1,0]')
        pack8(a, S+4, V)
        a(f'buffer_store_dwordx4 {vr(S+4,4)}, v{vRO}, {wsr()}, s42 offen sc1')
        a.label(f'{tag}_E')
    reduce('FF_R', False)
    if diag: stamp(a, 4, diag); a(f's_sub_u32 s59, s{sS}, 3'); dump(a, diag, 4, 59, 64, vt); a('s_waitcnt vmcnt(0)')
    a(f's_add_u32 s{sRW}, s{sRW}, s56\ns_add_u32 s{sRR}, s{sRR}, s56\ns_add_u32 s41, s41, 1\ns_cmp_eq_u32 s41, 3\ns_cselect_b32 s41, 0, s41')
    a(f's_add_u32 s{sOUT}, s{sOUT}, {3*SEGB}\ns_add_u32 s63, s63, 1\ns_cmp_lt_u32 s{sS}, 64\ns_cbranch_scc1 FF_TASK')
    dstamp(a, f's_mul_i32 s88, s{sL}, 3\ns_add_u32 s88, s88, s{sREP}\ns_lshl_b32 s88, s88, 2\ns_add_u32 s88, s88, 24')
    a('s_endpgm')
    a.label('FF_ACK')
    a(f's_mov_b32 s{sC}, 0')
    a.label('FF_ACK_L')
    a(ack); guard(a, sC, 16)
    a(f's_waitcnt vmcnt(0)\nv_cmp_gt_i32 vcc, s63, v{vAK}\ns_cbranch_vccnz FF_ACK_L\ns_branch FF_ACKED')
    a.label('FR')
    a(f's_mul_i32 s{sX1}, s{sL}, {64*SEGB}\ns_add_u32 s{sX1}, s{sX1}, {X1}\ns_mov_b32 s{sOUT}, 0\ns_mov_b32 s{sS}, 0\ns_mov_b32 s63, 0\ns_mov_b32 s54, 0')
    a.label('FR_L')
    a(f's_mul_i32 s37, s{sL}, 3\ns_add_u32 s37, s37, s54\ns_mul_i32 s{sRR}, s37, {RING_SET}\ns_mul_i32 s39, s41, {RING_SLOT}\ns_add_u32 s{sRR}, s{sRR}, s39\ns_add_u32 s{sRR}, s{sRR}, {RING}')
    a(f's_lshl_b32 s55, s37, 7\ns_add_u32 s55, s55, {TKT+8*128}')
    a(mark)
    for i in range(4): a(f'v_mov_b32 v{WSt+8+i}, -1')
    for k in (59, 60): a(f'buffer_store_dwordx4 {vr(WSt+8,4)}, v{vRO}, {wsr()}, s{k} offen sc1')
    reduce('FR_R', True)
    a(f'v_mov_b32 v{vAK}, s63\nbuffer_store_dword v{vAK}, off, {wsr()}, s55')
    a(f's_add_u32 s{sX1}, s{sX1}, {SEGB}\ns_add_u32 s{sOUT}, s{sOUT}, {SEGB}\ns_add_u32 s{sS}, s{sS}, 1\ns_add_u32 s54, s54, 1\ns_cmp_lt_u32 s54, 3\ns_cbranch_scc1 FR_N')
    a('s_mov_b32 s54, 0\ns_add_u32 s63, s63, 1\ns_add_u32 s41, s41, 1\ns_cmp_eq_u32 s41, 3\ns_cselect_b32 s41, 0, s41')
    a.label('FR_N')
    a(f's_barrier\ns_cmp_lt_u32 s{sS}, 64\ns_cbranch_scc1 FR_L\ns_endpgm')
```

```python
from common import *
from layout import *
from lsched import schedule
from asmlib import regs_of
WS = 12
sL, sI = 16, 17
sREP = 18
SPIN = 1 << 17
OPT = dict(ra_k=2, ra_sleep=8, ra_gap=40, rb_k=1, rb_msleep=0, rb_pk=2, rb_psleep=0, rb_gap=48, gap=0, ra_dma=0, ra_touch=0)
def wsr(): return f's[{WS}:{WS+3}]'
def wreg(f, n=4):
    return ar(4*f, n) if f < 64 else vr(120 + 4*(f-64), n)
sNON = 90
def wait_tags(a, tag, base, n, code):
    a(f's_cmp_lg_u32 s3, 0\ns_cbranch_scc1 {tag}_B\nv_min_u32 v16, {n//4-1}, v1\nv_lshlrev_b32 v16, 4, v16\ns_mov_b32 s58, {base}\ns_mov_b32 s59, 0')
    a.label(f'{tag}_L')
    a(f'buffer_load_dwordx4 v[12:15], v16, {wsr()}, s58 offen sc1')
    guard(a, 59, code)
    a('s_waitcnt vmcnt(0)')
    for i in range(4): a(f'v_xor_b32 v{12+i}, s{sNON}, v{12+i}')
    a(f'v_or3_b32 v12, v12, v13, v14\nv_or_b32 v12, v12, v15\nv_cmp_ne_u32 vcc, 0, v12\ns_cbranch_vccz {tag}_B\ns_sleep 1\ns_branch {tag}_L')
    a.label(f'{tag}_B')
    a('s_barrier')
def load_weights(a, role, sbase, nreg, vL16, lds_frags=0, lds_base_s=None, blocks=None):
    def frag(f):
        if f < nreg: return f'buffer_load_dwordx4 {wreg(f)}, v{vL16}, {wsr()}, s57 offen offset:{(f%4)*1024}'
        return f's_add_u32 m0, s{lds_base_s}, {(f-nreg)*1024 - (f%4)*1024}\nbuffer_load_dwordx4 v{vL16}, {wsr()}, s57 offen offset:{(f%4)*1024} lds'
    def run(f0, f1):
        for f in range(f0, f1):
            if f == f0 or f % 4 == 0: a(f's_add_u32 s57, s{sbase}, {(f//4)*4096}')
            a(frag(f))
    if blocks is None:
        wait_tags(a, f'{role}_TA', FLA, 256, 18)
        run(0, nreg + lds_frags)
        a('s_waitcnt vmcnt(0)')
        return
    per, nprod, emit = blocks
    emit(12)
    a(f'v_lshlrev_b32 v12, 2, v12\ns_mov_b32 s58, {FLA}\ns_mov_b32 s59, 0\ns_mov_b32 s56, 0x7f')
    a.label(f'{role}_WL')
    a(f'buffer_load_dword v13, v12, {wsr()}, s58 offen sc1')
    guard(a, 59, 18)
    a(f's_waitcnt vmcnt(0)\nv_cmp_eq_u32 vcc, s{sNON}, v13\ns_mov_b32 s55, vcc_lo')
    for k in range(1, nprod): a(f's_lshr_b32 s54, vcc_lo, {8*k}\ns_and_b32 s55, s55, s54')
    a('s_and_b32 s55, s55, s56\ns_andn2_b32 s56, s56, s55')
    for b in range(7):
        a(f's_bitcmp1_b32 s55, {b}\ns_cbranch_scc0 {role}_WS{b}')
        run(b*per, (b+1)*per)
        a.label(f'{role}_WS{b}')
    a(f's_cmp_lg_u32 s56, 0\ns_cbranch_scc1 {role}_WL')
    a('s_waitcnt vmcnt(0)')
    wait_tags(a, f'{role}_TA', FLA, 256, 18)
def prod_A(a, sH):
    return lambda v: a(f's_and_b32 s56, s{sH}, 1\ns_mul_i32 s56, s56, 112\ns_lshr_b32 s57, s{sH}, 1\ns_add_u32 s56, s56, s57\nv_and_b32 v{v}, 7, v1\nv_min_u32 v{v}, 6, v{v}\nv_lshl_add_u32 v{v}, v{v}, 3, s56')
def prod_B(a):
    return lambda v: a(f'v_and_b32 v{v}, 7, v1\nv_min_u32 v{v}, 6, v{v}\nv_lshlrev_b32 v{v}, 3, v{v}\nv_bfe_u32 v{v+1}, v1, 3, 1\nv_mul_u32_u24 v{v+1}, 112, v{v+1}\nv_add_u32 v{v}, v{v}, v{v+1}\nv_bfe_u32 v{v+1}, v1, 4, 1\nv_add_u32 v{v}, v{v}, v{v+1}\ns_lshl_b32 s56, s3, 1\ns_add_u32 s56, s56, 56\nv_add_u32 v{v}, s56, v{v}')
def dstamp(a, slot, cond=None):
    if not OPT.get('dd'): return
    a('s_waitcnt lgkmcnt(0)\ns_memrealtime s[86:87]\ns_waitcnt lgkmcnt(0)\nv_mov_b32 v12, s86')
    a(slot if isinstance(slot, str) else f's_mov_b32 s88, {4*slot}')
    a('buffer_store_dword v12, off, s[92:95], s88')
def wstamp(a, diag):
    if not diag: return
    a(f's_waitcnt vmcnt(0)\ns_memrealtime s[84:85]\ns_waitcnt lgkmcnt(0)\nv_mov_b32 v12, s80\nv_mov_b32 v13, s82\nv_mov_b32 v14, s84\nv_mov_b32 v15, s19')
    a(f's_lshl_b32 s60, s2, 2\ns_add_u32 s60, s60, s3\ns_lshl_b32 s60, s60, 4\ns_add_u32 s60, s60, {DBG + (1<<20) + 16384}\nv_mov_b32 v16, 0\nbuffer_store_dwordx4 v[12:15], v16, {wsr()}, s60 offen\ns_waitcnt vmcnt(0)')
def allset(a, dst, regs):
    regs = list(regs); cur = None
    while regs:
        if cur is None:
            if len(regs) >= 3: a(f'v_max3_u32 v{dst}, v{regs[0]}, v{regs[1]}, v{regs[2]}'); regs = regs[3:]
            elif len(regs) == 2: a(f'v_max_u32 v{dst}, v{regs[0]}, v{regs[1]}'); regs = []
            else: a(f'v_cmp_eq_u32 vcc, -1, v{regs[0]}'); return
            cur = dst
        elif len(regs) >= 2: a(f'v_max3_u32 v{dst}, v{dst}, v{regs[0]}, v{regs[1]}'); regs = regs[2:]
        else: a(f'v_max_u32 v{dst}, v{dst}, v{regs[0]}'); regs = []
    a(f'v_cmp_eq_u32 vcc, -1, v{dst}')
def guard(a, s, code):
    a(f's_add_u32 s{s}, s{s}, 1\ns_cmp_gt_u32 s{s}, {SPIN}\ns_mov_b32 s99, {code}\ns_cbranch_scc1 FAIL')
def poll(a, tag, sets, issue, vt, scnt, code, gap=0, shadow=()):
    n = None
    a(f's_mov_b32 s{scnt}, 0')
    for k in range(len(sets)):
        n = issue(k)
        if gap and k < len(sets)-1:
            for _ in range(gap // 16): a('s_nop 15')
            if gap % 16: a(f's_nop {gap % 16 - 1}')
    for l in shadow: a(l)
    a.label(f'{tag}_L')
    for k in range(len(sets)):
        a(f's_waitcnt vmcnt({n*(len(sets)-1)})')
        allset(a, vt, sets[k])
        a(f's_cbranch_vccz {tag}_OK{k}')
        if OPT['gap']: a(f's_sleep {OPT["gap"]}')
        issue(k)
    guard(a, scnt, code)
    a(f's_branch {tag}_L')
def stamp(a, n, diag, role=None):
    if diag == 3:
        iv = OPT.get('iv')
        if iv and role == iv[0]:
            if n == iv[2]: a('s_waitcnt lgkmcnt(0)\ns_memtime s[88:89]\ns_waitcnt lgkmcnt(0)\ns_sub_u32 s88, s88, s86\ns_cmp_lt_u32 s88, 20000\ns_cselect_b32 s88, s88, 0\ns_add_u32 s78, s78, s88')
            if n == iv[1]: a('s_waitcnt lgkmcnt(0)\ns_memtime s[86:87]\ns_waitcnt lgkmcnt(0)')
        return
    op = 's_memrealtime' if diag == 2 else 's_memtime'
    if diag: a(f's_waitcnt lgkmcnt(0)\n{op} s[{64+2*n}:{65+2*n}]\ns_waitcnt lgkmcnt(0)')
def dump(a, diag, role, sStep, v, vz, n=7, tag=''):
    if not diag or diag == 3: return
    t = f'DUMP{role}{tag}'
    a(f's_cmp_lg_u32 s3, 0\ns_cbranch_scc1 {t}')
    a(f's_lshl_b32 s60, s{sL}, 4\ns_add_u32 s60, s60, s{sI}\ns_add_u32 s60, s60, {role*32}\ns_lshl_b32 s60, s60, 6\ns_add_u32 s60, s60, s{sStep}\ns_lshl_b32 s60, s60, 5\ns_add_u32 s60, s60, {DBG}')
    for i in range(n):
        a(f'v_mov_b32 v{v}, s{64+2*i}\nv_mov_b32 v{vz}, {4*i}\nbuffer_store_dword v{v}, v{vz}, {wsr()}, s60 offen')
    a.label(t)

def mem_gather(a, tag, sMEM, vP1, vP2, ST, vt, scnt, code, K=2, gap=0, shadow=()):
    def issue(k):
        a(f'buffer_load_dwordx4 {vr(ST+8*k,4)}, v{vP1}, {wsr()}, s{sMEM} offen sc1')
        a(f'buffer_load_dwordx4 {vr(ST+8*k+4,4)}, v{vP2}, {wsr()}, s{sMEM} offen sc1'); return 2
    poll(a, tag, [range(ST, ST+8), range(ST+8, ST+16)][:K], issue, vt, scnt, code, gap, shadow)
    for k in range(K):
        a.label(f'{tag}_OK{k}')
        a(f'ds_write_b128 v{vP1}, {vr(ST+8*k,4)}\nds_write_b128 v{vP2}, {vr(ST+8*k+4,4)}')
        if k < K-1: a(f's_branch {tag}_DONE')
    a.label(f'{tag}_DONE')
def rec_common(a, vL16, vP1, vP2, vIDX, vt):
    a(f'v_lshlrev_b32 v{vL16}, 4, v1\ns_mul_i32 s20, s3, 1792\nv_add_u32 v{vP1}, s20, v{vL16}')
    a(f'v_add_u32 v{vP2}, 1024, v{vP1}\nv_cmp_gt_u32 vcc, 48, v1\nv_cndmask_b32 v{vP2}, v{vP1}, v{vP2}, vcc')
    a(f'v_and_b32 v{vt}, 1, v1\nv_cmp_eq_u32 vcc, 0, v{vt}\nv_mov_b32 v{vIDX}, 0xeeee\nv_mov_b32 v{vt}, 0x4444\nv_cndmask_b32 v{vIDX}, v{vIDX}, v{vt}, vcc')

def gen_RA(a, diag=False):
    vL16, vP1, vP2, vIDX, vt, vK, vMK, vSW, vSR, vPS, vPM = 2, 3, 4, 5, 6, 7, 8, 9, 10, 11, 0
    ME, KM, UA, XK, FO, TP = 12, 40, 56, 84, 112, 116
    vK1, vMK1, vA0, vA1, vTH = 114, 115, 54, 55, 1
    vKL, vK1a, vTO, vTD = 118, 119, 117, 116
    ST = KM
    MB = 7424; RED = 3 * MB; KB0 = 32768
    sMEM, sXS, sPM, sS, sC, sC2, sM0, sBUF = 21, 22, 23, 24, 25, 26, 33, 35
    HB = 36
    a.label('RA')
    rec_common(a, vL16, vP1, vP2, vIDX, vt)
    a(f's_mov_b32 s{sM0}, s20')
    a(f's_lshl_b32 s34, s{sI}, 2\ns_add_u32 s34, s34, s3\ns_mul_i32 s20, s34, {98*KB}')
    if AIMG: a(f's_add_u32 s20, s20, {AIMG}')
    load_weights(a, 'RA', 20, 98, vL16, blocks=(14, 1, prod_A(a, sI))); wstamp(a, diag)
    a(f'v_and_b32 v{vt}, 14, v1\nv_lshlrev_b32 v{vMK}, 4, v{vt}\nv_lshrrev_b32 v{vt}, 5, v1\nv_lshl_add_u32 v{vMK}, v{vt}, 8, v{vMK}\nv_bfe_u32 v{vt}, v1, 4, 1\nv_lshl_add_u32 v{vMK}, v{vt}, 3, v{vMK}')
    a('s_lshr_b32 s27, s3, 1\ns_mul_i32 s27, s27, 7\ns_add_u32 s27, s27, 3\ns_and_b32 s28, s3, 1')
    a(f's_lshl_b32 s29, s27, 10\ns_lshl_b32 s30, s28, 3\ns_add_u32 s29, s29, s30\nv_add_u32 v{vK1}, s29, v{vL16}\ns_lshl_b32 s29, s27, 9\ns_lshl_b32 s30, s28, 2\ns_add_u32 s29, s29, s30\nv_add_u32 v{vMK1}, s29, v{vMK}')
    a('s_mul_i32 s27, s3, 7\ns_add_u32 s27, s27, 1\ns_lshr_b32 s27, s27, 1\ns_lshl_b32 s28, s27, 10\ns_lshl_b32 s27, s27, 9')
    a(f'v_add_u32 v{vK}, s28, v{vL16}\nv_add_u32 v{vMK}, s27, v{vMK}')
    a(f'v_lshrrev_b32 v{vt}, 4, v1\nv_lshlrev_b32 v{vt}, 1, v{vt}\nv_and_b32 v{ST}, 7, v1\nv_sub_u32 v{vt}, v{ST}, v{vt}\nv_mov_b32 v{ST}, 0x3f803f80')
    for d in range(2): a(f'v_cmp_eq_u32 vcc, {d}, v{vt}\nv_cndmask_b32 v{FO+d}, 0, v{ST}, vcc')
    a(f'v_and_b32 v{vt}, 7, v1\nv_bfe_u32 v{ST}, v1, 3, 1\nv_cmp_eq_u32 s[{HB}:{HB+1}], 1, v{ST}\nv_lshl_add_u32 v{vt}, v{vt}, 1, v{ST}')
    a(f'v_lshrrev_b32 v{ST}, 5, v1\nv_lshlrev_b32 v{ST}, 3, v{ST}\nv_xor_b32 v{vt}, v{vt}, v{ST}\nv_and_b32 v{ST}, 48, v1\nv_add_lshl_u32 v{vt}, v{vt}, v{ST}, 3')
    a(f's_mul_i32 s27, s3, 1536\ns_add_u32 s27, s27, {RED}\nv_add_u32 v{vSW}, s27, v{vt}')
    a(f'v_lshrrev_b32 v{vt}, 4, v1\nv_lshlrev_b32 v{vt}, 2, v{vt}\nv_bfe_u32 v{ST}, v1, 1, 2\nv_add_u32 v{vt}, v{vt}, v{ST}\nv_and_b32 v{ST}, 8, v1\nv_xor_b32 v{vt}, v{vt}, v{ST}')
    a(f'v_lshl_add_u32 v{vt}, v{ST}, 2, v{vt}\nv_and_b32 v{ST}, 1, v1\nv_lshl_add_u32 v{vt}, v{ST}, 4, v{vt}\nv_lshlrev_b32 v{vt}, 3, v{vt}\nv_add_u32 v{vSR}, {RED}, v{vt}\nv_lshlrev_b32 v{vt}, 3, v1')
    a(f's_lshr_b32 s27, s{sI}, 2\ns_mul_i32 s27, s27, 3072\ns_bfe_u32 s28, s{sI}, 0x10001\ns_and_b32 s29, s{sI}, 1')
    a(f's_lshl_b32 s30, s28, 10\ns_lshl_b32 s31, s29, 9\ns_add_u32 s30, s30, s31\ns_add_u32 s30, s30, s27\nv_add_u32 v{vPS}, s30, v{vt}')
    a(f's_lshl_b32 s30, s28, 9\ns_lshl_b32 s31, s29, 2\ns_add_u32 s30, s30, s31\ns_add_u32 s30, s30, s27\ns_add_u32 s30, s30, 2048\nv_add_u32 v{vPM}, s30, v{vt}')
    a(f's_mul_i32 s{sMEM}, s{sL}, {MEM_L}\ns_add_u32 s{sMEM}, s{sMEM}, {MEMX}')
    a(f's_mov_b32 s{sXS}, {XS1}\ns_cmp_eq_u32 s{sL}, 1\ns_cselect_b32 s{sXS}, {XS2}, s{sXS}')
    a(f's_mul_i32 s{sPM}, s{sL}, {64*PM_STEP}\ns_add_u32 s{sPM}, s{sPM}, {PM}\ns_mov_b32 s{sS}, 0\nv_mov_b32 v{vTH}, {f2u(OPT.get("th", 64.0)):#x}')
    def keyl(base_s, voff, voff1, dst, st):
        return [f'buffer_load_dwordx4 {vr(dst+4*p,4)}, v{voff}, {wsr()}, s{base_s} offen offset:{st*p} sc1' for p in range(3)] + \
               [f'buffer_load_dwordx2 {vr(dst+12,2)}, v{voff1}, {wsr()}, s{base_s} offen sc1']
    a(f's_lshl_b32 s38, s3, 13\ns_add_u32 s38, s38, {KB0}\nv_add_u32 v{vKL}, s38, v{vL16}\ns_and_b32 s39, s3, 1\ns_lshl_b32 s39, s39, 3')
    def kdma():
        o = []
        for kt in range(2):
            for p in range(4):
                o += [f's_add_u32 m0, s38, {4096*kt + (0 if p < 3 else 3072)}'] if p in (0, 3) else []
                o.append(f'buffer_load_dwordx4 v{vK if p < 3 else vK1a}, {wsr()}, s{27 if kt else sXS} offen offset:{1024*p if p < 3 else 0} sc1 lds')
        return o
    a('v_mov_b32 v116, -1\nv_mov_b32 v117, -1')
    a(f'v_and_b32 v{vK1a}, -16, v{vK1}\ns_add_u32 s27, s{sXS}, {MT}')
    for l in kdma(): a(l)
    a('s_waitcnt vmcnt(0)')
    if diag == 3: a('s_memtime s[64:65]\ns_memrealtime s[68:69]\ns_waitcnt lgkmcnt(0)\ns_mov_b32 s72, 0\ns_mov_b32 s74, 0\ns_mov_b32 s78, 0\ns_mov_b32 s86, 0')
    dstamp(a, f's_lshl_b32 s88, s{sL}, 2\ns_add_u32 s88, s88, 8')
    a.label('RA_STEP')
    a(f'v_add_u32 v{vt}, s39, v{vKL}')
    for kt in range(2):
        for p in range(3): a(f'ds_read_b128 {vr(XK+14*kt+4*p,4)}, v{vKL} offset:{4096*kt+1024*p}')
        a(f'ds_read_b64 {vr(XK+14*kt+12,2)}, v{vt} offset:{4096*kt+3072}')
    for i in range(28): a(f'v_mov_b32 v{UA+i}, 0')
    a(f's_mov_b32 s{sC2}, 0\ns_waitcnt lgkmcnt(0)')
    allset(a, vt, range(XK, XK+28))
    a('s_cbranch_vccnz RA_KL')
    a.label('RA_KOK')
    a(f's_add_u32 s{sXS}, s{sXS}, {SEGB}\ns_add_u32 s27, s{sXS}, {MT}')
    a(f's_add_u32 s41, s{sPM}, {2*PM_STEP}\ns_cmp_lt_u32 s{sS}, 62\ns_cselect_b32 s41, s41, {OOB}\ns_cmp_eq_u32 s3, 0\ns_cselect_b32 s41, s41, {OOB}\ns_bitcmp0_b32 s{sI}, 0\ns_cselect_b32 s42, s41, {OOB}')
    stamp(a, 3, diag, 'RA')
    if OPT['ra_sleep']: a(f's_sleep {OPT["ra_sleep"]}')
    def dma(k):
        a(f's_add_u32 m0, s{sM0}, {k*MB}' if k else f's_mov_b32 m0, s{sM0}')
        a(f'buffer_load_dwordx4 v{vP1}, {wsr()}, s{sMEM} offen sc1 lds\nbuffer_load_dwordx4 v{vP1}, {wsr()}, s{sMEM} offen offset:1024 sc1 lds')
    pre = []
    if OPT.get('ra_dma', 1):
        a(f's_mov_b32 s{sC}, 0')
        dma(0)
        for _ in range(OPT['ra_gap'] // 16): a('s_nop 15')
        if OPT['ra_gap'] % 16: a(f's_nop {OPT["ra_gap"] % 16 - 1}')
        a.label('RA_M_L')
        for k in range(3):
            dma((k+1) % 3)
            a(f's_mov_b32 s{sBUF}, {k*MB}\ns_waitcnt vmcnt(2)\ns_barrier')
            for b in range(7): a(f'ds_read_b128 {vr(ME+4*b,4)}, v{vL16} offset:{k*MB+1024*b}')
            for b in range(7):
                q = ME+4*b
                a(f's_waitcnt lgkmcnt({6-b})')
                a(f'v_max3_u32 v{vt}, v{q}, v{q+1}, v{q+2 if b == 0 else vt}')
                a(f'v_max_u32 v{vt}, v{vt}, v{q+3}' if b == 0 else f'v_max3_u32 v{vt}, v{q+2}, v{q+3}, v{vt}')
            a(f'v_cmp_eq_u32 vcc, -1, v{vt}\ns_cbranch_vccz RA_M_OK')
            if diag == 3: a('s_add_u32 s72, s72, 1')
        guard(a, sC, 1)
        a('s_branch RA_M_L')
    else:
        a(f's_mov_b32 s{sBUF}, 0')
        mem_gather(a, 'RA_M', sMEM, vP1, vP2, ST, vt, sC, 1, OPT['ra_k'], OPT['ra_gap'])
        a('s_waitcnt lgkmcnt(0)\ns_barrier')
        pre = [f'ds_read_b128 {vr(ME+4*b,4)}, v{vL16} offset:{1024*b}' for b in range(7)]
    a.label('RA_M_OK')
    stamp(a, 0, diag, 'RA')
    if diag == 3: a(f's_add_u32 s72, s72, s{sC}\ns_add_u32 s74, s74, s{sC2}')
    stamp(a, 1, diag, 'RA')
    SA = [UA+4, UA+12, UA+20]
    UT = lambda p: UA + 8*p
    ops = list(pre); bias = {}
    assert pre
    ops.append(f'v_add_u32 v{vt}, 1024, v{vMK}')
    nk = len(ops)
    for p in range(3):
        for nt in range(2): ops.append(f'ds_read2_b32 {vr(KM+4*p+2*nt,2)}, v{vMK if p < 2 else vt} offset0:{(128*p+nt) % 256} offset1:{(128*p+nt) % 256 + 4}')
    ops.append(f'ds_read2_b32 {vr(KM+12,2)}, v{vMK1} offset0:0 offset1:4')
    nd = len(ops)
    ops += kdma()
    ops += [f'buffer_store_dwordx2 v[116:117], v{vPS}, {wsr()}, s41 offen', f'buffer_store_dwordx2 v[116:117], v{vPM}, {wsr()}, s42 offen']
    n0 = len(ops)
    for tl in range(7):
        c = UA+4*tl; tp = vA0; ut = UT(tl >> 1) + 2*(tl & 1)
        for b in range(7):
            bias[len(ops)] = OPT.get('ra_bias', 60) * (6 - max(tl, 1 if pre else 0)) if b == 6 else 0
            ops.append(f'v_smfmac_f32_16x16x64_bf16 {vr(c,4)}, {vr(ME+4*b,4)}, {wreg((b*7+tl)*2, 8)}, v{vIDX}')
        ops += [f'v_cvt_pk_bf16_f32 v{tp}, v{c}, v{c+1}', f'v_cvt_pk_bf16_f32 v{tp+1}, v{c+2}, v{c+3}']
        ops.append(f'v_mfma_f32_16x16x16_bf16 {vr(c,4)}, {vr(tp,2)}, {vr(FO,2)}, 0')
        ops += [f'v_cvt_pk_bf16_f32 v{ut}, v{c}, v{c+1}', f'v_cvt_pk_bf16_f32 v{ut+1}, v{c+2}, v{c+3}']
    for kt in (2, 0, 1):
        kb = (XK, XK+14, KM)[kt]; c = vr(SA[kt], 4)
        for p in range(4):
            if p < 3: ops.append(f'v_mfma_f32_16x16x32_bf16 {c}, {vr(kb+4*p,4)}, {vr(UT(p),4)}, {c if p else 0}')
            else: ops.append(f'v_mfma_f32_16x16x16_bf16 {c}, {vr(kb+12,2)}, {vr(UT(3),2)}, {c}')
    ops += [f's_add_u32 s{sMEM}, s{sMEM}, {MEM_STEP}', f's_add_u32 s{sS}, s{sS}, 1']
    for kt in (2, 0, 1):
        c = SA[kt]
        ops.append(f'v_cndmask_b32 v{c}, v{c}, v{c+2}, s[{HB}:{HB+1}]')
        if kt < 2: ops += [f'v_cndmask_b32 v{c+1}, v{c+1}, v{c+3}, s[{HB}:{HB+1}]', f'ds_write_b64 v{vSW}, {vr(c,2)} offset:{512*kt}']
        else: ops.append(f'ds_write_b32 v{vSW}, v{c} offset:{512*kt}')
    out, vm, lg = schedule(ops, L=dict(ds=80, vmgap=80), prio_bias=bias, vm_in=[set(regs_of(vr(ST, 16)))], late={nk: 300, nd: 100})
    print('RA core estimate', schedule.cycles)
    for l in out:
        if not (OPT.get('x_nou') and 'smfmac' in l): a(l)
    stamp(a, 2, diag, 'RA')
    a('s_cmp_lg_u32 s3, 0\ns_waitcnt lgkmcnt(0)\ns_barrier')
    if diag: stamp(a, 4, diag, 'RA'); a('s_cmp_lg_u32 s3, 0')
    a('s_cbranch_scc1 RA_NEXT')
    R = UA
    for kt in (2, 0, 1):
        for pp in range(2):
            a(f'ds_read2st64_b64 {vr(R+8*kt+4*pp,4)}, v{vSR} offset0:{kt+6*pp} offset1:{kt+6*pp+3}')
    x = [R, R+1, R+8, R+9, R+16]; m, t = R+2, R+3
    y = [R+4, R+5, R+12, R+13, R+20]
    b = R+16
    a(f's_waitcnt lgkmcnt(4)\nv_add_f32 v{b}, v{b}, v{b+2}\nv_add_f32 v{b+4}, v{b+4}, v{b+6}\nv_add_f32 v{b}, v{b}, v{b+4}\nv_exp_f32 v{y[4]}, v{x[4]}')
    for n, kt in enumerate((0, 1)):
        b = R+8*kt
        a(f's_waitcnt lgkmcnt({2-2*n})')
        a(f'v_pk_add_f32 {vr(b,2)}, {vr(b,2)}, {vr(b+2,2)}\nv_pk_add_f32 {vr(b+4,2)}, {vr(b+4,2)}, {vr(b+6,2)}\nv_pk_add_f32 {vr(b,2)}, {vr(b,2)}, {vr(b+4,2)}')
        a(f'v_exp_f32 v{y[2*kt]}, v{x[2*kt]}')
        a(f'v_max3_f32 v{m}, |v{x[2*kt]}|, |v{x[2*kt+1]}|, |v{x[4] if n == 0 else m}|')
        a(f'v_exp_f32 v{y[2*kt+1]}, v{x[2*kt+1]}')
    a(f'v_cmp_nle_f32 vcc, v{m}, v{vTH}\nv_add_f32 v{t}, v{y[0]}, v{y[1]}\ns_cbranch_vccnz RA_SHIFT')
    a.label('RA_SUM')
    a(f'v_add_f32 v{m}, v{y[4]}, v{y[2]}\nv_add_f32 v{t}, v{t}, v{y[3]}\nv_add_f32 v{m}, v{m}, v{t}')
    DP = ('quad_perm:[1,0,3,2]', 'quad_perm:[2,3,0,1]', 'row_ror:8')
    for ctl in DP: a(f'v_add_f32_dpp v{m}, v{m}, v{m} {ctl} row_mask:0xf bank_mask:0xf')
    a(f'v_rcp_f32 v{m}, v{m}')
    o = R+8
    for k in range(2): a(f'v_pk_mul_f32 {vr(y[2*k],2)}, {vr(y[2*k],2)}, {vr(m,2)} op_sel_hi:[1,0]')
    a(f'v_mul_f32 v{y[4]}, v{y[4]}, v{m}')
    for k in range(2): a(f'v_cvt_pk_bf16_f32 v{o+k}, v{y[2*k]}, v{y[2*k+1]}')
    a(f'buffer_store_dwordx2 {vr(o,2)}, v{vPS}, {wsr()}, s{sPM} offen\nv_cvt_pk_bf16_f32 v{o+2}, v{y[4]}, v{y[4]}\nbuffer_store_dword v{o+2}, v{vPM}, {wsr()}, s{sPM} offen')
    stamp(a, 5, diag, 'RA'); dump(a, diag, 0, sS, m, vt)
    a.label('RA_NEXT')
    a('s_waitcnt vmcnt(2)\ns_cmp_eq_u32 s3, 0\ns_cbranch_scc1 RA_N2\ns_waitcnt vmcnt(0)')
    a.label('RA_N2')
    a('s_barrier')
    a(f's_add_u32 s{sPM}, s{sPM}, {PM_STEP}\ns_cmp_lt_u32 s{sS}, 63\ns_cbranch_scc1 RA_STEP')
    dstamp(a, f's_lshl_b32 s88, s{sL}, 2\ns_add_u32 s88, s88, 16')
    if diag == 3:
        a('s_memtime s[66:67]\ns_memrealtime s[70:71]\ns_waitcnt lgkmcnt(0)'); a(f's_mov_b32 s{sS}, 0'); dump(a, 1, 0, sS, UA, vt, n=8, tag='E')
    a('s_endpgm')
    a.label('RA_KL')
    for l in keyl(sXS, vK, vK1, XK, 1024) + keyl(27, vK, vK1, XK+14, 1024): a(l)
    guard(a, sC2, 2)
    a('s_waitcnt vmcnt(0)')
    allset(a, vt, range(XK, XK+28))
    a('s_cbranch_vccnz RA_KL\ns_branch RA_KOK')
    a.label('RA_SHIFT')
    a(f'v_max3_f32 v{m}, v{x[0]}, v{x[1]}, v{x[2]}\nv_max3_f32 v{m}, v{x[3]}, v{x[4]}, v{m}')
    for ctl in DP: a(f'v_max_f32_dpp v{m}, v{m}, v{m} {ctl} row_mask:0xf bank_mask:0xf')
    for i in range(5): a(f'v_sub_f32 v{y[i]}, v{x[i]}, v{m}')
    for i in range(5): a(f'v_exp_f32 v{y[i]}, v{y[i]}')
    a(f'v_add_f32 v{t}, v{y[0]}, v{y[1]}\ns_branch RA_SUM')

def gen_RB(a, diag=False):
    vL16, vP1, vP2, vIDX, vt, vRW, vRR, vO, vWL, vPL, vF, vX = 2, 3, 4, 5, 6, 7, 8, 9, 10, 11, 0, 1
    ME, ST, WA, VV = 12, 40, 56, 88
    RED, WL = 8192, 16384
    sMEM, sVP, sPM, sFL, sS, sC, sO = 21, 22, 24, 25, 26, 27, 28
    a.label('RB')
    rec_common(a, vL16, vP1, vP2, vIDX, vt)
    a(f's_lshl_b32 s30, s{sI}, 2\ns_add_u32 s30, s30, s3\ns_mul_i32 s20, s30, {112*KB}\ns_add_u32 s20, s20, {BIMG}')
    a(f's_mul_i32 s31, s3, {14*KB}\ns_add_u32 s31, s31, {WL}\nv_add_u32 v{vWL}, s31, v{vL16}')
    load_weights(a, 'RB', 20, 98, vL16, 14, 31, blocks=(16, 4, prod_B(a))); wstamp(a, diag)
    a(f's_mul_i32 s{sMEM}, s{sL}, {MEM_L}\ns_add_u32 s{sMEM}, s{sMEM}, {MEMX}')
    a(f's_mul_i32 s{sVP}, s{sL}, {64*VP_STEP}\ns_lshl_b32 s32, s30, 13\ns_add_u32 s{sVP}, s{sVP}, s32\ns_add_u32 s{sVP}, s{sVP}, {VP}')
    a(f's_mul_i32 s{sPM}, s{sL}, {64*PM_STEP}\ns_mul_i32 s32, s3, 3072\ns_add_u32 s{sPM}, s{sPM}, s32\ns_add_u32 s{sPM}, s{sPM}, {PM}')
    a(f's_mul_i32 s{sFL}, s{sL}, {64*FL_STEP}\ns_lshl_b32 s32, s{sI}, 7\ns_add_u32 s{sFL}, s{sFL}, s32\ns_lshl_b32 s32, s3, 2\ns_add_u32 s{sFL}, s{sFL}, s32\ns_add_u32 s{sFL}, s{sFL}, {VF}')
    a(f'v_and_b32 v{vt}, 15, v1\nv_lshlrev_b32 v{vt}, 2, v{vt}\nv_lshrrev_b32 v{ST}, 4, v1\nv_lshl_add_u32 v{vt}, v{ST}, 8, v{vt}')
    a(f's_lshl_b32 s32, s3, 10\ns_add_u32 s32, s32, {RED}\nv_add_u32 v{vRW}, s32, v{vt}')
    a(f'v_lshrrev_b32 v{vt}, 5, v1\nv_lshlrev_b32 v{vPL}, 9, v{vt}\nv_bfe_u32 v{vt}, v1, 2, 2\nv_lshl_add_u32 v{vPL}, v{vt}, 7, v{vPL}\nv_bfe_u32 v{vt}, v1, 4, 1\nv_lshl_add_u32 v{vPL}, v{vt}, 6, v{vPL}\nv_and_b32 v{vt}, 3, v1\nv_lshl_add_u32 v{vPL}, v{vt}, 4, v{vPL}')
    T = ST
    a(f'v_and_b32 v{T}, 127, v0')
    a('s_cmp_ge_u32 s3, 2\ns_cbranch_scc1 RB_INIT_F')
    a(f'v_bfe_u32 v{T+1}, v{T}, 3, 3\nv_lshlrev_b32 v{vRR}, 7, v{T+1}\nv_and_b32 v{T+1}, 1, v{T}\nv_lshl_add_u32 v{vRR}, v{T+1}, 6, v{vRR}')
    a(f'v_lshrrev_b32 v{T+1}, 6, v{T}\nv_lshl_add_u32 v{vRR}, v{T+1}, 5, v{vRR}\nv_bfe_u32 v{T+1}, v{T}, 1, 1\nv_lshl_add_u32 v{vRR}, v{T+1}, 4, v{vRR}\nv_bfe_u32 v{T+1}, v{T}, 2, 1\nv_lshl_add_u32 v{vRR}, v{T+1}, 3, v{vRR}')
    a(f's_lshl_b32 s32, s{sI}, 9\nv_lshl_add_u32 v{vO}, v{T}, 2, s32\ns_branch RB_INIT_D')
    a.label('RB_INIT_F')
    a(f'v_bfe_u32 v{T+1}, v{T}, 2, 3\nv_lshlrev_b32 v{vRR}, 7, v{T+1}\nv_bfe_u32 v{T+1}, v{T}, 1, 1\nv_lshl_add_u32 v{vRR}, v{T+1}, 6, v{vRR}')
    a(f'v_lshrrev_b32 v{T+1}, 5, v{T}\nv_lshl_add_u32 v{vRR}, v{T+1}, 4, v{vRR}\nv_and_b32 v{T+1}, 1, v{T}\nv_lshl_add_u32 v{vRR}, v{T+1}, 3, v{vRR}')
    a(f's_lshl_b32 s32, s{sI}, 9\ns_add_u32 s32, s32, {MEM_ONE}\nv_lshl_add_u32 v{vO}, v{T}, 2, s32')
    a.label('RB_INIT_D')
    a(f's_add_u32 s{sO}, s{sMEM}, {MEM_ONE}\nbuffer_load_dword v{vX}, v{vO}, {wsr()}, s{sO} offen sc1')
    a(f'v_add_u32 v{vRR}, {RED}, v{vRR}\ns_mov_b32 s{sS}, 0\nv_mov_b32 v{vF}, -1\ns_waitcnt vmcnt(0)')
    if diag == 3: a('s_mov_b32 s72, 0\ns_mov_b32 s74, 0\ns_mov_b32 s76, 0\ns_mov_b32 s78, 0\ns_mov_b32 s86, 0')
    a.label('RB_STEP')
    a(f'v_cmp_eq_u32 vcc, -1, v{vF}\ns_cbranch_vccnz RB_VSLOW')
    a.label('RB_VOK')
    stamp(a, 0, diag, 'RB')
    if OPT['rb_msleep']: a(f's_sleep {OPT["rb_msleep"]}')
    mem_gather(a, 'RB_M', sMEM, vP1, vP2, ST, vt, sC, 4, OPT['rb_k'], shadow=[f'v_mov_b32 v{WA+i}, 0' for i in range(32)])
    stamp(a, 1, diag, 'RB')
    if diag == 3: a(f's_add_u32 s72, s72, s{sC}')
    a(f's_add_u32 s32, s{sVP}, 4096\ns_add_u32 s{sFL}, s{sFL}, {FL_STEP}')
    a(f's_add_u32 s33, s{sMEM}, {2*MEM_STEP}\ns_cmp_lt_u32 s{sS}, 62\ns_cselect_b32 s33, s33, {OOB}\ns_cmp_lt_u32 s3, 2\ns_cselect_b32 s33, s33, {OOB}')
    a(f's_add_u32 s34, s{sMEM}, {7*MEM_STEP+MEM_ONE}\ns_cmp_lt_u32 s{sS}, 57\ns_cselect_b32 s34, s34, {OOB}')
    a('s_waitcnt lgkmcnt(0)\ns_barrier')
    ops = [f'ds_read_b128 {vr(ME+4*b,4)}, v{vL16} offset:{1024*b}' for b in (0, 6, 1, 2, 3, 4, 5)]
    nv = len(ops)
    ops.append(f'buffer_store_dword v{vX}, v{vO}, {wsr()}, s{sO} offen sc1')
    ops += [f'v_mov_b32 v{vt}, -1', f'buffer_store_dword v{vt}, v{vO}, {wsr()}, s33 offen', f'buffer_store_dword v{vt}, v{vO}, {wsr()}, s34 offen sc1']
    if not OPT.get('x_nov'): ops += [f'buffer_load_dwordx4 {vr(VV+4*i,4)}, v{vL16}, {wsr()}, s{sVP if i < 4 else 32} offen offset:{1024*(i%4)} sc1' for i in range(8)]
    ops.append(f'buffer_load_dword v{vF}, off, {wsr()}, s{sFL} sc1')
    lead = []; rest = []
    for b in range(7):
        for u in range(8):
            f = (b*8+u)*2
            if f < 98: rest.append(f'v_smfmac_f32_16x16x64_bf16 {vr(WA+4*u,4)}, {vr(ME+4*b,4)}, {wreg(f, 8)}, v{vIDX}')
            else:
                w = ST+8*(u % 2)
                lead += [f'ds_read_b128 {vr(w,4)}, v{vWL} offset:{(f-98)*1024}', f'ds_read_b128 {vr(w+4,4)}, v{vWL} offset:{(f-97)*1024}',
                         f'v_smfmac_f32_16x16x64_bf16 {vr(WA+4*u,4)}, {vr(ME+4*b,4)}, {vr(w,8)}, v{vIDX}']
    for i in range(7): ops += rest[7*i:7*i+7] + lead[3*i:3*i+3]
    if OPT.get('x_now'): ops = [o for o in ops if 'smfmac' not in o]
    for u in range(8):
        c = WA+4*u; o = ME+8*(u & 1)+2*(u >> 1)
        ops += [f'v_cvt_pk_bf16_f32 v{o}, v{c}, v{c+1}', f'v_cvt_pk_bf16_f32 v{o+1}, v{c+2}, v{c+3}']
    ops += [f'v_mov_b32 v{ME+16+i}, 0' for i in range(8)]
    out, vm, lg = schedule(ops, L=dict(ds=80, vmgap=OPT.get('rb_vgap', 64)), vm_in=[set(regs_of(vr(ST, 16)))] if OPT['rb_k'] > 1 else [], late={nv: 90})
    print('RB w estimate', schedule.cycles)
    for l in out: a(l)
    WK, OA = ME, ME+16
    stamp(a, 2, diag, 'RB')
    sets = [ST, WA, WA+12][:OPT['rb_pk']]
    if diag in (1, 2): a('s_waitcnt vmcnt(0)')
    stamp(a, 3, diag, 'RB')
    if OPT['rb_psleep']: a(f's_sleep {OPT["rb_psleep"]}')
    def issue(k):
        for i in range(3): a(f'buffer_load_dwordx4 {vr(sets[k]+4*i,4)}, v{vPL}, {wsr()}, s{sPM} offen offset:{1024*i} sc1')
        return 3
    poll(a, 'RB_P', [range(s, s+12) for s in sets], issue, vt, sC, 5, OPT['rb_gap'])
    for k in range(len(sets)):
        a.label(f'RB_P_OK{k}')
        for blk in range(3):
            for nt in range(2):
                B = vr(VV+8*(blk*2+nt), 8) if blk < 2 else vr(WK+8*nt, 8)
                a(f'v_smfmac_f32_16x16x64_bf16 {vr(OA+4*nt,4)}, {vr(sets[k]+4*blk,4)}, {B}, v{vIDX}')
        if k < len(sets)-1: a('s_branch RB_P_DONE')
    a.label('RB_P_DONE')
    if diag == 3: a(f's_add_u32 s74, s74, s{sC}')
    stamp(a, 4, diag, 'RB')
    a(f's_add_u32 s{sMEM}, s{sMEM}, {MEM_STEP}\ns_add_u32 s{sO}, s{sMEM}, {MEM_ONE}')
    for nt in range(2):
        for jj in range(2):
            c = OA+4*nt+2*jj
            a(f'v_add_f32 v{c}, v{c}, v{c+1}\nds_write_b32 v{vRW}, v{c} offset:{128*jj+64*nt}')
    a('s_cmp_ge_u32 s3, 2\ns_waitcnt lgkmcnt(0)\ns_barrier')
    R = OA
    a('s_waitcnt vmcnt(0)')
    a(f'ds_read2st64_b64 {vr(R,4)}, v{vRR} offset0:0 offset1:2\nds_read2st64_b64 {vr(R+4,4)}, v{vRR} offset0:4 offset1:6')
    a(f's_waitcnt lgkmcnt(1)\nv_pk_add_f32 {vr(R,2)}, {vr(R,2)}, {vr(R+2,2)}\ns_waitcnt lgkmcnt(0)\nv_pk_add_f32 {vr(R+4,2)}, {vr(R+4,2)}, {vr(R+6,2)}\nv_pk_add_f32 {vr(R,2)}, {vr(R,2)}, {vr(R+4,2)}')
    a(f'v_cvt_pk_bf16_f32 v{vX}, v{R}, v{R+1}')
    a('s_cbranch_scc1 RB_NOLOC')
    a(f'buffer_store_dword v{vX}, v{vO}, {wsr()}, s{sMEM} offen')
    a.label('RB_NOLOC')
    a(f's_add_u32 s{sVP}, s{sVP}, {VP_STEP}\ns_add_u32 s{sPM}, s{sPM}, {PM_STEP}\ns_add_u32 s{sS}, s{sS}, 1')
    stamp(a, 5, diag, 'RB'); dump(a, diag, 1, sS, OA+1, vt)
    a(f's_cmp_lt_u32 s{sS}, 63\ns_cbranch_scc1 RB_STEP')
    a(f'buffer_store_dword v{vX}, v{vO}, {wsr()}, s{sO} offen sc1')
    if diag == 3: a(f's_mov_b32 s{sS}, 0'); dump(a, 1, 1, sS, OA+1, vt, n=8, tag='E')
    a('s_endpgm')
    a.label('RB_VSLOW')
    if diag == 3: a('s_add_u32 s76, s76, 1')
    a(f's_mov_b32 s{sC}, 0')
    a.label('RB_VF')
    a(f'buffer_load_dword v{vF}, off, {wsr()}, s{sFL} sc1')
    guard(a, sC, 3)
    a(f's_waitcnt vmcnt(0)\nv_cmp_eq_u32 vcc, -1, v{vF}\ns_cbranch_vccnz RB_VF\ns_branch RB_VOK')

def gen_PF(a, diag=False):
    vB, vt, vZ = 3, 5, 6
    sXS, sMEM, sS, sC = 23, 24, 25, 26
    AH = OPT.get('pf_ahead', 2)
    a.label('PF')
    load_weights(a, 'PF', 20, 0, 0)
    a(f's_lshl_b32 s30, s{sI}, 2\ns_add_u32 s30, s30, s3\nv_mov_b32 v{vZ}, 0')
    a(f's_mov_b32 s{sXS}, {XS1}\ns_cmp_eq_u32 s{sL}, 1\ns_cselect_b32 s{sXS}, {XS2}, s{sXS}\ns_mul_i32 s32, s30, 3584\ns_add_u32 s{sXS}, s{sXS}, s32')
    a(f'v_min_u32 v{vB}, 27, v1\nv_lshlrev_b32 v{vB}, 7, v{vB}')
    a(f's_mul_i32 s{sMEM}, s{sL}, {MEM_L}\ns_add_u32 s{sMEM}, s{sMEM}, {MEMX}\ns_mov_b32 s{sS}, 0')
    a(f'v_min_u32 v7, 11, v1\nv_lshlrev_b32 v7, 7, v7\nv_min_u32 v8, 6, v1\nv_lshlrev_b32 v8, 7, v8')
    a(f's_mul_i32 s27, s{sL}, {64*PM_STEP}\ns_mul_i32 s32, s30, 1536\ns_add_u32 s27, s27, s32\ns_add_u32 s27, s27, {PM}')
    a(f's_mul_i32 s32, s30, 896\ns_add_u32 s28, s{sMEM}, s32\ns_add_u32 s28, s28, {MEM_STEP}')
    def slots():
        a(f'buffer_load_dword v9, v7, {wsr()}, s27 offen sc1\nbuffer_load_dword v9, v8, {wsr()}, s28 offen sc1')
        a(f's_add_u32 s27, s27, {PM_STEP}\ns_add_u32 s28, s28, {MEM_STEP}')
    for _ in range(4): slots()
    a.label('PF_STEP')
    a(f's_mov_b32 s{sC}, 0\ns_cmp_le_u32 s{sS}, {AH}\ns_cbranch_scc1 PF_SL\ns_add_u32 s{sMEM}, s{sMEM}, {MEM_STEP}')
    a.label('PF_TH')
    a(f'buffer_load_dword v{vt}, v{vZ}, {wsr()}, s{sMEM} offen sc1')
    guard(a, sC, 6)
    a(f's_waitcnt vmcnt(0)\nv_cmp_eq_u32 vcc, -1, v{vt}\ns_cbranch_vccz PF_SL\ns_sleep 4\ns_branch PF_TH')
    a.label('PF_SL')
    slots()
    a.label('PF_X')
    a(f'buffer_load_dword v{vt}, v{vB}, {wsr()}, s{sXS} offen sc1')
    guard(a, sC, 7)
    a(f's_waitcnt vmcnt(0)\nv_cmp_eq_u32 vcc, -1, v{vt}\ns_cbranch_vccz PF_GO\ns_sleep 4\ns_branch PF_X')
    a.label('PF_GO')
    a(f's_add_u32 s{sXS}, s{sXS}, {SEGB}\ns_add_u32 s{sS}, s{sS}, 1')
    a(f's_cmp_lt_u32 s{sS}, 63\ns_cbranch_scc1 PF_STEP\ns_endpgm')
```

```python
import sys; sys.path.insert(0,'gen')
import rec, main
hdr=''.join(l for l in open('v4.s') if l.startswith(';') and '@launch' not in l)
rec.OPT.update(eval(sys.argv[2]))
open(sys.argv[1],'w').write(main.full(diag=0, header=hdr))
```

```python
from common import *
from layout import *
import rec, p0
from rec import WS, sL, sI, sREP, wsr
NAME = 'interleave_layers__memory_aug_recurrent_mem_tr__dense_activation_silu__prompt_kernel'
LDS = 160 * KB
NCH = 9
def gen(roles=('RA', 'RB', 'PF', 'PA', 'PB', 'FF'), diag=False):
    a = Asm()
    a('s_cmp_ge_u32 s2, 256\ns_cbranch_scc1 END')
    if diag: a('s_memrealtime s[80:81]')
    a('s_load_dwordx4 s[40:43], s[0:1], 0\ns_load_dwordx4 s[44:47], s[0:1], 16\ns_load_dwordx4 s[48:51], s[0:1], 32\ns_load_dwordx4 s[52:55], s[0:1], 64')
    a('s_load_dwordx4 s[8:11], s[0:1], 80\ns_load_dwordx2 s[4:5], s[0:1], 96')
    a('s_getreg_b32 s19, hwreg(HW_REG_XCC_ID, 0, 4)')
    a('v_and_b32 v1, 63, v0\nv_lshrrev_b32 v2, 6, v0\ns_nop 0\nv_readfirstlane_b32 s3, v2')
    a('s_and_b32 s19, s19, 7\ns_waitcnt lgkmcnt(0)\ns_mov_b32 s6, s40\ns_mov_b32 s7, s41')
    srd(a, WS, 4, 1 << 28); srd(a, 92, 10, 256)
    rec.dstamp(a, 's_cmp_eq_u32 s2, 0\ns_cselect_b32 s88, 0, 512')
    if rec.OPT.get('warm', 1):
        a('s_getpc_b64 s[56:57]')
        a.label('PC0')
        a('s_lshr_b32 s20, s2, 3\ns_lshl_b32 s20, s20, 2\ns_add_u32 s20, s20, s3\ns_lshl_b32 s20, s20, 9')
        a('v_and_b32 v2, 3, v1\nv_lshlrev_b32 v2, 7, v2\nv_add_u32 v2, s20, v2\nv_min_u32 v2, CODE_END-PC0-4, v2\nglobal_load_dword v252, v2, s[56:57]')
    a(f's_lshl_b32 s20, s2, 2\ns_add_u32 s20, s20, s3\ns_cmp_lg_u32 s20, 1023\ns_cbranch_scc1 TAG_NO\ns_mov_b32 s20, {EPOCH}')
    a(f'buffer_load_dword v2, off, {wsr()}, s20 sc1\ns_waitcnt vmcnt(0)\nv_or_b32 v2, 7, v2\nv_add_u32 v2, 1, v2\nv_max_u32 v2, 8, v2')
    a(f'buffer_store_dword v2, off, {wsr()}, s20 sc1\nbuffer_store_dword v2, off, s[92:95], 0 offset:128 sc1')
    a.label('TAG_NO')
    p0.gen(a, WS, diag)
    if diag: a('s_memrealtime s[82:83]')
    a('s_waitcnt vmcnt(0)\ns_barrier\ns_cmp_lg_u32 s3, 0\ns_cbranch_scc1 TK_WAIT')
    a(f'v_mov_b32 v251, s{rec.sNON}\ns_lshr_b32 s20, s2, 3\ns_lshl_b32 s20, s20, 7\ns_and_b32 s21, s2, 7\ns_lshl_b32 s21, s21, 2\ns_add_u32 s20, s20, s21\ns_add_u32 s20, s20, {FLA}\nbuffer_store_dword v251, off, {wsr()}, s20 sc1')
    a(f'v_lshrrev_b32 v16, 1, v1\nv_lshlrev_b32 v16, 7, v16\nv_and_b32 v17, 1, v1\nv_lshl_add_u32 v16, v17, 4, v16\ns_mov_b32 s58, {FLH}\ns_mov_b32 s59, 0')
    a.label('TA_L')
    a(f'buffer_load_dwordx4 v[12:15], v16, {wsr()}, s58 offen sc1')
    rec.guard(a, 59, 17)
    a('s_waitcnt vmcnt(0)')
    for i in range(4): a(f'v_subrev_u32 v{12+i}, s{rec.sNON}, v{12+i}')
    a('v_or3_b32 v17, v12, v13, v14\nv_or_b32 v17, v17, v15\nv_cmp_lt_u32 vcc, 7, v17\ns_cbranch_vccz TA_OK\ns_sleep 1\ns_branch TA_L')
    a.label('TA_OK')
    a('s_mov_b32 s91, 0')
    for i in range(4):
        a(f'v_cmp_eq_u32 vcc, s19, v{12+i}\ns_add_u32 s20, s2, {3-i}\ns_lshr_b32 s20, s20, 2\ns_bfm_b64 s[56:57], s20, 0\ns_cmp_eq_u32 s20, 64\ns_cselect_b64 s[56:57], -1, s[56:57]')
        a('s_and_b64 s[56:57], s[56:57], vcc\ns_bcnt1_i32_b64 s20, s[56:57]\ns_add_u32 s91, s91, s20')
    a(f'v_mov_b32 v3, 0\nv_mov_b32 v12, s91\nv_mov_b32 v13, s{rec.sNON}\nds_write_b64 v3, v[12:13]\ns_waitcnt lgkmcnt(0)')
    a.label('TK_WAIT')
    a(f's_barrier\nv_mov_b32 v3, 0\nds_read_b64 v[12:13], v3\ns_waitcnt lgkmcnt(0)\nv_readfirstlane_b32 s91, v12\nv_readfirstlane_b32 s{rec.sNON}, v13\ns_barrier')
    if diag:
        a(f's_memrealtime s[84:85]\ns_waitcnt lgkmcnt(0)\nv_mov_b32 v12, s80\nv_mov_b32 v13, s82\nv_mov_b32 v14, s84\nv_mov_b32 v15, s86')
        a(f's_lshl_b32 s60, s2, 2\ns_add_u32 s60, s60, s3\ns_lshl_b32 s60, s60, 4\ns_add_u32 s60, s60, {DBG + (1<<20)}\nbuffer_store_dwordx4 v[12:15], off, {wsr()}, s60\ns_mov_b32 s82, s84')
    rec.dstamp(a, 's_cmp_eq_u32 s2, 0\ns_cselect_b32 s88, 4, 512')
    a('s_mov_b32 s20, s91\ns_cmp_ge_u32 s20, 32\ns_cbranch_scc1 END')
    tgt = lambda r: r if r in roles else 'END'
    a('s_cmp_ge_u32 s19, 2\ns_cbranch_scc1 NOT_R')
    a(f's_mov_b32 s{sL}, s19\ns_mov_b32 s{sI}, s20\ns_cmp_lt_u32 s20, 16\ns_cbranch_scc1 {tgt("RA")}')
    a(f's_sub_u32 s{sI}, s20, 16\ns_cmp_lt_u32 s20, 30\ns_cbranch_scc1 {tgt("RB")}\ns_sub_u32 s{sI}, s20, 30\ns_branch {tgt("PF")}')
    a.label('NOT_R')
    a('s_cmp_ge_u32 s19, 4\ns_cbranch_scc1 NOT_PA')
    a(f's_and_b32 s{sI}, s20, 7\ns_and_b32 s21, s19, 1\ns_lshl_b32 s21, s21, 3\ns_add_u32 s{sI}, s{sI}, s21\ns_lshr_b32 s{sL}, s20, 4\ns_bfe_u32 s{sREP}, s20, 0x10003\ns_branch {tgt("PA")}')
    a.label('NOT_PA')
    a('s_and_b32 s21, s19, 1\ns_cmp_ge_u32 s19, 6\ns_cbranch_scc1 PB_HI')
    a('s_cmp_ge_u32 s20, 21\ns_cbranch_scc1 PB_LO')
    a(f's_mov_b32 s{sL}, s21\ns_mul_i32 s{sREP}, s20, 37\ns_lshr_b32 s{sREP}, s{sREP}, 8\ns_mul_i32 s22, s{sREP}, 7\ns_sub_u32 s{sI}, s20, s22\ns_branch {tgt("FF")}')
    a.label('PB_LO')
    a(f's_mov_b32 s{sL}, s21\ns_mov_b32 s{sI}, 7\ns_mov_b32 s{sREP}, 0\ns_cmp_ge_u32 s20, 31\ns_cbranch_scc1 {tgt("FF")}\ns_mul_i32 s21, s21, 10\ns_add_u32 s21, s21, 43\ns_add_u32 s21, s21, s20\ns_branch PB_IDX')
    a.label('PB_HI')
    a('s_lshl_b32 s21, s21, 5\ns_add_u32 s21, s21, s20')
    a.label('PB_IDX')
    a(f's_mul_i32 s{sI}, s21, 43\ns_lshr_b32 s{sI}, s{sI}, 8\ns_mul_i32 s22, s{sI}, 6\ns_sub_u32 s22, s21, s22')
    a(f's_cmp_ge_u32 s22, 3\ns_cselect_b32 s{sL}, 1, 0\ns_mul_i32 s23, s{sL}, 3\ns_sub_u32 s{sREP}, s22, s23\ns_branch {tgt("PB")}')
    a.label('FAIL')
    a('s_lshl_b32 s99, s99, 2\nv_mov_b32 v3, s2\nv_add_u32 v3, 1, v3\nbuffer_store_dword v3, off, s[92:95], s99 offset:160')
    a.label('END')
    a('s_endpgm')
    if 'RA' in roles: rec.gen_RA(a, diag)
    if 'RB' in roles: rec.gen_RB(a, diag)
    if 'PF' in roles: rec.gen_PF(a, diag)
    if set(roles) & {'PA', 'PB', 'FF'}:
        import par
        if 'PA' in roles: par.gen_PA(a, diag)
        if 'PB' in roles: par.gen_PB(a, diag)
        if 'FF' in roles: par.gen_FF(a, diag)
    a.label('CODE_END')
    return khead(NAME) + a.finish(), kdesc(NAME, 512, 256)
def full(roles=('RA', 'RB', 'PF', 'PA', 'PB', 'FF'), diag=False, header=''):
    c1, d1 = gen(roles, diag)
    return (header + f'; @launch grid=(256,1,1) block=(256,1,1) lds={LDS}\n'
            '.amdgcn_target "amdgcn-amd-amdhsa--gfx950"\n' + c1 + d1)
if __name__ == '__main__':
    import sys
    open('m.s', 'w').write(full(tuple(sys.argv[1].split(',')), True))
```

```python
from common import *
from layout import *
from rec import OPT, guard, sNON
MF = 'v_mfma_f32_16x16x32_bf16'
def gen(a, WS, diag=0):
    ws = f's[{WS}:{WS+3}]'
    SA, SB, SX = 24, 28, 32
    NT = OPT.get('p0pol', 'nt'); SP = OPT.get('p0st', 'sc1'); NB = OPT.get('p0b', '')
    def st(n):
        if diag and (n in (0, 3, 12, 13, 14) or OPT.get('p0all')): a(f's_memrealtime s[88:89]\ns_waitcnt lgkmcnt(0)\nv_writelane_b32 v253, s88, {n}')
    vX, vG, vL16, vOFF, vT, vRD = 2, 3, 4, 5, 6, 11
    AL, RING0, LNB = 0, 32*KB, 144*KB
    a(f'v_and_b32 v{vX}, 15, v1\nv_lshrrev_b32 v{vG}, 4, v1\nv_lshlrev_b32 v{vL16}, 4, v1')
    a('s_and_b32 s20, s2, 7\ns_lshr_b32 s21, s2, 3')
    srd(a, SX, 40, XS_SZ)
    if OPT.get('p0page'):
        a(f'v_lshlrev_b32 v7, 16, v1\ns_lshl_b32 s22, s3, 22\nbuffer_load_dword v249, v7, {ws}, s22 offen nt')
    a(f'v_lshrrev_b32 v{vT}, 2, v1\nv_lshlrev_b32 v{vT}, 6, v{vT}\nv_and_b32 v7, 3, v1\nv_lshl_add_u32 v8, v7, 3, v{vT}')
    a('v_cmp_gt_u32 vcc, 56, v1')
    a('v_mov_b32 v7, 0x7fffffff\nv_cndmask_b32 v8, v7, v8, vcc\nv_cndmask_b32 v9, 0, 1.0, vcc')
    a(f's_lshl_b32 s22, s2, 3\ns_lshl_b32 s23, s3, 1\ns_add_u32 s22, s22, s23\ns_mul_i32 s22, s22, {ROW}')
    for t in range(2):
        for hf in range(2): a(f'buffer_load_dwordx2 {vr(12+4*t+2*hf,2)}, v8, s[{SX}:{SX+3}], s22 offen offset:{ROW*t+32*hf} {NT}')
    NP = INIT_W
    def poison(later=False):
        a(f's_lshl_b32 s22, s2, 2\ns_add_u32 s22, s22, s3\ns_mov_b32 s23, {OOB}')
        n0 = 0
        for (base, _), n in zip(INIT, INIT_N):
            a(f's_sub_u32 s70, s22, {n0}\ns_mul_i32 s71, s70, {INIT_W*KB}\ns_add_u32 s71, s71, {base}\ns_cmp_lt_u32 s70, {n}\ns_cselect_b32 s23, s71, s23'); n0 += n
        for i in range(4): a(f'v_mov_b32 v{228+i}, -1')
        for i in range(NP): a(f'buffer_store_dwordx4 v[228:231], v{vL16}, {ws}, s23 offen offset:{i*1024} sc1')
        return []
    a('s_cmp_lg_u32 s3, 0\ns_cselect_b32 s87, 512, 0')
    tagl = 'buffer_load_dword v251, off, s[92:95], s87 offset:128 sc1'
    def hello(k, asked=False):
        a(f's_cmp_lg_u32 s3, 0\ns_cselect_b32 s23, {OOB}, 0\ns_cbranch_scc1 TAG_S{k}')
        if asked: a(f'v_cmp_eq_u32 vcc, 0, v251\ns_cbranch_vccz TAG_K{k}')
        a.label(f'TAG_L{k}')
        a(tagl)
        guard(a, 23, 19)
        a(f's_waitcnt vmcnt(0)\nv_cmp_eq_u32 vcc, 0, v251\ns_cbranch_vccnz TAG_L{k}')
        a.label(f'TAG_K{k}')
        a(f'v_readfirstlane_b32 s{sNON}, v251\nv_add_u32 v251, s19, v251\ns_lshr_b32 s23, s2, 3\ns_lshl_b32 s23, s23, 7\ns_and_b32 s22, s2, 7\ns_lshl_b32 s22, s22, 2\ns_add_u32 s23, s23, s22\ns_add_u32 s23, s23, {FLH}')
        a.label(f'TAG_S{k}')
        a(f'buffer_store_dword v251, off, {ws}, s23 sc1')
    def ln_compute():
        a(f'v_mul_u32_u24 v10, 144, v1\ns_lshl_b32 s23, s3, 5\ns_add_u32 s23, s23, {LNB}\nv_add_u32 v10, s23, v10')
        for t in range(2):
            unpack8(a, 232, 12+4*t); layernorm8(a, 232, 240, 9); pack8(a, 244, 232)
            a(f'ds_write_b128 v10, v[244:247] offset:{16*t}')
    def ln_store():
        a(f'v_lshrrev_b32 v10, 3, v1\nv_and_b32 v7, 7, v1\nv_mul_u32_u24 v8, 144, v10\nv_lshl_add_u32 v8, v7, 4, v8\nv_lshlrev_b32 v10, 8, v10\nv_lshl_add_u32 v10, v7, 4, v10')
        a(f's_mul_i32 s23, s3, {8*144}\ns_add_u32 s23, s23, {LNB}\nv_add_u32 v8, s23, v8')
        a(f'ds_read_b128 v[232:235], v8\nds_read_b128 v[236:239], v8 offset:{32*144}')
        a(f's_lshr_b32 s22, s2, 1\ns_mul_i32 s22, s22, {MT}\ns_and_b32 s23, s2, 1\ns_lshl_b32 s23, s23, 7\ns_add_u32 s22, s22, s23\ns_lshl_b32 s23, s3, 11\ns_add_u32 s22, s22, s23\ns_add_u32 s22, s22, {XS1}')
        a(f's_cmp_eq_u32 s3, 3\ns_cselect_b32 s23, 0x7fff0000, 0\ns_add_u32 s23, s23, 8192\nv_add_u32 v7, s23, v10')
        a(f's_waitcnt lgkmcnt(0)\nbuffer_store_dwordx4 v[232:235], v10, {ws}, s22 offen {SP}\nbuffer_store_dwordx4 v[236:239], v7, {ws}, s22 offen {SP}')
    a(f'v_sub_u32 v7, 4, v{vG}\nv_xor_b32 v7, v7, v1\nv_and_b32 v7, 3, v7\nv_lshrrev_b32 v{vT}, 2, v1')
    a(f'v_lshrrev_b32 v10, 2, v{vX}\nv_sub_u32 v10, 4, v10\nv_xor_b32 v10, v10, v{vG}\nv_and_b32 v10, 3, v10\nv_lshl_add_u32 v10, v{vX}, 2, v10\nv_lshlrev_b32 v{vRD}, 4, v10')
    a('s_cmp_ge_u32 s21, 28\ns_cbranch_scc1 P0_W')
    a('s_mul_i32 s34+2, s21, 37'.replace('s34+2', 's36')); a('s_lshr_b32 s36, s36, 8\ns_mul_i32 s37, s36, 7\ns_sub_u32 s37, s21, s37')
    a('s_lshr_b32 s38, s36, 1\ns_lshl_b32 s39, s20, 1\ns_add_u32 s38, s38, s39')
    hm = OPT.get('p0map', 0)
    if hm == 1: a('s_and_b32 s39, s36, 1\ns_lshl_b32 s39, s39, 1\ns_add_u32 s38, s38, s39\ns_and_b32 s38, s38, 15')
    if hm == 2: a('s_and_b32 s38, s20, 3\ns_lshl_b32 s38, s38, 2\ns_add_u32 s38, s38, s36\ns_lshr_b32 s36, s20, 2')
    a(f'v_lshlrev_b32 v{vOFF}, 13, v{vT}\nv_lshl_add_u32 v{vOFF}, v7, 4, v{vOFF}')
    a('s_lshl_b32 s56, s37, 2\ns_add_u32 s56, s56, s3\ns_lshl_b32 s56, s56, 17\ns_lshl_b32 s57, s38, 9\ns_add_u32 s56, s56, s57')
    a('s_and_b32 s58, s36, 1\ns_cmp_eq_u32 s58, 1\ns_cselect_b32 s60, s48, s44\ns_cselect_b32 s61, s49, s45')
    srd(a, SA, 60, 448 * 8192)
    for i in range(8): a(f's_lshl_b32 s{62+i}, s37, {OPT.get("p0rot", 1)}\ns_add_u32 s{62+i}, s{62+i}, {i}\ns_and_b32 s{62+i}, s{62+i}, 7')
    if OPT.get('p0touch', 1):
        a('s_cselect_b32 s70, s50, s46\ns_cselect_b32 s71, s51, s47'.replace('s_cselect_b32 s70', 's_cmp_eq_u32 s58, 1\ns_cselect_b32 s70'))
        srd(a, SB, 70, 448 * 8192)
        a(f's_lshl_b32 s70, s37, 2\ns_add_u32 s70, s70, s3\ns_lshl_b32 s70, s70, 6\nv_add_u32 v10, s70, v1\nv_lshrrev_b32 v8, 2, v10\nv_lshlrev_b32 v8, 13, v8\nv_and_b32 v227, 3, v10\nv_lshl_add_u32 v8, v227, 7, v8')
        a(f'v_add_u32 v8, s57, v8\nv_lshlrev_b32 v10, 7, v10\ns_mul_i32 s70, s38, {256*ROW}\nv_add_u32 v10, s70, v10\ns_cmp_eq_u32 s58, 1\ns_cselect_b64 vcc, -1, 0\nv_cndmask_b32 v8, v8, v10, vcc')
        a(f'buffer_load_dword v227, v8, s[{SB}:{SB+3}], 0 offen {OPT.get("p0t", "nt")}')
    a('s_lshl_b32 s59, s3, 13')
    for i in range(8):
        a(f's_lshl_b32 s70, s{62+i}, 6\ns_add_u32 s70, s70, s56\ns_add_u32 m0, s59, {AL+i*1024}')
        a(f'buffer_load_dwordx4 v{vOFF}, s[{SA}:{SA+3}], s70 offen {NT} lds')
    TR0 = 220
    ACC = 20
    AFB = [132, 148]; BFB = [164, 192]
    def kloop(kind, R, n, slot, dma, reads):
        q = 0
        pos = {}
        st(0); a('s_waitcnt vmcnt(9)'); st(1); ln_compute(); st(2)
        a('s_waitcnt vmcnt(8)')
        a(tagl)
        for i in range(R): dma(i); q += n; pos[i] = q
        a(f's_waitcnt vmcnt({q}) lgkmcnt(0)'); st(3); a('s_barrier'); st(4)
        hello(kind, True); q += 1
        ln_store(); q += 2
        pois = poison(); q += NP
        def rd(i): return [f'ds_read_b128 {vr(AFB[i&1]+4*it,4)}, v{vRD} offset:{AL+it*8192+i*1024}' for it in range(4)] + reads(i, BFB[i&1])
        a(f's_waitcnt vmcnt({q-pos[0]})')
        for l in rd(0): a(l)
        for i in range(8):
            a('s_waitcnt lgkmcnt(0)'); st(5+i)
            if i + R < 8: dma(i+R); q += n; pos[i+R] = q
            nxt = []
            if i < 7: a(f's_waitcnt vmcnt({q-pos[i+1]})'); nxt = rd(i+1)
            for tl in range(7):
                for it in range(4):
                    c = vr(ACC+4*(it*7+tl), 4)
                    a(f'{MF} {c}, {vr(AFB[i&1]+4*it,4)}, {vr(BFB[i&1]+4*tl,4)}, {c if i else 0}')
                    if nxt: a(nxt.pop(0))
                    elif pois and it == 3: a(pois.pop(0)); q += 1
        for l in pois: a(l)
    a('s_cmp_eq_u32 s58, 1\ns_cbranch_scc1 P0_B')
    srd(a, SB, 46, 448 * 8192)
    a('s_mul_i32 s71, s3, 7\ns_add_u32 s71, s71, 1\ns_lshr_b32 s71, s71, 1\ns_lshl_b32 s71, s71, 18\ns_add_u32 s71, s71, s57')
    for tl in range(6): a(f's_add_u32 s{72+tl}, s71, {tl*131072}')
    a('s_lshr_b32 s71, s3, 1\ns_mul_i32 s71, s71, 14\ns_and_b32 s79, s3, 1\ns_add_u32 s71, s71, s79\ns_add_u32 s71, s71, 6\ns_lshl_b32 s71, s71, 17\ns_add_u32 s78, s71, s57')
    a(f's_mul_i32 s59, s3, {28*KB}\ns_add_u32 s59, s59, {RING0}\nv_add_u32 v220, s59, v{vRD}')
    def dmaA(i):
        a(f's_lshl_b32 s71, s{62+i}, 6')
        for tl in range(7):
            a(f's_add_u32 s70, s71, s{72+tl}\ns_add_u32 m0, s59, {(i % 4)*7168+tl*1024}\nbuffer_load_dwordx4 v{vOFF}, s[{SB}:{SB+3}], s70 offen {NB} lds')
    kloop(0, 4, 7, 7168, dmaA, lambda i, d: [f'ds_read_b128 {vr(d+4*tl,4)}, v220 offset:{(i % 4)*7168+tl*1024}' for tl in range(7)])
    if diag: a('s_memrealtime s[86:87]')
    a(f's_mov_b32 s79, {f2u(SCALE):#x}')
    a(f's_lshl_b32 s71, s38, 2\ns_add_u32 s71, s71, s3\ns_mul_i32 s71, s71, {98*KB}\ns_mul_i32 s70, s37, {14*KB}\ns_add_u32 s71, s71, s70')
    if AIMG: a(f's_add_u32 s71, s71, {AIMG}')
    for tl in range(7):
        for Tp in range(2):
            o = 132 + 4 * ((tl*2+Tp) % 8)
            for hf in range(2):
                c = ACC + 4*((2*Tp+hf)*7+tl)
                for i in range(4): a(f'v_mul_f32 v{c+i}, s79, v{c+i}')
                a(f'v_cvt_pk_bf16_f32 v{o+2*hf}, v{c}, v{c+1}\nv_cvt_pk_bf16_f32 v{o+2*hf+1}, v{c+2}, v{c+3}')
            f = tl*2+Tp
            if f and f % 4 == 0: a('s_add_u32 s71, s71, 4096')
            a(f'buffer_store_dwordx4 {vr(o,4)}, v{vL16}, {ws}, s71 offen offset:{(f%4)*1024} {SP}')
    a('s_branch P0_END')
    a.label('P0_B')
    srd(a, SB, 50, 4096 * ROW)
    for v in range(2):
        a(f'v_lshlrev_b32 v7, 1, v{vG}\nv_xor_b32 v7, {8*v}, v7\nv_xor_b32 v7, v7, v{vX}\nv_mul_u32_u24 v{248+v}, {ROW}, v{vG}\nv_lshl_add_u32 v{248+v}, v7, 4, v{248+v}')
    a(f's_mul_i32 s72, s38, {256*ROW}\ns_mul_i32 s71, s3, 224\ns_add_u32 s72, s72, s71')
    a(f's_mul_i32 s59, s3, {24*KB}\ns_add_u32 s59, s59, {RING0}')
    a(f'v_lshrrev_b32 v7, 2, v{vX}\nv_and_b32 v8, 1, v{vG}\nv_lshl_add_u32 v8, v8, 2, v7\nv_lshl_add_u32 v7, v{vG}, 3, v7\nv_lshlrev_b32 v7, 8, v7\nv_and_b32 v10, 3, v1\nv_lshl_add_u32 v7, v10, 3, v7\nv_add_u32 v7, s59, v7')
    for tl in range(7): a(f'v_xor_b32 v10, {tl}, v8\nv_lshl_add_u32 v{TR0+tl}, v10, 5, v7')
    def dmaB(i):
        a(f's_mul_i32 s71, s{62+i}, {32*ROW}\ns_add_u32 s71, s71, s72')
        for j in range(8):
            a(f's_add_u32 s70, s71, {4*j*ROW}\ns_add_u32 m0, s59, {(i % 3)*8192+j*1024}\nbuffer_load_dwordx4 v{248+((j>>1)&1)}, s[{SB}:{SB+3}], s70 offen {NB} lds')
    kloop(1, 3, 8, 8192, dmaB, lambda i, d: [f'ds_read_b64_tr_b16 {vr(d+4*tl+2*hf,2)}, v{TR0+tl} offset:{(i % 3)*8192+1024*hf}' for tl in range(7) for hf in range(2)])
    if diag: a('s_memrealtime s[86:87]')
    a(f's_lshr_b32 s71, s38, 2\ns_mul_i32 s71, s71, {112*KB}\ns_lshl_b32 s70, s37, 14\ns_add_u32 s71, s71, s70')
    a(f's_and_b32 s70, s38, 3\ns_lshl_b32 s70, s70, 12\ns_add_u32 s71, s71, s70\ns_add_u32 s71, s71, {BIMG}\ns_mul_i32 s72, s3, 7')
    for tl in range(7):
        a(f's_add_u32 s73, s72, {tl}\ns_lshr_b32 s74, s73, 1\ns_mul_i32 s74, s74, {4*112*KB}\ns_and_b32 s73, s73, 1\ns_lshl_b32 s73, s73, 11\ns_add_u32 s74, s74, s73\ns_add_u32 s74, s74, s71')
        for Tp in range(2):
            o = 132 + 4 * ((tl*2+Tp) % 8)
            for hf in range(2):
                c = ACC + 4*((2*Tp+hf)*7+tl)
                a(f'v_cvt_pk_bf16_f32 v{o+2*hf}, v{c}, v{c+1}\nv_cvt_pk_bf16_f32 v{o+2*hf+1}, v{c+2}, v{c+3}')
            a(f'buffer_store_dwordx4 {vr(o,4)}, v{vL16}, {ws}, s74 offen offset:{Tp*1024} {SP}')
    a('s_branch P0_END')
    a.label('P0_W')
    a('s_sub_u32 s36, s21, 28\ns_lshl_b32 s36, s36, 3\ns_add_u32 s36, s36, s20')
    a('s_cmp_ge_u32 s36, 28\ns_cbranch_scc1 P0_MEM')
    a('s_lshl_b32 s36, s36, 2\ns_add_u32 s36, s36, s3')
    a('s_cmp_ge_u32 s36, 56\ns_cselect_b32 s58, 1, 0\ns_cselect_b32 s60, s54, s52\ns_cselect_b32 s61, s55, s53')
    srd(a, SB, 60, 448 * 3584)
    a(f's_mov_b32 s62, 3584\ns_cselect_b32 s62, {ROW}, s62')
    a('s_sub_u32 s37, s36, 56\ns_mul_i32 s38, s37, 37\ns_lshr_b32 s38, s38, 8\ns_mul_i32 s39, s38, 7\ns_sub_u32 s39, s37, s39')
    a('s_lshr_b32 s63, s36, 1\ns_and_b32 s64, s36, 1\ns_cmp_eq_u32 s58, 1\ns_cselect_b32 s39, s39, s63\ns_cselect_b32 s38, s38, s64')
    a('s_mul_i32 s63, s38, 224\ns_mul_i32 s63, s63, s62\ns_lshl_b32 s64, s39, 7\ns_add_u32 s63, s63, s64\ns_lshl_b32 s65, s62, 3')
    a(f'v_lshrrev_b32 v7, 3, v1\nv_mul_lo_u32 v{vOFF}, s62, v7\nv_bfe_u32 v7, v1, 1, 2\nv_xor_b32 v7, v7, v{vG}\nv_lshl_add_u32 v{vOFF}, v7, 5, v{vOFF}\nv_and_b32 v7, 1, v1\nv_lshl_add_u32 v{vOFF}, v7, 4, v{vOFF}')
    a(f's_mul_i32 s59, s3, {28*KB}')
    for it in range(28):
        if it: a('s_add_u32 s63, s63, s65')
        a(f's_add_u32 m0, s59, {it*1024}\nbuffer_load_dwordx4 v{vOFF}, s[{SB}:{SB+3}], s63 offen {NT} lds')
    a(f'v_lshlrev_b32 v8, 7, v{vT}\nv_and_b32 v7, 3, v1\nv_lshl_add_u32 v8, v7, 3, v8\nv_add_u32 v8, s59, v8\nv_bfe_u32 v7, v1, 3, 2')
    for t in range(4): a(f'v_xor_b32 v10, {t}, v7\nv_lshl_add_u32 v{TR0+t}, v10, 5, v8')
    st(0); a('s_waitcnt vmcnt(28)'); st(1); ln_compute(); st(2)
    hello(2)
    a('s_waitcnt lgkmcnt(0)\ns_barrier'); st(4); ln_store()
    a(f's_mul_i32 s66, s39, {112*KB}\ns_mul_i32 s67, s38, {28*KB}\ns_add_u32 s66, s66, s67\ns_add_u32 s66, s66, {FIMG}')
    for t in range(4):
        a(f's_lshl_b32 s70, s39, 1\ns_add_u32 s70, s70, {t >> 1}\ns_cmp_ge_u32 s70, 7\ns_cselect_b32 s72, 7, 0\ns_cselect_b32 s71, 2, 0\ns_sub_u32 s70, s70, s72')
        a(f's_lshl_b32 s72, s70, 1\ns_add_u32 s72, s72, {t & 1}\ns_sub_u32 s74, s72, 8\ns_cmp_gt_u32 s70, 3\ns_cselect_b32 s72, s74, s72\ns_cselect_b32 s75, 1, 0')
        a(f's_cmp_eq_u32 s70, 3\ns_cselect_b32 s72, 6, s72\ns_cselect_b32 s75, {t & 1}, s75\ns_add_u32 s75, s75, s71')
        a(f's_mul_i32 s75, s75, {112*KB}\ns_lshl_b32 s72, s72, 10\ns_add_u32 s75, s75, s72\ns_add_u32 s75, s75, {FIMG+56*KB}\ns_add_u32 s72, s66, {t*KB}\ns_cmp_eq_u32 s58, 1\ns_cselect_b32 s{76+t}, s75, s72')
    a('s_mul_i32 s73, s38, 7')
    D = 20
    q = 0
    for T in range(7):
        for t in range(4):
            for p in range(2): a(f'ds_read_b64_tr_b16 {vr(D+16*T+4*t+2*p,2)}, v{TR0+t} offset:{4096*T+2048*p}')
        a(f's_add_u32 s70, s73, {T}\ns_lshr_b32 s71, s70, 3\ns_mul_i32 s71, s71, {4*112*KB}\ns_and_b32 s72, s70, 1\ns_lshl_b32 s72, s72, 2\ns_bfe_u32 s70, s70, 0x20001\ns_add_u32 s70, s70, s72\ns_mul_i32 s70, s70, {7*KB}\ns_add_u32 s71, s71, s70')
        a(f's_cmp_eq_u32 s58, 1\ns_cselect_b32 s71, s71, {4*T*KB}')
        for t in range(4):
            a(f's_add_u32 s74, s71, s{76+t}\ns_waitcnt lgkmcnt({6-2*t})\nbuffer_store_dwordx4 {vr(D+16*T+4*t,4)}, v{vL16}, {ws}, s74 offen {SP}'); q += 1
        st(5+T)
    poison()
    a('s_branch P0_END')
    a.label('P0_MEM')
    poison()
    a(f's_waitcnt vmcnt({NP})'); ln_compute(); hello(3)
    a('s_waitcnt lgkmcnt(0)\ns_barrier'); ln_store()
    a('s_cmp_lg_u32 s36, 31\ns_cbranch_scc1 P0_END')
    srd(a, SB, 42, MEM_ONE)
    a('v_lshrrev_b32 v32, 2, v0\nv_and_b32 v33, 3, v0\nv_bfe_u32 v34, v32, 1, 3\nv_and_b32 v35, 1, v32\nv_lshrrev_b32 v36, 4, v32')
    a(f'v_mul_u32_u24 v37, {ROW}, v34')
    a('v_lshrrev_b32 v38, 1, v36\nv_lshl_add_u32 v37, v38, 6, v37\nv_and_b32 v38, 1, v33\nv_lshl_add_u32 v37, v38, 5, v37')
    a('v_and_b32 v38, 1, v36\nv_lshl_add_u32 v37, v38, 4, v37\nv_lshrrev_b32 v38, 1, v33\nv_lshl_add_u32 v37, v38, 3, v37\nv_lshl_add_u32 v37, v35, 2, v37')
    for i in range(7): a(f'buffer_load_dword v{40+i}, v37, s[{SB}:{SB+3}], 0 offen offset:{128*i}')
    a(f'v_bfe_u32 v33, v0, 2, 3\nv_mul_u32_u24 v35, {ROW}, v33\nv_lshrrev_b32 v36, 7, v0\nv_lshl_add_u32 v35, v36, 6, v35\nv_bfe_u32 v36, v0, 1, 1\nv_lshl_add_u32 v35, v36, 5, v35')
    a('v_bfe_u32 v36, v0, 5, 2\nv_lshl_add_u32 v35, v36, 3, v35\nv_and_b32 v36, 1, v0\nv_lshl_add_u32 v35, v36, 2, v35')
    for i in range(7): a(f'buffer_load_dword v{48+i}, v35, s[{SB}:{SB+3}], 0 offen offset:{128*i}')
    a('v_lshlrev_b32 v32, 2, v0\ns_waitcnt vmcnt(0)')
    for l in range(6):
        for i in range(7):
            a(f's_mov_b32 s70, {MEMX + l*MEM_ONE + 1024*i}\nbuffer_store_dword v{40+8*int(l % 3 == 2)+i}, v32, {ws}, s70 offen {SP}')
    a.label('P0_END')
    if diag:
        st(13); a('s_waitcnt vmcnt(0)'); st(14)
        a(f'v_lshlrev_b32 v2, 2, v1\ns_lshl_b32 s70, s2, 2\ns_add_u32 s70, s70, s3\ns_lshl_b32 s70, s70, 8\ns_add_u32 s70, s70, {DBG + (1<<21)}\nbuffer_store_dword v253, v2, {ws}, s70 offen')
```

```python
from common import *
from layout import *
from lsched import schedule
from asmlib import regs_of
from rec import WS, sL, sI, sREP, wsr, wreg, load_weights, allset, guard, stamp, dump, OPT, wstamp, dstamp, prod_A, prod_B, wait_tags
MF = 'v_mfma_f32_16x16x32_bf16'; MH = 'v_mfma_f32_16x16x16_bf16'; SM = 'v_smfmac_f32_16x16x64_bf16'
def emit(a, ops, name=None, **kw):
    out, vm, lg = schedule(ops, **kw)
    if name: print(name, 'estimate', schedule.cycles)
    for l in out: a(l)
    return vm, lg
def cvt(d, c): return [f'v_cvt_pk_bf16_f32 v{d}, v{c}, v{c+1}', f'v_cvt_pk_bf16_f32 v{d+1}, v{c+2}, v{c+3}']
def spin(a, tag, loads, regs, vt, sC, code, sleep=2, first_issued=False, nafter=0):
    a(f's_mov_b32 s{sC}, 0')
    if first_issued:
        a(f's_waitcnt vmcnt({nafter})'); allset(a, vt, regs); a(f's_cbranch_vccz {tag}_OK')
    a.label(f'{tag}_L')
    for l in loads: a(l)
    guard(a, sC, code)
    a('s_waitcnt vmcnt(0)'); allset(a, vt, regs); a(f's_cbranch_vccz {tag}_OK')
    if sleep: a(f's_sleep {sleep}')
    a(f's_branch {tag}_L')
    a.label(f'{tag}_OK')
def seg_loads(quads, vL16, sA, sB):
    return [f'buffer_load_dwordx4 {vr(q,4)}, v{vL16}, {wsr()}, s{sA if i < 4 else sB} offen offset:{1024*(i%4)} sc1' for i, q in enumerate(quads)]
def qregs(quads): return [q + i for q in quads for i in range(4)]

def gen_PA(a, diag=False):
    vL16, vXW, vt, vK, vK1, vMK, vMK1, vSW, vSR, vPA, vPC = 2, 3, 4, 5, 6, 7, 8, 9, 10, 11, 0
    ACC, XF, SA, KF = 12, 68, 84, 104
    RED = 2 * SEGB
    sXS, sMEM, sPP, sS, sC, sA, sB, sQ = 21, 22, 23, 24, 25, 26, 27, 28
    MK = 30
    a.label('PA')
    a(f'v_lshlrev_b32 v{vL16}, 4, v1')
    a(f's_lshl_b32 s20, s{sI}, 2\ns_add_u32 s20, s20, s3\ns_mul_i32 s20, s20, {98*KB}')
    if AIMG: a(f's_add_u32 s20, s20, {AIMG}')
    load_weights(a, 'PA', 20, 98, vL16, blocks=(14, 1, prod_A(a, sI))); wstamp(a, diag)
    a(f's_mul_i32 s29, s3, 7168\nv_add_u32 v{vXW}, s29, v{vL16}')
    a(f'v_bfe_u32 v{vt}, v1, 1, 3\nv_lshlrev_b32 v{vMK}, 4, v{vt}\nv_lshrrev_b32 v{vt}, 4, v1\nv_lshl_add_u32 v{vMK}, v{vt}, 7, v{vMK}')
    a('s_lshr_b32 s27, s3, 1\ns_mul_i32 s27, s27, 7\ns_add_u32 s27, s27, 3\ns_and_b32 s28, s3, 1\ns_lshl_b32 s28, s28, 3')
    a(f's_lshl_b32 s38, s27, 10\ns_add_u32 s38, s38, s28\nv_add_u32 v{vK1}, s38, v{vL16}\ns_lshl_b32 s38, s27, 9\ns_add_u32 s38, s38, s28\nv_add_u32 v{vMK1}, s38, v{vMK}')
    a('s_mul_i32 s27, s3, 7\ns_add_u32 s27, s27, 1\ns_lshr_b32 s27, s27, 1\ns_lshl_b32 s28, s27, 10\ns_lshl_b32 s27, s27, 9')
    a(f'v_add_u32 v{vK}, s28, v{vL16}\nv_add_u32 v{vMK}, s27, v{vMK}')
    a(f's_mul_i32 s27, s3, 5120\ns_add_u32 s27, s27, {RED}\nv_add_u32 v{vSW}, s27, v{vL16}')
    T0, T1, T2 = ACC, ACC+1, ACC+2
    a(f's_and_b32 s27, s3, 1\ns_lshl_b32 s27, s27, 3\nv_and_b32 v{T0}, 7, v1\nv_add_u32 v{T0}, s27, v{T0}')
    a(f'v_lshrrev_b32 v{T1}, 4, v1\nv_lshl_add_u32 v{vPA}, v{T1}, 4, v{T0}\nv_lshlrev_b32 v{vPC}, 3, v{vPA}\nv_lshlrev_b32 v{vPA}, 4, v{vPA}')
    a(f'v_bfe_u32 v{T2}, v1, 3, 1\nv_lshl_add_u32 v{vSR}, v{T2}, 3, v{vPA}')
    a(f's_lshr_b32 s{sQ}, s3, 1\ns_lshl_b32 s27, s{sQ}, 10\ns_add_u32 s27, s27, {RED}\nv_add_u32 v{vSR}, s27, v{vSR}')
    a(f'v_lshlrev_b32 v{T1}, 2, v{T1}\nv_lshl_add_u32 v{T1}, v{T2}, 1, v{T1}\ns_lshl_b32 s27, s{sQ}, 4\nv_add_u32 v{T0}, s27, v{T0}')
    for k in range(4):
        a(f'v_add_u32 v{T2}, {16*(k>>1) + (k&1)}, v{T1}\nv_cmp_gt_u32 s[{MK+2*k}:{MK+2*k+1}], v{T2}, v{T0}')
    a(f'v_add_u32 v{vPC}, 2048, v{vPC}\ns_cmp_eq_u32 s{sQ}, 0\ns_cselect_b32 s27, 1024, 0\nv_add_u32 v{vPA}, s27, v{vPA}')
    a(f's_mov_b32 s{sXS}, {XS1}\ns_cmp_eq_u32 s{sL}, 1\ns_cselect_b32 s{sXS}, {XS2}, s{sXS}\ns_mul_i32 s27, s{sREP}, {SEGB}\ns_add_u32 s{sXS}, s{sXS}, s27\ns_add_u32 s{sXS}, s{sXS}, s29')
    a(f's_mul_i32 s{sMEM}, s{sL}, {MEM_L}\ns_mul_i32 s27, s{sREP}, {MEM_STEP}\ns_add_u32 s{sMEM}, s{sMEM}, s27\ns_add_u32 s{sMEM}, s{sMEM}, {MEMX+2*MEM_ONE}')
    a(f's_lshl_b32 s27, s{sL}, 6\ns_add_u32 s27, s27, s{sREP}\ns_mul_i32 s{sPP}, s27, {PP_STEP}\ns_mul_i32 s27, s{sI}, {PP_HEAD}\ns_add_u32 s{sPP}, s{sPP}, s27\ns_add_u32 s{sPP}, s{sPP}, {PP}')
    a(f's_mov_b32 s{sS}, s{sREP}\ns_mov_b32 s39, 0xf149f2ca')
    a(f's_lshl_b32 s27, s3, 10\nv_add_u32 v118, s27, v{vL16}\nv_cmp_gt_u32 vcc, {PP_HEAD}, v118\nv_mov_b32 v119, {OOB}\nv_cndmask_b32 v118, v119, v118, vcc')
    acc = lambda tl, mt: ACC + 8*tl + 4*mt
    STG = [acc(1,0), acc(1,1), acc(3,0), acc(3,1), acc(5,0), acc(5,1), KF]
    xl = seg_loads(STG, vL16, sXS, sB)
    MKR = XF
    def xdma():
        o = ['s_mov_b32 m0, s40']
        for i in range(7):
            if i == 4: o.append('s_add_u32 m0, s40, 4096')
            o.append(f'buffer_load_dwordx4 v{vL16}, {wsr()}, s{sXS if i < 4 else sB} offen offset:{1024*(i%4)} sc1 lds')
        return o
    a(f's_mov_b32 s41, 0\ns_mov_b32 s50, 0\ns_add_u32 s{sB}, s{sXS}, 4096\nv_mov_b32 v119, v{vL16}')
    a.label('PA_TASK')
    a('s_cmp_eq_u32 s50, 1\ns_cbranch_scc1 PA_XOK')
    spin(a, 'PA_X', xl, qregs(STG), vt, sC, 8, sleep=1)
    for i, q in enumerate(STG): a(f'ds_write_b128 v{vXW}, {vr(q,4)} offset:{1024*i}')
    a.label('PA_XOK')
    a(f's_add_u32 s38, s{sPP}, {6*PP_STEP}\ns_cmp_lt_u32 s{sS}, 58\ns_cselect_b32 s38, s38, {OOB}')
    for i in range(4): a(f'v_mov_b32 v{SA+i}, -1')
    a(f'buffer_store_dwordx4 {vr(SA,4)}, v118, {wsr()}, s38 offen sc1')
    a(f's_add_u32 s{sS}, s{sS}, 2\ns_cmp_lt_u32 s{sS}, 64\ns_cselect_b32 s38, {2*SEGB}, 0\ns_add_u32 s{sXS}, s{sXS}, s38\ns_add_u32 s{sB}, s{sXS}, 4096')
    a(f's_sub_u32 s42, {SEGB}, s41\ns_add_u32 s40, s42, s29\ns_sub_u32 s43, s42, s41')
    a('s_waitcnt lgkmcnt(0)\ns_barrier')
    stamp(a, 0, diag)
    ops = []; late = {}
    for T in range(14):
        for mt in range(2): ops.append(f'ds_read_b128 {vr(XF+8*(T&1)+4*mt,4)}, v119 offset:{mt*MT+T*1024}')
        for mt in range(2):
            for tl in range(7):
                c = vr(acc(tl, mt), 4)
                ops.append(f'{MF} {c}, {wreg(a_frag(T, tl))}, {vr(XF+8*(T&1)+4*mt,4)}, {c if T else 0}')
    late[len(ops)] = OPT.get('pa_xlate', 1800); ops += xdma()
    ml = [f'buffer_load_dwordx4 {vr(MKR+4*p,4)}, v{vMK}, {wsr()}, s{sMEM} offen offset:{512*p} sc1' for p in range(3)] + \
         [f'buffer_load_dwordx2 {vr(MKR+12,2)}, v{vMK1}, {wsr()}, s{sMEM} offen sc1']
    ops += ml
    for tl in range(7):
        for mt in range(2): ops += cvt(acc(tl & ~1, mt) + 2*(tl & 1), acc(tl, mt))
    ut = lambda p, mt: acc(2*p, mt)
    n = 0
    for p in range(4):
        for kt in range(2):
            kf = KF + 4*(n % 3); n += 1
            ops.append(f'ds_read_b128 {vr(kf,4)}, v{vK} offset:{kt*MT+1024*p}' if p < 3 else f'ds_read_b64 {vr(kf,2)}, v{vK1} offset:{kt*MT}')
            for mt in range(kt, 2):
                c = vr(SA + 4*(kt+mt), 4)
                ops.append(f'{MF} {c}, {vr(kf,4)}, {vr(ut(p,mt),4)}, {c if p else 0}' if p < 3 else f'{MH} {c}, {vr(kf,2)}, {vr(ut(3,mt),2)}, {c}')
    for p in range(3): ops.append(f'ds_write_b128 v{vSW}, {vr(SA+4*p,4)} offset:{1024*p}')
    for v in (119, vK, vK1, vXW): ops.append(f'v_add_u32 v{v}, s43, v{v}')
    ops.append('s_mov_b32 s41, s42')
    emit(a, ops, 'PA gemm', L=dict(ds=100, vmgap=64), late=late)
    stamp(a, 1, diag)
    a('s_waitcnt vmcnt(4)')
    for i, q in enumerate(STG): a(f'ds_read_b128 {vr(q,4)}, v{vXW} offset:{1024*i}')
    a('s_waitcnt lgkmcnt(0)')
    allset(a, vt, qregs(STG))
    a('s_cmp_eq_u64 vcc, 0\ns_cselect_b32 s50, 1, 0')
    spin(a, 'PA_M', ml, range(MKR, MKR+14), vt, sC, 9, sleep=0, first_issued=True)
    stamp(a, 2, diag)
    for p in range(4):
        for mt in range(2):
            c = vr(SA + 4*(3+mt), 4)
            a(f'{MF} {c}, {vr(MKR+4*p,4)}, {vr(ut(p,mt),4)}, {c if p else 0}' if p < 3 else f'{MH} {c}, {vr(MKR+12,2)}, {vr(ut(3,mt),2)}, {c}')
    for k in (3, 4): a(f'ds_write_b128 v{vSW}, {vr(SA+4*k,4)} offset:{1024*k}')
    a('s_waitcnt lgkmcnt(0)\ns_barrier')
    R = SA
    for k, tile in enumerate((0, 1, 3)):
        for pp in range(2): a(f'ds_read2st64_b64 {vr(R+8*k+4*pp,4)}, v{vSR} offset0:{2*tile+20*pp} offset1:{2*tile+20*pp+10}')
    for k in range(3):
        b = R+8*k
        a(f's_waitcnt lgkmcnt({4-2*k})')
        a(f'v_pk_add_f32 {vr(b,2)}, {vr(b,2)}, {vr(b+2,2)}\nv_pk_add_f32 {vr(b+4,2)}, {vr(b+4,2)}, {vr(b+6,2)}\nv_pk_add_f32 {vr(b,2)}, {vr(b,2)}, {vr(b+4,2)}')
    x = [R, R+1, R+8, R+9, R+16, R+17]; m, t = R+2, R+3
    a(f'v_mov_b32 v{t}, s39')
    for k in range(4): a(f'v_cndmask_b32 v{x[k]}, v{x[k]}, v{t}, s[{MK+2*k}:{MK+2*k+1}]')
    a(f'v_max3_f32 v{m}, v{x[0]}, v{x[1]}, v{x[2]}\nv_max3_f32 v{t}, v{x[3]}, v{x[4]}, v{x[5]}\nv_max_f32 v{m}, v{m}, v{t}')
    a(f'v_max_f32_dpp v{m}, v{m}, v{m} row_ror:8 row_mask:0xf bank_mask:0xf')
    cross_rows(a, m, t, 'v_max_f32')
    for k in range(3): a(f'v_pk_add_f32 {vr(x[2*k],2)}, {vr(x[2*k],2)}, {vr(m,2)} op_sel_hi:[1,0] neg_lo:[0,1] neg_hi:[0,1]')
    for i in (4, 5, 0, 1, 2, 3): a(f'v_exp_f32 v{x[i]}, v{x[i]}')
    a(f'v_add_f32 v{m}, v{x[4]}, v{x[5]}\nv_add_f32 v{t}, v{x[0]}, v{x[1]}\nv_fma_f32 v{m}, v{m}, 0.5, v{x[2]}\nv_add_f32 v{t}, v{t}, v{x[3]}\nv_add_f32 v{m}, v{m}, v{t}')
    a(f'v_add_f32_dpp v{m}, v{m}, v{m} row_ror:8 row_mask:0xf bank_mask:0xf')
    cross_rows(a, m, t, 'v_add_f32')
    a(f'v_rcp_f32 v{m}, v{m}')
    for k in range(3): a(f'v_pk_mul_f32 {vr(x[2*k],2)}, {vr(x[2*k],2)}, {vr(m,2)} op_sel_hi:[1,0]')
    o = R+4
    for k, d in enumerate((o, o+2, o+8)): a(f'v_cvt_pk_bf16_f32 v{d}, v{x[2*k]}, v{x[2*k+1]}')
    for d in (o, o+2, o+8): a(f'v_mov_b32_dpp v{d+1}, v{d} row_ror:8 row_mask:0xf bank_mask:0xf')
    a('s_mov_b32 exec_lo, 0x00ff00ff\ns_mov_b32 exec_hi, 0x00ff00ff')
    a(f's_cmp_eq_u32 s{sQ}, 0\ns_cbranch_scc1 PA_Q0')
    a(f'buffer_store_dwordx4 {vr(o,4)}, v{vPA}, {wsr()}, s{sPP} offen sc1\nbuffer_store_dwordx2 {vr(o+8,2)}, v{vPC}, {wsr()}, s{sPP} offen sc1')
    a('s_branch PA_STD')
    a.label('PA_Q0')
    a(f's_bitcmp1_b32 s{sI}, 0\ns_cbranch_scc1 PA_Q0ODD')
    a(f'v_mov_b32 v{o+2}, v{o+8}\nv_mov_b32 v{o+3}, v{o+9}\nbuffer_store_dwordx4 {vr(o,4)}, v{vPA}, {wsr()}, s{sPP} offen sc1\ns_branch PA_STD')
    a.label('PA_Q0ODD')
    a(f'v_mov_b32 v{o+10}, v{o}\nv_mov_b32 v{o+11}, v{o+1}\nbuffer_store_dwordx4 {vr(o+8,4)}, v{vPA}, {wsr()}, s{sPP} offen sc1')
    a.label('PA_STD')
    a('s_mov_b64 exec, -1')
    if diag: stamp(a, 3, diag); a(f's_sub_u32 s59, s{sS}, 2'); dump(a, diag, 2, 59, m, vt)
    a(f's_add_u32 s{sMEM}, s{sMEM}, {2*MEM_STEP}\ns_add_u32 s{sPP}, s{sPP}, {2*PP_STEP}\ns_cmp_lt_u32 s{sS}, 64\ns_cbranch_scc1 PA_TASK\ns_endpgm')

def gen_PB(a, diag=False):
    vL16, vXW, vt, vIDX, vWL, vVW, vVR, vL8, vZ, vRa, vRb, vSN = 2, 3, 4, 5, 6, 7, 8, 9, 10, 11, 0, 1
    RD = 44
    XB, WL, VB = 0, 28*KB, 84*KB
    sXS, sB, sVP, sFL, sS, sC, sMEM, sPP, sXR, sX1, sPRE, sT, sT2 = 21, 22, 23, 24, 25, 26, 27, 28, 29, 30, 31, 32, 33
    a.label('PB')
    a(f'v_lshlrev_b32 v{vL16}, 4, v1\nv_lshlrev_b32 v{vL8}, 3, v1\nv_mov_b32 v{vZ}, 0')
    a(f'v_and_b32 v{vt}, 1, v1\nv_cmp_eq_u32 vcc, 0, v{vt}\nv_mov_b32 v{vIDX}, 0xeeee\nv_mov_b32 v{vt}, 0x4444\nv_cndmask_b32 v{vIDX}, v{vIDX}, v{vt}, vcc')
    a(f's_lshl_b32 s34, s{sI}, 2\ns_add_u32 s34, s34, s3\ns_mul_i32 s20, s34, {112*KB}\ns_add_u32 s20, s20, {BIMG}')
    a(f's_mul_i32 s35, s3, {14*KB}\ns_add_u32 s35, s35, {WL}\nv_add_u32 v{vWL}, s35, v{vL16}')
    load_weights(a, 'PB', 20, 98, vL16, 14, 35, blocks=(16, 4, prod_B(a))); wstamp(a, diag)
    a(f's_mul_i32 s36, s3, 7168\ns_add_u32 s37, s36, {XB}\nv_add_u32 v{vXW}, s37, v{vL16}')
    a(f's_lshl_b32 s37, s3, 13\ns_add_u32 s37, s37, {VB}\nv_add_u32 v{vVW}, s37, v{vL16}')
    a(f's_lshl_b32 s37, s3, 10\ns_add_u32 s37, s37, {VB}\nv_add_u32 v{vVR}, s37, v{vL16}')
    a(f's_lshl_b32 s38, s{sL}, 6\ns_add_u32 s38, s38, s{sREP}')
    a(f's_mov_b32 s{sXS}, {XS1}\ns_cmp_eq_u32 s{sL}, 1\ns_cselect_b32 s{sXS}, {XS2}, s{sXS}\ns_cselect_b32 s{sXR}, {XR2}, 0')
    a(f's_cselect_b32 s{RD}, s4, s6\ns_cselect_b32 s{RD+1}, s5, s7\ns_mov_b32 s{RD+2}, {XS_SZ}\ns_cselect_b32 s{RD+2}, {1 << 28}, s{RD+2}\ns_mov_b32 s{RD+3}, 0x20000')
    a(f's_cselect_b32 s48, 10, 6\ns_cselect_b32 s49, 8, 32\ns_cselect_b64 vcc, -1, 0')
    a(f'v_and_b32 v{vt}, 15, v1\nv_mul_u32_u24 v{vRa}, {ROW}, v{vt}\nv_lshrrev_b32 v{vt}, 4, v1\nv_lshl_add_u32 v{vRa}, v{vt}, 3, v{vRa}\nv_cndmask_b32 v{vRa}, v{vRa}, v{vL16}, vcc\nv_add_u32 v{vRb}, s49, v{vRa}')
    a(f's_mul_i32 s37, s{sREP}, {SEGB}\ns_add_u32 s{sXS}, s{sXS}, s37\ns_add_u32 s{sXS}, s{sXS}, s36')
    a(f's_mul_i32 s39, s3, {MT}\ns_lshl_b32 s40, s{sI}, 10\ns_add_u32 s{sXR}, s{sXR}, s37\ns_add_u32 s{sXR}, s{sXR}, s39\ns_add_u32 s39, s39, s40\ns_lshl_b32 s40, s{sI}, s48\ns_add_u32 s{sXR}, s{sXR}, s40')
    a(f's_mul_i32 s{sX1}, s38, {SEGB}\ns_add_u32 s{sX1}, s{sX1}, s39\ns_add_u32 s{sX1}, s{sX1}, {X1}')
    a(f's_mul_i32 s{sVP}, s38, {VP_STEP}\ns_lshl_b32 s37, s34, 13\ns_add_u32 s{sVP}, s{sVP}, s37\ns_add_u32 s{sVP}, s{sVP}, {VP}')
    a(f's_mul_i32 s{sFL}, s38, {FL_STEP}\ns_lshl_b32 s37, s{sI}, 7\ns_add_u32 s{sFL}, s{sFL}, s37\ns_lshl_b32 s37, s3, 2\ns_add_u32 s{sFL}, s{sFL}, s37\ns_add_u32 s{sFL}, s{sFL}, {VF}')
    a(f's_mul_i32 s{sMEM}, s{sL}, {MEM_L}\ns_mul_i32 s37, s{sREP}, {MEM_STEP}\ns_add_u32 s{sMEM}, s{sMEM}, s37\ns_add_u32 s{sMEM}, s{sMEM}, {MEMX+MEM_ONE}')
    a(f's_mul_i32 s{sPP}, s38, {PP_STEP}\ns_mul_i32 s37, s3, {4*PP_HEAD}\ns_add_u32 s{sPP}, s{sPP}, s37\ns_add_u32 s{sPP}, s{sPP}, {PP}')
    a(f's_mov_b32 s{sS}, s{sREP}\ns_mov_b32 s41, 32768\ns_waitcnt vmcnt(0)')
    XF, WSt, ACC, PK = 12, 28, 40, 72
    STG = [12+4*i for i in range(7)]
    ME, WA, WS8 = 88, 40, 80
    def xdma():
        o = ['s_mov_b32 m0, s36']
        for i in range(7):
            if i == 4: o.append('s_add_u32 m0, s36, 4096')
            o.append(f'buffer_load_dwordx4 v{vL16}, {wsr()}, s{sXS if i < 4 else sB} offen offset:{1024*(i%4)} sc1 lds')
        return o
    def xcheck(q0):
        for i in range(7): a(f'ds_read_b128 {vr(q0+4*i,4)}, v{vXW} offset:{1024*i}')
        a('s_waitcnt lgkmcnt(0)')
        allset(a, vt, range(q0, q0+28))
        a('s_cmp_eq_u64 vcc, 0\ns_cselect_b32 s50, 1, 0')
    ml = seg_loads([ME+4*i for i in range(7)], vL16, sMEM, 51)
    flag = f'buffer_store_dword v{vZ}, v{vZ}, {wsr()}, s52 offen sc1'
    a(f'v_and_b32 v{vt}, 3, v1\nv_mul_u32_u24 v12, {PP_HEAD}, v{vt}\nv_bfe_u32 v{vt}, v1, 2, 1\nv_lshl_add_u32 v12, v{vt}, 7, v12\nv_bfe_u32 v{vt}, v1, 3, 1\nv_lshl_add_u32 v{vSN}, v{vt}, 10, v12')
    a(f's_add_u32 s{sB}, s{sXS}, 4096')
    for l in xdma(): a(l)
    a('s_waitcnt vmcnt(0)')
    xcheck(12)
    a.label('PB_PRE')
    a(f's_add_u32 s{sT}, s{sVP}, 4096\ns_add_u32 s51, s{sMEM}, 4096\ns_cmp_eq_u32 s50, 1\ns_cbranch_scc1 PB_XOK')
    spin(a, 'PB_X', seg_loads(STG, vL16, sXS, sB), qregs(STG), vt, sC, 10, sleep=0)
    for i, q in enumerate(STG): a(f'ds_write_b128 v{vXW}, {vr(q,4)} offset:{1024*i}')
    a('s_waitcnt lgkmcnt(0)')
    a.label('PB_XOK')
    a('s_barrier')
    stamp(a, 0, diag)
    ops = []; n = 0; late = {}
    for be in range(2):
        for T in range(14):
            for mt in range(2): ops.append(f'ds_read_b128 {vr(XF+8*(T&1)+4*mt,4)}, v{vL16} offset:{XB+mt*MT+T*1024}')
            for uu in range(4):
                f = b_frag(T, 4*be+uu)
                if f < 98: w = wreg(f)
                else:
                    w = vr(WSt+4*(n % 3), 4); n += 1
                    ops.append(f'ds_read_b128 {w}, v{vWL} offset:{(f-98)*1024}')
                for mt in range(2):
                    c = vr(ACC+8*uu+4*mt, 4)
                    ops.append(f'{MF} {c}, {vr(XF+8*(T&1)+4*mt,4)}, {w}, {c if T else 0}')
        for uu in range(4):
            ph, nt = uu >> 1, uu & 1; i = nt*2+ph; d = PK+4*i
            ops += cvt(d, ACC+8*uu) + cvt(d+2, ACC+8*uu+4)
            ops.append(f'buffer_store_dwordx4 {vr(d,4)}, v{vL16}, {wsr()}, s{sT if be else sVP} offen offset:{1024*i} sc1')
            ops.append(f'ds_write_b128 v{vVW}, {vr(d,4)} offset:{4096*be+1024*i}')
        if be == 0:
            late[len(ops)] = OPT.get('pb_mlate', 2700); ops += ml
    emit(a, ops, 'PB gemm', L=dict(ds=100, vmgap=64), late=late)
    stamp(a, 1, diag)
    a(f's_mov_b32 s{sPRE}, 1\nv_add_u32 v{vVW}, s41, v{vVW}\ns_sub_u32 s41, 0, s41')
    a(f's_add_u32 s{sS}, s{sS}, 3\ns_add_u32 s{sXS}, s{sXS}, {3*SEGB}\ns_add_u32 s{sVP}, s{sVP}, {3*VP_STEP}\ns_mov_b32 s52, s{sFL}\ns_add_u32 s{sFL}, s{sFL}, {3*FL_STEP}')
    a(f's_cmp_lt_u32 s{sS}, 64\ns_cselect_b32 s{sT}, 0, {3*SEGB}\ns_sub_u32 s{sXS}, s{sXS}, s{sT}\ns_add_u32 s{sB}, s{sXS}, 4096\ns_waitcnt lgkmcnt(0)\ns_barrier')
    a(f's_sub_u32 s{sT}, s{sS}, s{sREP}\ns_cmp_gt_u32 s{sT}, 3\ns_cbranch_scc1 PB_POST')
    for l in xdma(): a(l)
    a(f's_waitcnt vmcnt(7)\n{flag}\ns_waitcnt vmcnt(1)')
    xcheck(12)
    a('s_branch PB_PRE')
    a.label('PB_POST')
    a('s_waitcnt vmcnt(4)')
    allset(a, vt, range(ME, ME+28))
    a('s_cbranch_vccnz PB_MSLOW')
    a.label('PB_MOK')
    stamp(a, 2, diag)
    pA = lambda hh: 12 + 4*hh; pB = lambda hh: (28, 32, 72, 76)[hh]; pC = lambda hh: (36, 38, 116, 118)[hh]
    PR = list(range(12, 40)) + list(range(72, 80)) + list(range(116, 120))
    a(f's_add_u32 s42, s{sX1}, {3*SEGB}\ns_cmp_lt_u32 s{sS}, 67\ns_cselect_b32 s42, s42, {OOB}\ns_cmp_lt_u32 s3, 2\ns_cselect_b32 s42, s42, {OOB}')
    for hh in range(1, 4): a(f's_add_u32 s{52+hh}, s{sPP}, {hh*PP_HEAD}')
    pl = []
    for hh in range(4):
        sb = 52+hh if hh else sPP
        pl += [f'buffer_load_dwordx4 {vr(pA(hh),4)}, v{vL16}, {wsr()}, s{sb} offen sc1', f'buffer_load_dwordx4 {vr(pB(hh),4)}, v{vL16}, {wsr()}, s{sb} offen offset:1024 sc1',
               f'buffer_load_dwordx2 {vr(pC(hh),2)}, v{vL8}, {wsr()}, s{sb} offen offset:2048 sc1']
    for i in range(4): a(f'v_mov_b32 v{12+i}, -1')
    a(f'buffer_store_dwordx4 v[12:15], v{vL16}, {wsr()}, s42 offen sc1')
    for i in range(32): a(f'v_mov_b32 v{WA+i}, 0')
    WK = ME; OUT = [104, 108, 112, 80]; VS = WA; RS = 84
    lead = []; rest = []
    for b in range(7):
        for u in range(8):
            f = (b*8+u)*2
            if f < 98: rest.append(f'{SM} {vr(WA+4*u,4)}, {vr(ME+4*b,4)}, {wreg(f, 8)}, v{vIDX}')
            else: lead += [f'ds_read_b128 {vr(WS8,4)}, v{vWL} offset:{(f-98)*1024}', f'ds_read_b128 {vr(WS8+4,4)}, v{vWL} offset:{(f-97)*1024}',
                           f'{SM} {vr(WA+4*u,4)}, {vr(ME+4*b,4)}, {vr(WS8,8)}, v{vIDX}']
    grp = lambda r: [o for i in r for o in lead[3*i:3*i+3] + rest[7*i:7*i+7]]
    vm, lg = emit(a, xdma() + grp(range(4)), 'PB w1', L=dict(ds=100, vmgap=56))
    a(f's_waitcnt vmcnt(8)\n{flag}')
    ops = pl + grp(range(4, 7))
    for u in range(8): ops += cvt(WK+8*(u & 1)+2*(u >> 1), WA+4*u)
    for i in range(8): ops.append(f'ds_read_b128 {vr(VS+4*i,4)}, v{vVW} offset:{1024*i}')
    rl = [f'buffer_load_dwordx2 {vr(RS,2)}, v{vRa}, s[{RD}:{RD+3}], s{sXR} offen sc1', f'buffer_load_dwordx2 {vr(RS+2,2)}, v{vRb}, s[{RD}:{RD+3}], s{sXR} offen sc1']
    emit(a, ops + rl, 'PB w2', L=dict(ds=100, vmgap=36), lg_in=lg)
    a('s_waitcnt vmcnt(2)')
    allset(a, vt, PR)
    a('s_cbranch_vccnz PB_PSLOW')
    a.label('PB_POK')
    stamp(a, 3, diag)
    a('s_waitcnt lgkmcnt(0)')
    ops = []
    for nt in range(2):
        for mt in range(2):
            c = vr(OUT[nt*2+mt], 4); first = True
            for be in range(2):
                pm = vr(pC(2*be), 4) if mt else vr(pB(2*be)+2, 4)
                ops.append(f'{MF} {c}, {vr(WK+8*nt+4*be,4)}, {pm}, {0 if first else c}'); first = False
                for ph in range(2):
                    hh = 2*be+ph; v = VS+4*((be*2+nt)*2+ph)
                    if mt: ops.append(f'{MF} {c}, {vr(v,4)}, {vr(pA(hh),4)}, {c}')
                    else: ops.append(f'{MH} {c}, {vr(v,2)}, {vr(pB(hh)+2*ph,2)}, {c}')
    for k in range(4): ops.append(f'ds_write_b128 v{vVW}, {vr(OUT[k],4)} offset:{1024*k}')
    emit(a, ops, 'PB post')
    a('s_waitcnt lgkmcnt(0)\ns_barrier')
    a('s_cmp_ge_u32 s3, 2\ns_waitcnt vmcnt(0)\ns_cbranch_scc1 PB_NEXT')
    a(f's_max_i32 s42, s41, 0\ns_sub_u32 s42, 32768, s42\nv_add_u32 v{vt}, s42, v{vVR}')
    F = 40
    for p in range(4):
        for nt in range(2): a(f'ds_read_b128 {vr(F+8*p+4*nt,4)}, v{vt} offset:{8192*p+2048*nt}')
    a(f's_mov_b32 s{sC}, 0')
    a.label('PB_R')
    a(f's_waitcnt vmcnt(0)'); allset(a, vt, range(RS, RS+4)); a('s_cbranch_vccz PB_ROK')
    for l in rl: a(l)
    guard(a, sC, 13); a('s_branch PB_R')
    a.label('PB_ROK')
    unpack8(a, 12, RS)
    for p in range(4):
        a(f's_waitcnt lgkmcnt({6-2*p})')
        for i in range(4): a(f'v_pk_add_f32 {vr(12+2*i,2)}, {vr(12+2*i,2)}, {vr(F+8*p+2*i,2)}')
    pack8(a, 20, 12)
    a(f'buffer_store_dwordx4 v[20:23], v{vL16}, {wsr()}, s{sX1} offen sc1')
    if diag: stamp(a, 4, diag); a(f's_sub_u32 s59, s{sS}, 6\ns_and_b32 s59, s59, 63'); dump(a, diag, 3, 59, 24, vt)
    a.label('PB_NEXT')
    xcheck(88)
    a(f's_add_u32 s{sMEM}, s{sMEM}, {3*MEM_STEP}\ns_add_u32 s{sPP}, s{sPP}, {3*PP_STEP}\ns_add_u32 s{sXR}, s{sXR}, {3*SEGB}\ns_add_u32 s{sX1}, s{sX1}, {3*SEGB}')
    a(f's_cmp_lt_u32 s{sS}, 64\ns_cbranch_scc1 PB_PRE')
    a(f's_cmp_eq_u32 s{sPRE}, 0\ns_cbranch_scc1 END')
    a(f's_mov_b32 s{sPRE}, 0\nv_add_u32 v{vVW}, s41, v{vVW}\ns_sub_u32 s41, 0, s41\ns_add_u32 s{sS}, s{sS}, 3\ns_mov_b32 s52, {OOB}\ns_add_u32 s51, s{sMEM}, 4096\ns_barrier')
    a.label('PB_MSLOW')
    a(f's_waitcnt vmcnt(0)\n{flag}\ns_mov_b32 s52, {OOB}')
    spin(a, 'PB_M', ml, range(ME, ME+28), vt, sC, 11, sleep=1)
    a('s_branch PB_MOK')
    a.label('PB_PSLOW')
    a(f's_mov_b32 s{sC}, 0')
    a.label('PB_PS')
    a(f'buffer_load_dword v12, v{vSN}, {wsr()}, s{sPP} offen sc1')
    guard(a, sC, 12)
    a('s_waitcnt vmcnt(0)\nv_cmp_eq_u32 vcc, -1, v12\ns_cbranch_vccnz PB_PS')
    for l in pl: a(l)
    a('s_waitcnt vmcnt(0)')
    allset(a, vt, PR)
    a('s_cbranch_vccnz PB_PS\ns_branch PB_POK')

def gen_FF(a, diag=False):
    vL16, vXW, vt, vWL, vHW, vHR, vRO, vR0, vR1, vMK, vO = 2, 3, 4, 5, 6, 7, 8, 9, 10, 11, 0
    XB, WL, HB, STB = 0, 28*KB, 84*KB, 100*KB
    sX1, sB, sS, sC, sRW, sRR, sOUT, sT, sT2, sXO = 21, 22, 23, 24, 25, 26, 27, 28, 29, 30
    OS = 44
    XF, WSt, B1, TM, AC2 = 12, 28, 40, 56, 64
    a.label('FF')
    srd(a, OS, 8, XS_SZ)
    a(f'v_lshlrev_b32 v{vL16}, 4, v1')
    a(f's_lshl_b32 s34, s{sI}, 2\ns_add_u32 s34, s34, s3\ns_mul_i32 s20, s34, {112*KB}\ns_add_u32 s20, s20, {FIMG}')
    a(f's_mul_i32 s35, s3, {14*KB}\ns_add_u32 s35, s35, {WL}\nv_add_u32 v{vWL}, s35, v{vL16}')
    a(f's_cmp_eq_u32 s{sI}, 7\ns_cbranch_scc1 FF_NOW')
    wait_tags(a, 'FF_TA', FLA, 256, 18)
    a(f's_mov_b32 s52, 0x3f803f80\ns_add_u32 s21, s20, {56*KB}')
    def w1(ft):
        a(f's_add_u32 s22, s20, {ft*KB}')
        for T in range(14): a(f'buffer_load_dwordx4 {vr(12+56*(ft&1)+4*T,4) if not (ft & 1) or T < 13 else vr(248,4)}, v{vL16}, {wsr()}, s22 offen\ns_add_u32 s22, s22, 4096')
    src = lambda ft, i: 12+56*(ft&1)+i if not (ft & 1) or i < 52 else 248+i-52
    w1(0); w1(1)
    for ft in range(4):
        if ft == 2:
            for f in list(range(56, 96)) + [97]: a(f's_add_u32 s22, s20, {f*KB}\nbuffer_load_dwordx4 {wreg(f)}, v{vL16}, {wsr()}, s22 offen')
            for i in range(14): a(f's_add_u32 s22, s20, {(98+i)*KB}\ns_add_u32 m0, s35, {i*1024}\nbuffer_load_dwordx4 v{vL16}, {wsr()}, s22 offen lds')
        a(f's_waitcnt vmcnt({(14, 14, 63, 55)[ft]})\nv_mov_b32 v8, 0\nv_mov_b32 v9, 0')
        for i in range(56): a(f'v_dot2_f32_bf16 v{8+(i&1)}, v{src(ft,i)}, s52, v{8+(i&1)}')
        a('v_add_f32 v8, v8, v9')
        cross_rows(a, 8, 9, 'v_add_f32')
        a(f'v_mul_f32 v8, {f2u(1/448):#x}, v8')
        for i in range(56):
            u = (10, 6)[i & 1]
            a(f'v_lshlrev_b32 v{u}, 16, v{src(ft,i)}\nv_and_b32 v{u+1}, 0xffff0000, v{src(ft,i)}\nv_pk_add_f32 {vr(u,2)}, {vr(u,2)}, v[8:9] op_sel_hi:[1,0] neg_lo:[0,1] neg_hi:[0,1]')
            a(f'v_cvt_pk_bf16_f32 v{u}, v{u}, v{u+1}\nv_accvgpr_write_b32 a{16*(i>>2)+4*ft+(i&3)}, v{u}')
        if ft < 2: w1(ft+2)
    a(f's_add_u32 s22, s20, {96*KB}\nbuffer_load_dwordx4 {wreg(96)}, v{vL16}, {wsr()}, s22 offen')
    a('s_waitcnt vmcnt(0)'); wstamp(a, diag)
    a('s_branch FF_W')
    a.label('FF_NOW')
    load_weights(a, 'FR', 20, 0, vL16)
    a.label('FF_W')
    a(f's_and_b32 s36, s3, 1\ns_mul_i32 s36, s36, {MT}\ns_lshr_b32 s37, s3, 1\ns_mul_i32 s37, s37, 7168\ns_add_u32 s36, s36, s37\nv_add_u32 v{vXW}, s36, v{vL16}')
    a(f's_lshl_b32 s37, s3, 11\ns_add_u32 s37, s37, {HB}\nv_add_u32 v{vHW}, s37, v{vL16}\nv_add_u32 v{vHR}, {HB}, v{vL16}')
    a(f's_lshl_b32 s38, s{sL}, 6\ns_add_u32 s38, s38, s{sREP}\ns_mul_i32 s{sX1}, s38, {SEGB}\ns_add_u32 s{sX1}, s{sX1}, s36\ns_add_u32 s{sX1}, s{sX1}, {X1}')
    a(f's_mul_i32 s37, s{sL}, 3\ns_add_u32 s37, s37, s{sREP}\ns_mul_i32 s{sRR}, s37, {RING_SET}\ns_add_u32 s{sRR}, s{sRR}, {RING}\ns_mul_i32 s37, s{sI}, {RING_J}\ns_add_u32 s{sRW}, s{sRR}, s37')
    a('s_mul_i32 s48, s3, 7\ns_add_u32 s48, s48, 1\ns_lshr_b32 s48, s48, 1\ns_lshl_b32 s48, s48, 10')
    a('s_lshr_b32 s49, s3, 1\ns_mul_i32 s49, s49, 7\ns_add_u32 s49, s49, 3\ns_lshl_b32 s49, s49, 10\ns_and_b32 s37, s3, 1\ns_lshl_b32 s37, s37, 3\ns_add_u32 s49, s49, s37')
    a(f'v_lshrrev_b32 v{vt}, 2, v1\nv_cmp_gt_u32 vcc, 14, v{vt}\nv_min_u32 v{vt}, 13, v{vt}\nv_cndmask_b32 v{vMK}, 0, 1.0, vcc\ns_mov_b64 s[50:51], vcc')
    a(f's_mul_i32 s37, s3, 14\nv_add_u32 v{vt}, s37, v{vt}\nv_and_b32 v{TM}, 3, v1')
    a(f'v_lshlrev_b32 v{vRO}, 8, v{vt}\nv_lshl_add_u32 v{vRO}, v{TM}, 4, v{vRO}')
    a(f'v_lshrrev_b32 v{TM+1}, 2, v{vt}\nv_lshlrev_b32 v{vO}, 6, v{TM+1}\nv_and_b32 v{TM+1}, 3, v{vt}\nv_lshl_add_u32 v{vO}, v{TM+1}, 3, v{vO}\nv_mul_u32_u24 v{TM}, {ROW}, v{TM}\nv_add_u32 v{vO}, v{vO}, v{TM}')
    a(f's_lshr_b32 s37, s{sI}, 2\ns_mul_i32 s37, s37, {MT}\ns_and_b32 s39, s{sI}, 3\ns_lshl_b32 s39, s39, 6\ns_add_u32 s37, s37, s39\nv_add_u32 v{vRO}, s37, v{vRO}')
    a(f's_mul_i32 s37, s{sI}, {4*ROW}\nv_add_u32 v{vO}, s37, v{vO}')
    a(f's_mul_i32 s{sOUT}, s{sREP}, {SEGB}\ns_mov_b32 s{sS}, s{sREP}\ns_mov_b32 s41, 0\ns_mov_b32 s52, 0x3f803f80\ns_mov_b32 s61, 0x3f80\ns_mov_b32 s62, 0x3f800000\ns_waitcnt vmcnt(0)')
    a(f's_mov_b32 s53, {f2u(1/448):#x}\ns_cmp_eq_u32 s{sI}, 7\ns_cbranch_scc1 FR')
    STG = [92+4*i for i in range(7)]
    xl = seg_loads(STG, vL16, sX1, sB)
    vAK = 63
    ack = f'buffer_load_dword v{vAK}, off, {wsr()}, s43 sc1'
    a(f's_mul_i32 s43, s{sL}, 3\ns_add_u32 s43, s43, s{sREP}\ns_lshl_b32 s43, s43, 7\ns_add_u32 s43, s43, {TKT+8*128}\ns_mov_b32 s63, -2\nv_mov_b32 v{vAK}, -1')
    a(f'v_lshlrev_b32 v12, 3, v{vL16}\ns_mul_i32 s37, s3, 7168\ns_add_u32 s37, s37, s{sRW}\nv_min_u32 v12, {55*128}, v12')
    for k in range(3): a(f'buffer_load_dword v13, v12, {wsr()}, s37 offen sc1\ns_add_u32 s37, s37, {RING_SLOT}')
    a(f's_add_u32 s{sB}, s{sX1}, 4096')
    for l in xl: a(l)
    a('s_waitcnt vmcnt(0)')
    a.label('FF_TASK')
    a(f's_waitcnt vmcnt(2)\nv_cmp_gt_i32 vcc, s63, v{vAK}\ns_cbranch_vccnz FF_ACK')
    a.label('FF_ACKED')
    spin(a, 'FF_X', xl, qregs(STG), vt, sC, 14, sleep=OPT.get('ff_sleep', 0), first_issued=True, nafter=2)
    stamp(a, 0, diag)
    s1, s2 = TM, TM+1
    for k in range(4): a(f'v_mov_b32 v{TM+k}, 0')
    for i in range(28):
        if i % 4 == 0: a(f'ds_write_b128 v{vXW}, {vr(92+i,4)} offset:{256*i}')
        a(f'v_dot2_f32_bf16 v{s1+2*(i&1)}, v{92+i}, s52, v{s1+2*(i&1)}\nv_dot2_f32_bf16 v{s2+2*(i&1)}, v{92+i}, v{92+i}, v{s2+2*(i&1)}')
    a(f'v_and_b32 v{vt}, 15, v1\nv_lshlrev_b32 v{vt}, 3, v{vt}\ns_lshl_b32 s37, s3, 7\ns_add_u32 s37, s37, {STB}\nv_add_u32 v{TM+4}, s37, v{vt}')
    a(f'v_add_f32 v{s1}, v{s1}, v{s1+2}\nv_add_f32 v{s2}, v{s2}, v{s2+2}')
    for sw in ('v_permlane16_swap_b32', 'v_permlane32_swap_b32'):
        a(f'v_mov_b32 v{s1+2}, v{s1}\nv_mov_b32 v{s2+2}, v{s2}\n{sw} v{s1}, v{s1+2}\n{sw} v{s2}, v{s2+2}\nv_add_f32 v{s1}, v{s1}, v{s1+2}\nv_add_f32 v{s2}, v{s2}, v{s2+2}')
    a(f'ds_write_b64 v{TM+4}, {vr(s1,2)}\nv_add_u32 v{vt}, {STB}, v{vt}')
    a('s_waitcnt lgkmcnt(0)\ns_barrier')
    A1 = AC2
    LOG2E = 1.4426950408889634
    def gemm1(ps, Ts):
        o = []
        for T in Ts:
            for mt in range(2): o.append(f'ds_read_b128 {vr(XF+8*(T&1)+4*mt,4)}, v{vL16} offset:{XB+mt*MT+T*1024}')
            for p in ps:
                for ft in range(2):
                    for mt in range(2):
                        c = vr((A1, B1)[p]+8*ft+4*mt, 4)
                        o.append(f'{MF} {c}, {wreg(T*4+2*p+ft)}, {vr(XF+8*(T&1)+4*mt,4)}, {c if T else 0}')
        return o
    def silu(p, acc):
        o = []; n = 0
        for mt in range(2):
            for ft in range(2):
                for j in range(4):
                    z = acc+8*ft+4*mt+j; e = (TM, TM+1, WSt+8, WSt+9, WSt+10, WSt+11)[n % 6]; n += 1
                    o += [f'v_mul_f32 v{e}, v{z}, v{vR0+mt}', f'v_exp_f32 v{e}, v{e}', f'v_fma_f32 v{e}, v{e}, v{TM+2+mt}, v{TM+2+mt}',
                          f'v_rcp_f32 v{e}, v{e}', f'v_mul_f32 v{z}, v{z}, v{e}']
            d = TM+4
            o += cvt(d, acc+4*mt) + cvt(d+2, acc+8+4*mt)
            o.append(f'ds_write_b128 v{vHW}, {vr(d,4)} offset:{8192*p+1024*mt}')
        return o
    def gemm2(ks):
        o = []; n = 0
        for kp in ks:
            for mt in range(2): o.append(f'ds_read_b128 {vr(XF+8*(kp&1)+4*mt,4)}, v{vHR} offset:{2048*kp+1024*mt}')
            for tl in range(7):
                f = 56+kp*7+tl
                if f < 98: w = wreg(f)
                else:
                    w = vr(WSt+4*(n % 3), 4); n += 1
                    o.append(f'ds_read_b128 {w}, v{vWL} offset:{(f-98)*1024}')
                for mt in range(2):
                    c = vr(AC2+8*tl+4*mt, 4)
                    o.append(f'{MF} {c}, {w}, {vr(XF+8*(kp&1)+4*mt,4)}, {c if kp else 0}')
        return o
    def gemm2t():
        o = [f'ds_read_b128 {vr(XF+8*(kp&1)+4*mt,4)}, v{vHR} offset:{2048*kp+1024*mt}' for kp in (6, 7) for mt in range(2)]; n = 0
        for tl in range(7):
            for kp in (6, 7):
                w = vr((WSt, WSt+4, WSt+8, TM, TM+4)[n % 5], 4); n += 1
                o.append(f'ds_read_b128 {w}, v{vWL} offset:{(56+kp*7+tl-98)*1024}')
                for mt in range(2):
                    c = vr(AC2+8*tl+4*mt, 4)
                    o.append(f'{MF} {c}, {w}, {vr(XF+8*(kp&1)+4*mt,4)}, {c}')
        return o
    st = [f'ds_read2_b64 {vr(WSt,4)}, v{vt} offset0:0 offset1:32', f'ds_read2_b64 {vr(WSt+4,4)}, v{vt} offset0:16 offset1:48']
    for mt in range(2):
        b = WSt+4*mt
        st += [f'v_pk_add_f32 {vr(b,2)}, {vr(b,2)}, {vr(b+2,2)}', f'v_mul_f32 v{b}, {f2u(1/448):#x}, v{b}', f'v_mul_f32 v{b}, v{b}, v{b}',
               f'v_fma_f32 v{b}, v{b+1}, s53, -v{b}', f'v_max_f32 v{b}, 0, v{b}', f'v_add_f32 v{b}, {f2u(1e-5):#x}, v{b}', f'v_rsq_f32 v{vR0+mt}, v{b}',
               f'v_mul_f32 v{TM+2+mt}, v{b}, v{vR0+mt}', f'v_mul_f32 v{vR0+mt}, {f2u(-LOG2E):#x}, v{vR0+mt}']
    a(f's_cmp_eq_u32 s41, 2\ns_mov_b32 s56, {RING_SLOT}\ns_cselect_b32 s56, {(-2*RING_SLOT) & 0xffffffff:#x}, s56\ns_add_u32 s57, s{sRW}, s56\ns_mul_i32 s37, s3, 7168\ns_add_u32 s57, s57, s37\ns_add_u32 s58, s57, 4096')
    po = [f'v_mov_b32 v{WSt+8+k}, -1' for k in range(4)]
    po += [f'buffer_store_dwordx4 {vr(WSt+8,4)}, v{vL16}, {wsr()}, s{57 if i < 4 else 58} offen offset:{1024*(i%4)}' for i in range(7)]
    mark = f's_add_u32 s59, s{sOUT}, {XS2+6*SEGB}\ns_add_u32 s60, s{sOUT}, {XR2+6*SEGB}\ns_lshl_b32 s37, s{sL}, 6\ns_add_u32 s37, s37, s{sS}\ns_cmp_lt_u32 s37, 58\ns_cselect_b32 s59, s59, {OOB}\ns_cselect_b32 s60, s60, {OOB}'
    a(mark)
    po += [f'buffer_store_dwordx4 {vr(WSt+8,4)}, v{vRO}, {wsr()}, s{k} offen sc1' for k in (59, 60)]
    K1 = OPT.get('ff_k1', 0)
    emit(a, st + po + gemm1((0, 1), range(K1)) + gemm1((0,), range(K1, 14)) + gemm1((1,), range(K1, 14)) + silu(0, A1), 'FF gemm1', L=dict(ds=100, vmgap=60))
    a('s_waitcnt lgkmcnt(0)\ns_barrier')
    stamp(a, 1, diag)
    emit(a, gemm2(range(4)) + silu(1, B1), 'FF gemm2a', L=dict(ds=100))
    a('s_waitcnt lgkmcnt(0)\ns_barrier')
    a('s_waitcnt vmcnt(0)')
    ops = gemm2(range(4, 6)) + gemm2t()
    a(f's_add_u32 s{sT}, s{sRW}, s48\ns_add_u32 s54, s{sT}, {MT}\ns_add_u32 s{sT2}, s{sRW}, s49\ns_add_u32 s55, s{sT2}, {MT}')
    n = 0
    for p in range(4):
        for mt in range(2):
            d = B1 + 4*(n % 4); n += 1
            ops += cvt(d, AC2+16*p+4*mt)
            if p < 3:
                ops += cvt(d+2, AC2+16*p+8+4*mt)
                ops.append(f'buffer_store_dwordx4 {vr(d,4)}, v{vL16}, {wsr()}, s{54 if mt else sT} offen offset:{1024*p}')
            else: ops.append(f'buffer_store_dwordx2 {vr(d,2)}, v{vL16}, {wsr()}, s{55 if mt else sT2} offen')
    emit(a, ops, 'FF gemm2b', L=dict(ds=100))
    stamp(a, 2, diag)
    def reduce(tag, extra):
        PT, XR, V = 64, 40, 48
        ld = []
        for j in range(7):
            ld += [f's_add_u32 s42, s{sRR}, {j*RING_J}', f'buffer_load_dwordx4 {vr(PT+4*j,4)}, v{vRO}, {wsr()}, s42 offen sc1']
        if extra: ld.append(f'buffer_load_dwordx4 {vr(XR,4)}, v{vRO}, {wsr()}, s{sX1} offen sc1')
        else: a(f'ds_read_b128 {vr(XR,4)}, v{vRO} offset:{XB}')
        spin(a, tag, ld, list(range(PT, PT+28)) + (list(range(XR, XR+4)) if extra else []), vt, sC, 15, sleep=OPT.get('fr_sleep', 0) if extra else 0)
        if not extra:
            stamp(a, 3, diag); dump(a, diag, 4, sS, 56, vt)
            a(f's_add_u32 s{sS}, s{sS}, 3\ns_cmp_lt_u32 s{sS}, 64\ns_cselect_b32 s37, {3*SEGB}, 0\ns_add_u32 s{sX1}, s{sX1}, s37\ns_add_u32 s{sB}, s{sX1}, 4096')
            for l in xl + [ack]: a(l)
            a('s_waitcnt lgkmcnt(0)')
        unpack8(a, V, XR)
        for j in range(7):
            for i in range(4):
                q = PT+4*j+i
                a(f'v_dot2_f32_bf16 v{V+2*i}, v{q}, s61, v{V+2*i}\nv_dot2_f32_bf16 v{V+2*i+1}, v{q}, s62, v{V+2*i+1}')
        pack8(a, XR, V)
        a(f's_cmp_eq_u32 s{sL}, 0\ns_cbranch_scc1 {tag}_LN')
        a('s_mov_b64 exec, s[50:51]')
        a(f'buffer_store_dwordx2 {vr(XR,2)}, v{vO}, s[{OS}:{OS+3}], s{sOUT} offen\nbuffer_store_dwordx2 {vr(XR+2,2)}, v{vO}, s[{OS}:{OS+3}], s{sOUT} offen offset:32')
        a(f's_mov_b64 exec, -1\ns_barrier\ns_branch {tag}_E')
        a.label(f'{tag}_LN')
        S = PT
        a(f'v_mov_b32 v{S}, 0\nv_mov_b32 v{S+1}, 0')
        for i in range(4): a(f'v_dot2_f32_bf16 v{S}, v{XR+i}, s52, v{S}\nv_dot2_f32_bf16 v{S+1}, v{XR+i}, v{XR+i}, v{S+1}')
        a(f'v_and_b32 v{vt}, 3, v1\nv_lshlrev_b32 v{vt}, 3, v{vt}\nv_add_u32 v{vt}, {STB+512}, v{vt}\ns_lshl_b32 s37, s3, 5\nv_add_u32 v{S+4}, s37, v{vt}')
        a(f'v_mul_f32 v{S}, v{S}, v{vMK}\nv_mul_f32 v{S+1}, v{S+1}, v{vMK}\ns_add_u32 s42, s{sOUT}, {XR2}')
        for r in (4, 8):
            for k in range(2): a(f'v_add_f32_dpp v{S+k}, v{S+k}, v{S+k} row_ror:{r} row_mask:0xf bank_mask:0xf')
        for sw in ('v_permlane16_swap_b32', 'v_permlane32_swap_b32'):
            a(f'v_mov_b32 v{S+2}, v{S}\nv_mov_b32 v{S+3}, v{S+1}\n{sw} v{S}, v{S+2}\n{sw} v{S+1}, v{S+3}\nv_add_f32 v{S}, v{S}, v{S+2}\nv_add_f32 v{S+1}, v{S+1}, v{S+3}')
        a(f'ds_write_b64 v{S+4}, {vr(S,2)}')
        a(f'buffer_store_dwordx4 {vr(XR,4)}, v{vRO}, {wsr()}, s42 offen sc1')
        unpack8(a, V, XR)
        a('s_waitcnt lgkmcnt(0)\ns_barrier')
        a(f'ds_read2_b64 {vr(S,4)}, v{vt} offset0:0 offset1:4\nds_read2_b64 {vr(S+4,4)}, v{vt} offset0:8 offset1:12\ns_add_u32 s42, s{sOUT}, {XS2}')
        a('s_waitcnt lgkmcnt(0)')
        a(f'v_pk_add_f32 {vr(S,2)}, {vr(S,2)}, {vr(S+2,2)}\nv_pk_add_f32 {vr(S+4,2)}, {vr(S+4,2)}, {vr(S+6,2)}\nv_pk_add_f32 {vr(S,2)}, {vr(S,2)}, {vr(S+4,2)}')
        a(f'v_mul_f32 v{S}, s53, v{S}\nv_mul_f32 v{S+2}, v{S}, v{S}\nv_fma_f32 v{S+2}, v{S+1}, s53, -v{S+2}\nv_max_f32 v{S+2}, 0, v{S+2}\nv_add_f32 v{S+2}, {f2u(1e-5):#x}, v{S+2}\nv_rsq_f32 v{S+2}, v{S+2}')
        for i in range(4): a(f'v_pk_add_f32 {vr(V+2*i,2)}, {vr(V+2*i,2)}, {vr(S,2)} op_sel_hi:[1,0] neg_lo:[0,1] neg_hi:[0,1]')
        for i in range(4): a(f'v_pk_mul_f32 {vr(V+2*i,2)}, {vr(V+2*i,2)}, {vr(S+2,2)} op_sel_hi:[1,0]')
        pack8(a, S+4, V)
        a(f'buffer_store_dwordx4 {vr(S+4,4)}, v{vRO}, {wsr()}, s42 offen sc1')
        a.label(f'{tag}_E')
    reduce('FF_R', False)
    if diag: stamp(a, 4, diag)
    a(f's_add_u32 s{sRW}, s{sRW}, s56\ns_add_u32 s{sRR}, s{sRR}, s56\ns_add_u32 s41, s41, 1\ns_cmp_eq_u32 s41, 3\ns_cselect_b32 s41, 0, s41')
    a(f's_add_u32 s{sOUT}, s{sOUT}, {3*SEGB}\ns_add_u32 s63, s63, 1\ns_cmp_lt_u32 s{sS}, 64\ns_cbranch_scc1 FF_TASK')
    dstamp(a, f's_mul_i32 s88, s{sL}, 3\ns_add_u32 s88, s88, s{sREP}\ns_lshl_b32 s88, s88, 2\ns_add_u32 s88, s88, 24')
    a('s_endpgm')
    a.label('FF_ACK')
    a(f's_mov_b32 s{sC}, 0')
    a.label('FF_ACK_L')
    a(ack); guard(a, sC, 16)
    a(f's_waitcnt vmcnt(0)\nv_cmp_gt_i32 vcc, s63, v{vAK}\ns_cbranch_vccnz FF_ACK_L\ns_branch FF_ACKED')
    a.label('FR')
    a(f's_mul_i32 s{sX1}, s{sL}, {64*SEGB}\ns_add_u32 s{sX1}, s{sX1}, {X1}\ns_mov_b32 s{sOUT}, 0\ns_mov_b32 s{sS}, 0\ns_mov_b32 s63, 0\ns_mov_b32 s54, 0')
    for i in range(4): a(f'v_mov_b32 v{WSt+8+i}, -1')
    def frmark():
        a(mark)
        for k in (59, 60): a(f'buffer_store_dwordx4 {vr(WSt+8,4)}, v{vRO}, {wsr()}, s{k} offen sc1')
    frmark()
    a.label('FR_L')
    a(f's_mul_i32 s37, s{sL}, 3\ns_add_u32 s37, s37, s54\ns_mul_i32 s{sRR}, s37, {RING_SET}\ns_mul_i32 s39, s41, {RING_SLOT}\ns_add_u32 s{sRR}, s{sRR}, s39\ns_add_u32 s{sRR}, s{sRR}, {RING}')
    a(f's_lshl_b32 s55, s37, 7\ns_add_u32 s55, s55, {TKT+8*128}')
    reduce('FR_R', True)
    a(f'v_mov_b32 v{vAK}, s63\nbuffer_store_dword v{vAK}, off, {wsr()}, s55')
    a(f's_add_u32 s{sX1}, s{sX1}, {SEGB}\ns_add_u32 s{sOUT}, s{sOUT}, {SEGB}\ns_add_u32 s{sS}, s{sS}, 1\ns_add_u32 s54, s54, 1\ns_cmp_lt_u32 s54, 3\ns_cbranch_scc1 FR_N')
    a('s_mov_b32 s54, 0\ns_add_u32 s63, s63, 1\ns_add_u32 s41, s41, 1\ns_cmp_eq_u32 s41, 3\ns_cselect_b32 s41, 0, s41')
    a.label('FR_N')
    frmark()
    a(f's_barrier\ns_cmp_lt_u32 s{sS}, 64\ns_cbranch_scc1 FR_L\ns_endpgm')
```

```python
from common import *
from layout import *
from lsched import schedule
from asmlib import regs_of
WS = 12
sL, sI = 16, 17
sREP = 18
SPIN = 1 << 17
OPT = dict(ra_k=2, ra_sleep=8, ra_gap=40, rb_k=1, rb_msleep=0, rb_pk=2, rb_psleep=0, rb_gap=48, gap=0, ra_dma=0, ra_touch=1, ra_lines=28, rb_early=4, rb_vgap=32)
def wsr(): return f's[{WS}:{WS+3}]'
def wreg(f, n=4):
    return ar(4*f, n) if f < 64 else vr(120 + 4*(f-64), n)
sNON = 90
def wait_tags(a, tag, base, n, code):
    a(f's_cmp_lg_u32 s3, 0\ns_cbranch_scc1 {tag}_B\nv_lshrrev_b32 v16, 1, v1\nv_lshlrev_b32 v16, 7, v16\nv_and_b32 v17, 1, v1\nv_lshl_add_u32 v16, v17, 4, v16\ns_mov_b32 s58, {base}\ns_mov_b32 s59, 0')
    a.label(f'{tag}_L')
    a(f'buffer_load_dwordx4 v[12:15], v16, {wsr()}, s58 offen sc1')
    guard(a, 59, code)
    a('s_waitcnt vmcnt(0)')
    for i in range(4): a(f'v_xor_b32 v{12+i}, s{sNON}, v{12+i}')
    a(f'v_or3_b32 v12, v12, v13, v14\nv_or_b32 v12, v12, v15\nv_cmp_ne_u32 vcc, 0, v12\ns_cbranch_vccz {tag}_B\ns_sleep 4\ns_branch {tag}_L')
    a.label(f'{tag}_B')
    a('s_barrier')
def load_weights(a, role, sbase, nreg, vL16, lds_frags=0, lds_base_s=None, blocks=None):
    def frag(f):
        if f < nreg: return f'buffer_load_dwordx4 {wreg(f)}, v{vL16}, {wsr()}, s57 offen offset:{(f%4)*1024}'
        return f's_add_u32 m0, s{lds_base_s}, {(f-nreg)*1024 - (f%4)*1024}\nbuffer_load_dwordx4 v{vL16}, {wsr()}, s57 offen offset:{(f%4)*1024} lds'
    def run(f0, f1):
        for f in range(f0, f1):
            if f == f0 or f % 4 == 0: a(f's_add_u32 s57, s{sbase}, {(f//4)*4096}')
            a(frag(f))
    if blocks is None:
        wait_tags(a, f'{role}_TA', FLA, 256, 18)
        run(0, nreg + lds_frags)
        a('s_waitcnt vmcnt(0)')
        return
    per, nprod, emit = blocks
    emit(12)
    a(f'v_lshrrev_b32 v13, 3, v12\nv_and_b32 v12, 7, v12\nv_lshlrev_b32 v12, 2, v12\nv_lshl_add_u32 v12, v13, 7, v12\ns_mov_b32 s58, {FLA}\ns_mov_b32 s59, 0\ns_mov_b32 s56, 0x7f')
    a.label(f'{role}_WL')
    a(f'buffer_load_dword v13, v12, {wsr()}, s58 offen sc1')
    guard(a, 59, 18)
    a(f's_waitcnt vmcnt(0)\nv_cmp_eq_u32 vcc, s{sNON}, v13\ns_mov_b32 s55, vcc_lo')
    for k in range(1, nprod): a(f's_lshr_b32 s54, vcc_lo, {8*k}\ns_and_b32 s55, s55, s54')
    a('s_and_b32 s55, s55, s56\ns_andn2_b32 s56, s56, s55')
    for b in range(7):
        a(f's_bitcmp1_b32 s55, {b}\ns_cbranch_scc0 {role}_WS{b}')
        run(b*per, (b+1)*per)
        a.label(f'{role}_WS{b}')
    a(f's_cmp_eq_u32 s56, 0\ns_cbranch_scc1 {role}_WE\ns_sleep 2\ns_branch {role}_WL')
    a.label(f'{role}_WE')
    a('s_waitcnt vmcnt(0)')
    wait_tags(a, f'{role}_TA', FLA, 256, 18)
def prod_A(a, sH):
    return lambda v: a(f's_and_b32 s56, s{sH}, 1\ns_mul_i32 s56, s56, 112\ns_lshr_b32 s57, s{sH}, 1\ns_add_u32 s56, s56, s57\nv_and_b32 v{v}, 7, v1\nv_min_u32 v{v}, 6, v{v}\nv_lshl_add_u32 v{v}, v{v}, 3, s56')
def prod_B(a):
    return lambda v: a(f'v_and_b32 v{v}, 7, v1\nv_min_u32 v{v}, 6, v{v}\nv_lshlrev_b32 v{v}, 3, v{v}\nv_bfe_u32 v{v+1}, v1, 3, 1\nv_mul_u32_u24 v{v+1}, 112, v{v+1}\nv_add_u32 v{v}, v{v}, v{v+1}\nv_bfe_u32 v{v+1}, v1, 4, 1\nv_add_u32 v{v}, v{v}, v{v+1}\ns_lshl_b32 s56, s3, 1\ns_add_u32 s56, s56, 56\nv_add_u32 v{v}, s56, v{v}')
def dstamp(a, slot, cond=None):
    if not OPT.get('dd'): return
    a('s_waitcnt lgkmcnt(0)\ns_memrealtime s[86:87]\ns_waitcnt lgkmcnt(0)\nv_mov_b32 v12, s86')
    a(slot if isinstance(slot, str) else f's_mov_b32 s88, {4*slot}')
    a('buffer_store_dword v12, off, s[92:95], s88')
def wstamp(a, diag):
    if not diag: return
    a(f's_waitcnt vmcnt(0)\ns_memrealtime s[84:85]\ns_waitcnt lgkmcnt(0)\nv_mov_b32 v12, s80\nv_mov_b32 v13, s82\nv_mov_b32 v14, s84\nv_mov_b32 v15, s19')
    a(f's_lshl_b32 s60, s2, 2\ns_add_u32 s60, s60, s3\ns_lshl_b32 s60, s60, 4\ns_add_u32 s60, s60, {DBG + (1<<20) + 16384}\nv_mov_b32 v16, 0\nbuffer_store_dwordx4 v[12:15], v16, {wsr()}, s60 offen\ns_waitcnt vmcnt(0)')
def allset(a, dst, regs):
    regs = list(regs); cur = None
    while regs:
        if cur is None:
            if len(regs) >= 3: a(f'v_max3_u32 v{dst}, v{regs[0]}, v{regs[1]}, v{regs[2]}'); regs = regs[3:]
            elif len(regs) == 2: a(f'v_max_u32 v{dst}, v{regs[0]}, v{regs[1]}'); regs = []
            else: a(f'v_cmp_eq_u32 vcc, -1, v{regs[0]}'); return
            cur = dst
        elif len(regs) >= 2: a(f'v_max3_u32 v{dst}, v{dst}, v{regs[0]}, v{regs[1]}'); regs = regs[2:]
        else: a(f'v_max_u32 v{dst}, v{dst}, v{regs[0]}'); regs = []
    a(f'v_cmp_eq_u32 vcc, -1, v{dst}')
def guard(a, s, code):
    a(f's_add_u32 s{s}, s{s}, 1\ns_cmp_gt_u32 s{s}, {SPIN}\ns_mov_b32 s99, {code}\ns_cbranch_scc1 FAIL')
def poll(a, tag, sets, issue, vt, scnt, code, gap=0, shadow=()):
    n = None
    a(f's_mov_b32 s{scnt}, 0')
    for k in range(len(sets)):
        n = issue(k)
        if gap and k < len(sets)-1:
            for _ in range(gap // 16): a('s_nop 15')
            if gap % 16: a(f's_nop {gap % 16 - 1}')
    for l in shadow: a(l)
    a.label(f'{tag}_L')
    for k in range(len(sets)):
        a(f's_waitcnt vmcnt({n*(len(sets)-1)})')
        allset(a, vt, sets[k])
        a(f's_cbranch_vccz {tag}_OK{k}')
        if OPT['gap']: a(f's_sleep {OPT["gap"]}')
        issue(k)
    guard(a, scnt, code)
    a(f's_branch {tag}_L')
def stamp(a, n, diag, role=None):
    if diag == 3:
        iv = OPT.get('iv')
        if iv and role == iv[0]:
            if n == iv[2]: a('s_waitcnt lgkmcnt(0)\ns_memtime s[88:89]\ns_waitcnt lgkmcnt(0)\ns_sub_u32 s88, s88, s86\ns_cmp_lt_u32 s88, 20000\ns_cselect_b32 s88, s88, 0\ns_add_u32 s78, s78, s88')
            if n == iv[1]: a('s_waitcnt lgkmcnt(0)\ns_memtime s[86:87]\ns_waitcnt lgkmcnt(0)')
        return
    op = 's_memrealtime' if diag == 2 else 's_memtime'
    if diag: a(f's_waitcnt lgkmcnt(0)\n{op} s[{64+2*n}:{65+2*n}]\ns_waitcnt lgkmcnt(0)')
def dump(a, diag, role, sStep, v, vz, n=7, tag=''):
    if not diag or diag == 3: return
    t = f'DUMP{role}{tag}'
    a(f's_cmp_lg_u32 s3, 0\ns_cbranch_scc1 {t}')
    a(f's_lshl_b32 s60, s{sL}, 4\ns_add_u32 s60, s60, s{sI}\ns_add_u32 s60, s60, {role*32}\ns_lshl_b32 s60, s60, 6\ns_add_u32 s60, s60, s{sStep}\ns_lshl_b32 s60, s60, 5\ns_add_u32 s60, s60, {DBG}')
    for i in range(n):
        a(f'v_mov_b32 v{v}, s{64+2*i}\nv_mov_b32 v{vz}, {4*i}\nbuffer_store_dword v{v}, v{vz}, {wsr()}, s60 offen')
    a.label(t)

def mem_gather(a, tag, sMEM, vP1, vP2, ST, vt, scnt, code, K=2, gap=0, shadow=()):
    def issue(k):
        a(f'buffer_load_dwordx4 {vr(ST+8*k,4)}, v{vP1}, {wsr()}, s{sMEM} offen sc1')
        a(f'buffer_load_dwordx4 {vr(ST+8*k+4,4)}, v{vP2}, {wsr()}, s{sMEM} offen sc1'); return 2
    poll(a, tag, [range(ST, ST+8), range(ST+8, ST+16)][:K], issue, vt, scnt, code, gap, shadow)
    for k in range(K):
        a.label(f'{tag}_OK{k}')
        a(f'ds_write_b128 v{vP1}, {vr(ST+8*k,4)}\nds_write_b128 v{vP2}, {vr(ST+8*k+4,4)}')
        if k < K-1: a(f's_branch {tag}_DONE')
    a.label(f'{tag}_DONE')
def rec_common(a, vL16, vP1, vP2, vIDX, vt):
    a(f'v_lshlrev_b32 v{vL16}, 4, v1\ns_mul_i32 s20, s3, 1792\nv_add_u32 v{vP1}, s20, v{vL16}')
    a(f'v_add_u32 v{vP2}, 1024, v{vP1}\nv_cmp_gt_u32 vcc, 48, v1\nv_cndmask_b32 v{vP2}, v{vP1}, v{vP2}, vcc')
    a(f'v_and_b32 v{vt}, 1, v1\nv_cmp_eq_u32 vcc, 0, v{vt}\nv_mov_b32 v{vIDX}, 0xeeee\nv_mov_b32 v{vt}, 0x4444\nv_cndmask_b32 v{vIDX}, v{vIDX}, v{vt}, vcc')

def gen_RA(a, diag=False):
    vL16, vP1, vP2, vIDX, vt, vK, vMK, vSW, vSR, vPS, vPM = 2, 3, 4, 5, 6, 7, 8, 9, 10, 11, 0
    ME, KM, UA, XK, FO, TP = 12, 40, 56, 84, 112, 116
    vK1, vMK1, vA0, vA1, vTH = 114, 115, 54, 55, 1
    vKL, vK1a, vTO, vTD = 118, 119, 117, 116
    ST = KM
    MB = 7424; RED = 3 * MB; KB0 = 32768
    sMEM, sXS, sPM, sS, sC, sC2, sM0, sBUF = 21, 22, 23, 24, 25, 26, 33, 35
    HB = 36
    a.label('RA')
    rec_common(a, vL16, vP1, vP2, vIDX, vt)
    a(f's_mov_b32 s{sM0}, s20')
    a(f's_lshl_b32 s34, s{sI}, 2\ns_add_u32 s34, s34, s3\ns_mul_i32 s20, s34, {98*KB}')
    if AIMG: a(f's_add_u32 s20, s20, {AIMG}')
    load_weights(a, 'RA', 20, 98, vL16, blocks=(14, 1, prod_A(a, sI))); wstamp(a, diag)
    a(f'v_and_b32 v{vt}, 14, v1\nv_lshlrev_b32 v{vMK}, 4, v{vt}\nv_lshrrev_b32 v{vt}, 5, v1\nv_lshl_add_u32 v{vMK}, v{vt}, 8, v{vMK}\nv_bfe_u32 v{vt}, v1, 4, 1\nv_lshl_add_u32 v{vMK}, v{vt}, 3, v{vMK}')
    a('s_lshr_b32 s27, s3, 1\ns_mul_i32 s27, s27, 7\ns_add_u32 s27, s27, 3\ns_and_b32 s28, s3, 1')
    a(f's_lshl_b32 s29, s27, 10\ns_lshl_b32 s30, s28, 3\ns_add_u32 s29, s29, s30\nv_add_u32 v{vK1}, s29, v{vL16}\ns_lshl_b32 s29, s27, 9\ns_lshl_b32 s30, s28, 2\ns_add_u32 s29, s29, s30\nv_add_u32 v{vMK1}, s29, v{vMK}')
    a('s_mul_i32 s27, s3, 7\ns_add_u32 s27, s27, 1\ns_lshr_b32 s27, s27, 1\ns_lshl_b32 s28, s27, 10\ns_lshl_b32 s27, s27, 9')
    a(f'v_add_u32 v{vK}, s28, v{vL16}\nv_add_u32 v{vMK}, s27, v{vMK}')
    a(f'v_lshrrev_b32 v{vt}, 4, v1\nv_lshlrev_b32 v{vt}, 1, v{vt}\nv_and_b32 v{ST}, 7, v1\nv_sub_u32 v{vt}, v{ST}, v{vt}\nv_mov_b32 v{ST}, 0x3f803f80')
    for d in range(2): a(f'v_cmp_eq_u32 vcc, {d}, v{vt}\nv_cndmask_b32 v{FO+d}, 0, v{ST}, vcc')
    a(f'v_and_b32 v{vt}, 7, v1\nv_bfe_u32 v{ST}, v1, 3, 1\nv_cmp_eq_u32 s[{HB}:{HB+1}], 1, v{ST}\nv_lshl_add_u32 v{vt}, v{vt}, 1, v{ST}')
    a(f'v_lshrrev_b32 v{ST}, 5, v1\nv_lshlrev_b32 v{ST}, 3, v{ST}\nv_xor_b32 v{vt}, v{vt}, v{ST}\nv_and_b32 v{ST}, 48, v1\nv_add_lshl_u32 v{vt}, v{vt}, v{ST}, 3')
    a(f's_mul_i32 s27, s3, 1536\ns_add_u32 s27, s27, {RED}\nv_add_u32 v{vSW}, s27, v{vt}')
    a(f'v_lshrrev_b32 v{vt}, 4, v1\nv_lshlrev_b32 v{vt}, 2, v{vt}\nv_bfe_u32 v{ST}, v1, 1, 2\nv_add_u32 v{vt}, v{vt}, v{ST}\nv_and_b32 v{ST}, 8, v1\nv_xor_b32 v{vt}, v{vt}, v{ST}')
    a(f'v_lshl_add_u32 v{vt}, v{ST}, 2, v{vt}\nv_and_b32 v{ST}, 1, v1\nv_lshl_add_u32 v{vt}, v{ST}, 4, v{vt}\nv_lshlrev_b32 v{vt}, 3, v{vt}\nv_add_u32 v{vSR}, {RED}, v{vt}\nv_lshlrev_b32 v{vt}, 3, v1')
    a(f's_lshr_b32 s27, s{sI}, 2\ns_mul_i32 s27, s27, 3072\ns_bfe_u32 s28, s{sI}, 0x10001\ns_and_b32 s29, s{sI}, 1')
    a(f's_lshl_b32 s30, s28, 10\ns_lshl_b32 s31, s29, 9\ns_add_u32 s30, s30, s31\ns_add_u32 s30, s30, s27\nv_add_u32 v{vPS}, s30, v{vt}')
    a(f's_lshl_b32 s30, s28, 9\ns_lshl_b32 s31, s29, 2\ns_add_u32 s30, s30, s31\ns_add_u32 s30, s30, s27\ns_add_u32 s30, s30, 2048\nv_add_u32 v{vPM}, s30, v{vt}')
    a(f's_mul_i32 s{sMEM}, s{sL}, {MEM_L}\ns_add_u32 s{sMEM}, s{sMEM}, {MEMX}')
    a(f's_mov_b32 s{sXS}, {XS1}\ns_cmp_eq_u32 s{sL}, 1\ns_cselect_b32 s{sXS}, {XS2}, s{sXS}')
    a(f's_mul_i32 s{sPM}, s{sL}, {64*PM_STEP}\ns_add_u32 s{sPM}, s{sPM}, {PM}\ns_mov_b32 s{sS}, 0\nv_mov_b32 v{vTH}, {f2u(OPT.get("th", 64.0)):#x}')
    def keyl(base_s, voff, voff1, dst, st):
        return [f'buffer_load_dwordx4 {vr(dst+4*p,4)}, v{voff}, {wsr()}, s{base_s} offen offset:{st*p} sc1' for p in range(3)] + \
               [f'buffer_load_dwordx2 {vr(dst+12,2)}, v{voff1}, {wsr()}, s{base_s} offen sc1']
    a(f's_lshl_b32 s38, s3, 13\ns_add_u32 s38, s38, {KB0}\nv_add_u32 v{vKL}, s38, v{vL16}\ns_and_b32 s39, s3, 1\ns_lshl_b32 s39, s39, 3')
    def kdma():
        o = []
        for kt in range(2):
            for p in range(4):
                o += [f's_add_u32 m0, s38, {4096*kt + (0 if p < 3 else 3072)}'] if p in (0, 3) else []
                o.append(f'buffer_load_dwordx4 v{vK if p < 3 else vK1a}, {wsr()}, s{27 if kt else sXS} offen offset:{1024*p if p < 3 else 0} sc1 lds')
        return o
    a('v_mov_b32 v116, -1\nv_mov_b32 v117, -1')
    a(f'v_and_b32 v{vK1a}, -16, v{vK1}\ns_add_u32 s27, s{sXS}, {MT}')
    for l in kdma(): a(l)
    a('s_waitcnt vmcnt(0)')
    if diag == 3: a('s_memtime s[64:65]\ns_memrealtime s[68:69]\ns_waitcnt lgkmcnt(0)\ns_mov_b32 s72, 0\ns_mov_b32 s74, 0\ns_mov_b32 s78, 0\ns_mov_b32 s86, 0')
    dstamp(a, f's_lshl_b32 s88, s{sL}, 2\ns_add_u32 s88, s88, 8')
    NL = OPT.get('ra_lines', 56)
    a(f's_mul_i32 s40, s{sL}, {64*VP_STEP}\ns_mul_i32 s43, s34, {56*128}\ns_add_u32 s40, s40, s43\ns_add_u32 s40, s40, {VP}')
    a.label('RA_STEP')
    if OPT.get('ra_touch'):
        a(f'v_lshrrev_b32 v{ME}, 4, v{vL16}\nv_min_u32 v{ME}, {NL-1}, v{ME}\nv_lshlrev_b32 v{ME}, 7, v{ME}\nbuffer_load_dword v{ST}, v{ME}, {wsr()}, s40 offen sc1\ns_add_u32 s40, s40, {VP_STEP}')
    a(f'v_add_u32 v{vt}, s39, v{vKL}')
    for kt in range(2):
        for p in range(3): a(f'ds_read_b128 {vr(XK+14*kt+4*p,4)}, v{vKL} offset:{4096*kt+1024*p}')
        a(f'ds_read_b64 {vr(XK+14*kt+12,2)}, v{vt} offset:{4096*kt+3072}')
    for i in range(28): a(f'v_mov_b32 v{UA+i}, 0')
    a(f's_mov_b32 s{sC2}, 0\ns_waitcnt lgkmcnt(0)')
    allset(a, vt, range(XK, XK+28))
    a('s_cbranch_vccnz RA_KL')
    a.label('RA_KOK')
    a(f's_add_u32 s{sXS}, s{sXS}, {SEGB}\ns_add_u32 s27, s{sXS}, {MT}')
    a(f's_add_u32 s41, s{sPM}, {2*PM_STEP}\ns_cmp_lt_u32 s{sS}, 62\ns_cselect_b32 s41, s41, {OOB}\ns_cmp_eq_u32 s3, 0\ns_cselect_b32 s41, s41, {OOB}\ns_bitcmp0_b32 s{sI}, 0\ns_cselect_b32 s42, s41, {OOB}')
    stamp(a, 3, diag, 'RA')
    if OPT['ra_sleep']: a(f's_sleep {OPT["ra_sleep"]}')
    def dma(k):
        a(f's_add_u32 m0, s{sM0}, {k*MB}' if k else f's_mov_b32 m0, s{sM0}')
        a(f'buffer_load_dwordx4 v{vP1}, {wsr()}, s{sMEM} offen sc1 lds\nbuffer_load_dwordx4 v{vP1}, {wsr()}, s{sMEM} offen offset:1024 sc1 lds')
    pre = []
    if OPT.get('ra_dma', 1):
        a(f's_mov_b32 s{sC}, 0')
        dma(0)
        for _ in range(OPT['ra_gap'] // 16): a('s_nop 15')
        if OPT['ra_gap'] % 16: a(f's_nop {OPT["ra_gap"] % 16 - 1}')
        a.label('RA_M_L')
        for k in range(3):
            dma((k+1) % 3)
            a(f's_mov_b32 s{sBUF}, {k*MB}\ns_waitcnt vmcnt(2)\ns_barrier')
            for b in range(7): a(f'ds_read_b128 {vr(ME+4*b,4)}, v{vL16} offset:{k*MB+1024*b}')
            for b in range(7):
                q = ME+4*b
                a(f's_waitcnt lgkmcnt({6-b})')
                a(f'v_max3_u32 v{vt}, v{q}, v{q+1}, v{q+2 if b == 0 else vt}')
                a(f'v_max_u32 v{vt}, v{vt}, v{q+3}' if b == 0 else f'v_max3_u32 v{vt}, v{q+2}, v{q+3}, v{vt}')
            a(f'v_cmp_eq_u32 vcc, -1, v{vt}\ns_cbranch_vccz RA_M_OK')
            if diag == 3: a('s_add_u32 s72, s72, 1')
        guard(a, sC, 1)
        a('s_branch RA_M_L')
    else:
        a(f's_mov_b32 s{sBUF}, 0')
        mem_gather(a, 'RA_M', sMEM, vP1, vP2, ST, vt, sC, 1, OPT['ra_k'], OPT['ra_gap'])
        a('s_waitcnt lgkmcnt(0)\ns_barrier')
        pre = [f'ds_read_b128 {vr(ME+4*b,4)}, v{vL16} offset:{1024*b}' for b in range(7)]
    a.label('RA_M_OK')
    stamp(a, 0, diag, 'RA')
    if diag == 3: a(f's_add_u32 s72, s72, s{sC}\ns_add_u32 s74, s74, s{sC2}')
    stamp(a, 1, diag, 'RA')
    SA = [UA+4, UA+12, UA+20]
    UT = lambda p: UA + 8*p
    ops = list(pre); bias = {}
    assert pre
    ops.append(f'v_add_u32 v{vt}, 1024, v{vMK}')
    nk = len(ops)
    for p in range(3):
        for nt in range(2): ops.append(f'ds_read2_b32 {vr(KM+4*p+2*nt,2)}, v{vMK if p < 2 else vt} offset0:{(128*p+nt) % 256} offset1:{(128*p+nt) % 256 + 4}')
    ops.append(f'ds_read2_b32 {vr(KM+12,2)}, v{vMK1} offset0:0 offset1:4')
    nd = len(ops)
    ops += kdma()
    ops += [f'buffer_store_dwordx2 v[116:117], v{vPS}, {wsr()}, s41 offen', f'buffer_store_dwordx2 v[116:117], v{vPM}, {wsr()}, s42 offen']
    n0 = len(ops)
    for tl in range(7):
        c = UA+4*tl; tp = vA0; ut = UT(tl >> 1) + 2*(tl & 1)
        for b in range(7):
            bias[len(ops)] = OPT.get('ra_bias', 60) * (6 - max(tl, 1 if pre else 0)) if b == 6 else 0
            ops.append(f'v_smfmac_f32_16x16x64_bf16 {vr(c,4)}, {vr(ME+4*b,4)}, {wreg((b*7+tl)*2, 8)}, v{vIDX}')
        ops += [f'v_cvt_pk_bf16_f32 v{tp}, v{c}, v{c+1}', f'v_cvt_pk_bf16_f32 v{tp+1}, v{c+2}, v{c+3}']
        ops.append(f'v_mfma_f32_16x16x16_bf16 {vr(c,4)}, {vr(tp,2)}, {vr(FO,2)}, 0')
        ops += [f'v_cvt_pk_bf16_f32 v{ut}, v{c}, v{c+1}', f'v_cvt_pk_bf16_f32 v{ut+1}, v{c+2}, v{c+3}']
    for kt in (2, 0, 1):
        kb = (XK, XK+14, KM)[kt]; c = vr(SA[kt], 4)
        for p in range(4):
            if p < 3: ops.append(f'v_mfma_f32_16x16x32_bf16 {c}, {vr(kb+4*p,4)}, {vr(UT(p),4)}, {c if p else 0}')
            else: ops.append(f'v_mfma_f32_16x16x16_bf16 {c}, {vr(kb+12,2)}, {vr(UT(3),2)}, {c}')
    ops += [f's_add_u32 s{sMEM}, s{sMEM}, {MEM_STEP}', f's_add_u32 s{sS}, s{sS}, 1']
    for kt in (2, 0, 1):
        c = SA[kt]
        ops.append(f'v_cndmask_b32 v{c}, v{c}, v{c+2}, s[{HB}:{HB+1}]')
        if kt < 2: ops += [f'v_cndmask_b32 v{c+1}, v{c+1}, v{c+3}, s[{HB}:{HB+1}]', f'ds_write_b64 v{vSW}, {vr(c,2)} offset:{512*kt}']
        else: ops.append(f'ds_write_b32 v{vSW}, v{c} offset:{512*kt}')
    out, vm, lg = schedule(ops, L=dict(ds=80, vmgap=80), prio_bias=bias, vm_in=[set(regs_of(vr(ST, 16)))], late={nk: 300, nd: 100})
    print('RA core estimate', schedule.cycles)
    for l in out:
        if not (OPT.get('x_nou') and 'smfmac' in l): a(l)
    stamp(a, 2, diag, 'RA')
    a('s_cmp_lg_u32 s3, 0\ns_waitcnt lgkmcnt(0)\ns_barrier')
    if diag: stamp(a, 4, diag, 'RA'); a('s_cmp_lg_u32 s3, 0')
    a('s_cbranch_scc1 RA_NEXT')
    R = UA
    for kt in (2, 0, 1):
        for pp in range(2):
            a(f'ds_read2st64_b64 {vr(R+8*kt+4*pp,4)}, v{vSR} offset0:{kt+6*pp} offset1:{kt+6*pp+3}')
    x = [R, R+1, R+8, R+9, R+16]; m, t = R+2, R+3
    y = [R+4, R+5, R+12, R+13, R+20]
    b = R+16
    a(f's_waitcnt lgkmcnt(4)\nv_add_f32 v{b}, v{b}, v{b+2}\nv_add_f32 v{b+4}, v{b+4}, v{b+6}\nv_add_f32 v{b}, v{b}, v{b+4}\nv_exp_f32 v{y[4]}, v{x[4]}')
    for n, kt in enumerate((0, 1)):
        b = R+8*kt
        a(f's_waitcnt lgkmcnt({2-2*n})')
        a(f'v_pk_add_f32 {vr(b,2)}, {vr(b,2)}, {vr(b+2,2)}\nv_pk_add_f32 {vr(b+4,2)}, {vr(b+4,2)}, {vr(b+6,2)}\nv_pk_add_f32 {vr(b,2)}, {vr(b,2)}, {vr(b+4,2)}')
        a(f'v_exp_f32 v{y[2*kt]}, v{x[2*kt]}')
        a(f'v_max3_f32 v{m}, |v{x[2*kt]}|, |v{x[2*kt+1]}|, |v{x[4] if n == 0 else m}|')
        a(f'v_exp_f32 v{y[2*kt+1]}, v{x[2*kt+1]}')
    a(f'v_cmp_nle_f32 vcc, v{m}, v{vTH}\nv_add_f32 v{t}, v{y[0]}, v{y[1]}\ns_cbranch_vccnz RA_SHIFT')
    a.label('RA_SUM')
    a(f'v_add_f32 v{m}, v{y[4]}, v{y[2]}\nv_add_f32 v{t}, v{t}, v{y[3]}\nv_add_f32 v{m}, v{m}, v{t}')
    DP = ('quad_perm:[1,0,3,2]', 'quad_perm:[2,3,0,1]', 'row_ror:8')
    for ctl in DP: a(f'v_add_f32_dpp v{m}, v{m}, v{m} {ctl} row_mask:0xf bank_mask:0xf')
    a(f'v_rcp_f32 v{m}, v{m}')
    o = R+8
    for k in range(2): a(f'v_pk_mul_f32 {vr(y[2*k],2)}, {vr(y[2*k],2)}, {vr(m,2)} op_sel_hi:[1,0]')
    a(f'v_mul_f32 v{y[4]}, v{y[4]}, v{m}')
    for k in range(2): a(f'v_cvt_pk_bf16_f32 v{o+k}, v{y[2*k]}, v{y[2*k+1]}')
    a(f'buffer_store_dwordx2 {vr(o,2)}, v{vPS}, {wsr()}, s{sPM} offen\nv_cvt_pk_bf16_f32 v{o+2}, v{y[4]}, v{y[4]}\nbuffer_store_dword v{o+2}, v{vPM}, {wsr()}, s{sPM} offen')
    stamp(a, 5, diag, 'RA'); dump(a, diag, 0, sS, m, vt)
    a.label('RA_NEXT')
    a('s_waitcnt vmcnt(2)\ns_cmp_eq_u32 s3, 0\ns_cbranch_scc1 RA_N2\ns_waitcnt vmcnt(0)')
    a.label('RA_N2')
    if OPT.get('dd'):
        a(f's_cmp_eq_u32 s{sS}, 10\ns_cbranch_scc1 RA_DD\ns_cmp_lg_u32 s{sS}, 36\ns_cbranch_scc1 RA_DE')
        a.label('RA_DD')
        dstamp(a, f's_lshr_b32 s88, s{sS}, 5\ns_lshl_b32 s88, s88, 1\ns_add_u32 s88, s88, s{sL}\ns_lshl_b32 s88, s88, 2\ns_add_u32 s88, s88, 48')
        a.label('RA_DE')
    a('s_barrier')
    a(f's_add_u32 s{sPM}, s{sPM}, {PM_STEP}\ns_cmp_lt_u32 s{sS}, 63\ns_cbranch_scc1 RA_STEP')
    dstamp(a, f's_lshl_b32 s88, s{sL}, 2\ns_add_u32 s88, s88, 16')
    if diag == 3:
        a('s_memtime s[66:67]\ns_memrealtime s[70:71]\ns_waitcnt lgkmcnt(0)'); a(f's_mov_b32 s{sS}, 0'); dump(a, 1, 0, sS, UA, vt, n=8, tag='E')
    a('s_endpgm')
    a.label('RA_KL')
    for l in keyl(sXS, vK, vK1, XK, 1024) + keyl(27, vK, vK1, XK+14, 1024): a(l)
    guard(a, sC2, 2)
    a('s_waitcnt vmcnt(0)')
    allset(a, vt, range(XK, XK+28))
    a('s_cbranch_vccnz RA_KL\ns_branch RA_KOK')
    a.label('RA_SHIFT')
    a(f'v_max3_f32 v{m}, v{x[0]}, v{x[1]}, v{x[2]}\nv_max3_f32 v{m}, v{x[3]}, v{x[4]}, v{m}')
    for ctl in DP: a(f'v_max_f32_dpp v{m}, v{m}, v{m} {ctl} row_mask:0xf bank_mask:0xf')
    for i in range(5): a(f'v_sub_f32 v{y[i]}, v{x[i]}, v{m}')
    for i in range(5): a(f'v_exp_f32 v{y[i]}, v{y[i]}')
    a(f'v_add_f32 v{t}, v{y[0]}, v{y[1]}\ns_branch RA_SUM')

def gen_RB(a, diag=False):
    vL16, vP1, vP2, vIDX, vt, vRW, vRR, vO, vWL, vPL, vF, vX = 2, 3, 4, 5, 6, 7, 8, 9, 10, 11, 0, 1
    ME, ST, WA, VV = 12, 40, 56, 88
    RED, WL = 8192, 16384
    sMEM, sVP, sPM, sFL, sS, sC, sO = 21, 22, 24, 25, 26, 27, 28
    a.label('RB')
    rec_common(a, vL16, vP1, vP2, vIDX, vt)
    a(f's_lshl_b32 s30, s{sI}, 2\ns_add_u32 s30, s30, s3\ns_mul_i32 s20, s30, {112*KB}\ns_add_u32 s20, s20, {BIMG}')
    a(f's_mul_i32 s31, s3, {14*KB}\ns_add_u32 s31, s31, {WL}\nv_add_u32 v{vWL}, s31, v{vL16}')
    load_weights(a, 'RB', 20, 98, vL16, 14, 31, blocks=(16, 4, prod_B(a))); wstamp(a, diag)
    a(f's_mul_i32 s{sMEM}, s{sL}, {MEM_L}\ns_add_u32 s{sMEM}, s{sMEM}, {MEMX}')
    a(f's_mul_i32 s{sVP}, s{sL}, {64*VP_STEP}\ns_lshl_b32 s32, s30, 13\ns_add_u32 s{sVP}, s{sVP}, s32\ns_add_u32 s{sVP}, s{sVP}, {VP}')
    a(f's_mul_i32 s{sPM}, s{sL}, {64*PM_STEP}\ns_mul_i32 s32, s3, 3072\ns_add_u32 s{sPM}, s{sPM}, s32\ns_add_u32 s{sPM}, s{sPM}, {PM}')
    a(f's_mul_i32 s{sFL}, s{sL}, {64*FL_STEP}\ns_lshl_b32 s32, s{sI}, 7\ns_add_u32 s{sFL}, s{sFL}, s32\ns_lshl_b32 s32, s3, 2\ns_add_u32 s{sFL}, s{sFL}, s32\ns_add_u32 s{sFL}, s{sFL}, {VF}')
    a(f'v_and_b32 v{vt}, 15, v1\nv_lshlrev_b32 v{vt}, 2, v{vt}\nv_lshrrev_b32 v{ST}, 4, v1\nv_lshl_add_u32 v{vt}, v{ST}, 8, v{vt}')
    a(f's_lshl_b32 s32, s3, 10\ns_add_u32 s32, s32, {RED}\nv_add_u32 v{vRW}, s32, v{vt}')
    a(f'v_lshrrev_b32 v{vt}, 5, v1\nv_lshlrev_b32 v{vPL}, 9, v{vt}\nv_bfe_u32 v{vt}, v1, 2, 2\nv_lshl_add_u32 v{vPL}, v{vt}, 7, v{vPL}\nv_bfe_u32 v{vt}, v1, 4, 1\nv_lshl_add_u32 v{vPL}, v{vt}, 6, v{vPL}\nv_and_b32 v{vt}, 3, v1\nv_lshl_add_u32 v{vPL}, v{vt}, 4, v{vPL}')
    T = ST
    a(f'v_and_b32 v{T}, 127, v0')
    a('s_cmp_ge_u32 s3, 2\ns_cbranch_scc1 RB_INIT_F')
    a(f'v_bfe_u32 v{T+1}, v{T}, 3, 3\nv_lshlrev_b32 v{vRR}, 7, v{T+1}\nv_and_b32 v{T+1}, 1, v{T}\nv_lshl_add_u32 v{vRR}, v{T+1}, 6, v{vRR}')
    a(f'v_lshrrev_b32 v{T+1}, 6, v{T}\nv_lshl_add_u32 v{vRR}, v{T+1}, 5, v{vRR}\nv_bfe_u32 v{T+1}, v{T}, 1, 1\nv_lshl_add_u32 v{vRR}, v{T+1}, 4, v{vRR}\nv_bfe_u32 v{T+1}, v{T}, 2, 1\nv_lshl_add_u32 v{vRR}, v{T+1}, 3, v{vRR}')
    a(f's_lshl_b32 s32, s{sI}, 9\nv_lshl_add_u32 v{vO}, v{T}, 2, s32\ns_branch RB_INIT_D')
    a.label('RB_INIT_F')
    a(f'v_bfe_u32 v{T+1}, v{T}, 2, 3\nv_lshlrev_b32 v{vRR}, 7, v{T+1}\nv_bfe_u32 v{T+1}, v{T}, 1, 1\nv_lshl_add_u32 v{vRR}, v{T+1}, 6, v{vRR}')
    a(f'v_lshrrev_b32 v{T+1}, 5, v{T}\nv_lshl_add_u32 v{vRR}, v{T+1}, 4, v{vRR}\nv_and_b32 v{T+1}, 1, v{T}\nv_lshl_add_u32 v{vRR}, v{T+1}, 3, v{vRR}')
    a(f's_lshl_b32 s32, s{sI}, 9\ns_add_u32 s32, s32, {MEM_ONE}\nv_lshl_add_u32 v{vO}, v{T}, 2, s32')
    a.label('RB_INIT_D')
    a(f's_add_u32 s{sO}, s{sMEM}, {MEM_ONE}\nbuffer_load_dword v{vX}, v{vO}, {wsr()}, s{sO} offen sc1')
    a(f'v_add_u32 v{vRR}, {RED}, v{vRR}\ns_mov_b32 s{sS}, 0\nv_mov_b32 v{vF}, -1\ns_waitcnt vmcnt(0)')
    if diag == 3: a('s_mov_b32 s72, 0\ns_mov_b32 s74, 0\ns_mov_b32 s76, 0\ns_mov_b32 s78, 0\ns_mov_b32 s86, 0')
    a.label('RB_STEP')
    NE = OPT.get('rb_early', 0)
    vl = [f'buffer_load_dwordx4 {vr(VV+4*i,4)}, v{vL16}, {wsr()}, s{35 if i < 4 else 32} offen offset:{1024*(i%4)} sc1' for i in range(8)]
    vset = f's_mov_b32 s35, s{sVP}\ns_add_u32 s32, s{sVP}, 4096'
    a(f'v_cmp_eq_u32 vcc, -1, v{vF}\ns_cbranch_vccnz RB_V1')
    a(vset)
    for l in vl[:NE]: a(l)
    a.label('RB_V2')
    stamp(a, 0, diag, 'RB')
    if OPT['rb_msleep']: a(f's_sleep {OPT["rb_msleep"]}')
    mem_gather(a, 'RB_M', sMEM, vP1, vP2, ST, vt, sC, 4, OPT['rb_k'], shadow=[f'v_mov_b32 v{WA+i}, 0' for i in range(32)])
    stamp(a, 1, diag, 'RB')
    if diag == 3: a(f's_add_u32 s72, s72, s{sC}')
    a(f's_cmp_eq_u32 s35, {OOB}\ns_cbranch_scc1 RB_V3')
    a.label('RB_V4')
    a(f's_add_u32 s{sFL}, s{sFL}, {FL_STEP}')
    a(f's_add_u32 s33, s{sMEM}, {2*MEM_STEP}\ns_cmp_lt_u32 s{sS}, 62\ns_cselect_b32 s33, s33, {OOB}\ns_cmp_lt_u32 s3, 2\ns_cselect_b32 s33, s33, {OOB}')
    a(f's_add_u32 s34, s{sMEM}, {7*MEM_STEP+MEM_ONE}\ns_cmp_lt_u32 s{sS}, 57\ns_cselect_b32 s34, s34, {OOB}')
    a('s_waitcnt lgkmcnt(0)\ns_barrier')
    ops = [f'ds_read_b128 {vr(ME+4*b,4)}, v{vL16} offset:{1024*b}' for b in (0, 6, 1, 2, 3, 4, 5)]
    nv = len(ops)
    ops.append(f'buffer_store_dword v{vX}, v{vO}, {wsr()}, s{sO} offen sc1')
    ops += [f'v_mov_b32 v{vt}, -1', f'buffer_store_dword v{vt}, v{vO}, {wsr()}, s33 offen', f'buffer_store_dword v{vt}, v{vO}, {wsr()}, s34 offen sc1']
    if OPT.get('x_nopo'): ops = ops[:-1]
    if not OPT.get('x_nov'): ops += vl[NE:]
    ops.append(f'buffer_load_dword v{vF}, off, {wsr()}, s{sFL} sc1')
    lead = []; rest = []
    for b in range(7):
        for u in range(8):
            f = (b*8+u)*2
            if f < 98: rest.append(f'v_smfmac_f32_16x16x64_bf16 {vr(WA+4*u,4)}, {vr(ME+4*b,4)}, {wreg(f, 8)}, v{vIDX}')
            else:
                w = ST+8*(u % 2)
                lead += [f'ds_read_b128 {vr(w,4)}, v{vWL} offset:{(f-98)*1024}', f'ds_read_b128 {vr(w+4,4)}, v{vWL} offset:{(f-97)*1024}',
                         f'v_smfmac_f32_16x16x64_bf16 {vr(WA+4*u,4)}, {vr(ME+4*b,4)}, {vr(w,8)}, v{vIDX}']
    for i in range(7): ops += rest[7*i:7*i+7] + lead[3*i:3*i+3]
    if OPT.get('x_now'): ops = [o for o in ops if 'smfmac' not in o]
    for u in range(8):
        c = WA+4*u; o = ME+8*(u & 1)+2*(u >> 1)
        ops += [f'v_cvt_pk_bf16_f32 v{o}, v{c}, v{c+1}', f'v_cvt_pk_bf16_f32 v{o+1}, v{c+2}, v{c+3}']
    ops += [f'v_mov_b32 v{ME+16+i}, 0' for i in range(8)]
    out, vm, lg = schedule(ops, L=dict(ds=80, vmgap=OPT.get('rb_vgap', 64)), vm_in=[set(regs_of(vr(ST, 16)))] if OPT['rb_k'] > 1 else [], late={nv: 90})
    print('RB w estimate', schedule.cycles)
    for l in out: a(l)
    a(f's_cmp_eq_u32 s35, {OOB}\ns_cbranch_scc1 RB_V5')
    a.label('RB_V6')
    WK, OA = ME, ME+16
    stamp(a, 2, diag, 'RB')
    sets = [ST, WA, WA+12][:OPT['rb_pk']]
    if diag in (1, 2): a('s_waitcnt vmcnt(0)')
    stamp(a, 3, diag, 'RB')
    if OPT['rb_psleep']: a(f's_sleep {OPT["rb_psleep"]}')
    def issue(k):
        for i in range(3): a(f'buffer_load_dwordx4 {vr(sets[k]+4*i,4)}, v{vPL}, {wsr()}, s{sPM} offen offset:{1024*i} sc1')
        return 3
    poll(a, 'RB_P', [range(s, s+12) for s in sets], issue, vt, sC, 5, OPT['rb_gap'])
    for k in range(len(sets)):
        a.label(f'RB_P_OK{k}')
        for blk in range(3):
            for nt in range(2):
                B = vr(VV+8*(blk*2+nt), 8) if blk < 2 else vr(WK+8*nt, 8)
                a(f'v_smfmac_f32_16x16x64_bf16 {vr(OA+4*nt,4)}, {vr(sets[k]+4*blk,4)}, {B}, v{vIDX}')
        if k < len(sets)-1: a('s_branch RB_P_DONE')
    a.label('RB_P_DONE')
    if diag == 3: a(f's_add_u32 s74, s74, s{sC}')
    stamp(a, 4, diag, 'RB')
    a(f's_add_u32 s{sMEM}, s{sMEM}, {MEM_STEP}\ns_add_u32 s{sO}, s{sMEM}, {MEM_ONE}')
    for nt in range(2):
        for jj in range(2):
            c = OA+4*nt+2*jj
            a(f'v_add_f32 v{c}, v{c}, v{c+1}\nds_write_b32 v{vRW}, v{c} offset:{128*jj+64*nt}')
    a('s_cmp_ge_u32 s3, 2\ns_waitcnt lgkmcnt(0)\ns_barrier')
    R = OA
    a('s_waitcnt vmcnt(0)')
    a(f'ds_read2st64_b64 {vr(R,4)}, v{vRR} offset0:0 offset1:2\nds_read2st64_b64 {vr(R+4,4)}, v{vRR} offset0:4 offset1:6')
    a(f's_waitcnt lgkmcnt(1)\nv_pk_add_f32 {vr(R,2)}, {vr(R,2)}, {vr(R+2,2)}\ns_waitcnt lgkmcnt(0)\nv_pk_add_f32 {vr(R+4,2)}, {vr(R+4,2)}, {vr(R+6,2)}\nv_pk_add_f32 {vr(R,2)}, {vr(R,2)}, {vr(R+4,2)}')
    a(f'v_cvt_pk_bf16_f32 v{vX}, v{R}, v{R+1}')
    a('s_cbranch_scc1 RB_NOLOC')
    a(f'buffer_store_dword v{vX}, v{vO}, {wsr()}, s{sMEM} offen')
    a.label('RB_NOLOC')
    a(f's_add_u32 s{sVP}, s{sVP}, {VP_STEP}\ns_add_u32 s{sPM}, s{sPM}, {PM_STEP}\ns_add_u32 s{sS}, s{sS}, 1')
    stamp(a, 5, diag, 'RB'); dump(a, diag, 1, sS, OA+1, vt)
    a(f's_cmp_lt_u32 s{sS}, 63\ns_cbranch_scc1 RB_STEP')
    a(f'buffer_store_dword v{vX}, v{vO}, {wsr()}, s{sO} offen sc1')
    if diag == 3: a(f's_mov_b32 s{sS}, 0'); dump(a, 1, 1, sS, OA+1, vt, n=8, tag='E')
    a('s_endpgm')
    a.label('RB_V1')
    if diag == 3: a('s_add_u32 s76, s76, 1')
    a(f's_mov_b32 s35, {OOB}\ns_mov_b32 s32, {OOB}\nbuffer_load_dword v{vF}, off, {wsr()}, s{sFL} sc1\ns_branch RB_V2')
    a.label('RB_V3')
    a(f'v_cmp_eq_u32 vcc, -1, v{vF}\ns_cbranch_vccnz RB_V4')
    a(vset)
    for l in vl[:NE]: a(l)
    a('s_branch RB_V4')
    a.label('RB_V5')
    a(f's_mov_b32 s{sC}, 0\ns_sub_u32 s33, s{sFL}, {FL_STEP}')
    a.label('RB_VF')
    a(f'buffer_load_dword v{vt}, off, {wsr()}, s33 sc1')
    guard(a, sC, 3)
    a(f's_waitcnt vmcnt(0)\nv_cmp_eq_u32 vcc, -1, v{vt}\ns_cbranch_vccnz RB_VF')
    a(vset)
    for l in vl: a(l)
    a('s_branch RB_V6')

def gen_PF(a, diag=False):
    vB, vt, vZ = 3, 5, 6
    sXS, sMEM, sS, sC = 23, 24, 25, 26
    AH = OPT.get('pf_ahead', 2)
    a.label('PF')
    load_weights(a, 'PF', 20, 0, 0)
    a(f's_lshl_b32 s30, s{sI}, 2\ns_add_u32 s30, s30, s3\nv_mov_b32 v{vZ}, 0')
    a(f's_mov_b32 s{sXS}, {XS1}\ns_cmp_eq_u32 s{sL}, 1\ns_cselect_b32 s{sXS}, {XS2}, s{sXS}\ns_mul_i32 s32, s30, 3584\ns_add_u32 s{sXS}, s{sXS}, s32')
    a(f'v_min_u32 v{vB}, 27, v1\nv_lshlrev_b32 v{vB}, 7, v{vB}')
    a(f's_mul_i32 s{sMEM}, s{sL}, {MEM_L}\ns_add_u32 s{sMEM}, s{sMEM}, {MEMX}\ns_mov_b32 s{sS}, 0')
    a(f'v_min_u32 v7, 11, v1\nv_lshlrev_b32 v7, 7, v7\nv_min_u32 v8, 6, v1\nv_lshlrev_b32 v8, 7, v8')
    a(f's_mul_i32 s27, s{sL}, {64*PM_STEP}\ns_mul_i32 s32, s30, 1536\ns_add_u32 s27, s27, s32\ns_add_u32 s27, s27, {PM}')
    a(f's_mul_i32 s32, s30, 896\ns_add_u32 s28, s{sMEM}, s32\ns_add_u32 s28, s28, {MEM_STEP}')
    def slots():
        a(f'buffer_load_dword v9, v7, {wsr()}, s27 offen sc1\nbuffer_load_dword v9, v8, {wsr()}, s28 offen sc1')
        a(f's_add_u32 s27, s27, {PM_STEP}\ns_add_u32 s28, s28, {MEM_STEP}')
    for _ in range(4): slots()
    a.label('PF_STEP')
    a(f's_mov_b32 s{sC}, 0\ns_cmp_le_u32 s{sS}, {AH}\ns_cbranch_scc1 PF_SL\ns_add_u32 s{sMEM}, s{sMEM}, {MEM_STEP}')
    a.label('PF_TH')
    a(f'buffer_load_dword v{vt}, v{vZ}, {wsr()}, s{sMEM} offen sc1')
    guard(a, sC, 6)
    a(f's_waitcnt vmcnt(0)\nv_cmp_eq_u32 vcc, -1, v{vt}\ns_cbranch_vccz PF_SL\ns_sleep 4\ns_branch PF_TH')
    a.label('PF_SL')
    slots()
    a.label('PF_X')
    a(f'buffer_load_dword v{vt}, v{vB}, {wsr()}, s{sXS} offen sc1')
    guard(a, sC, 7)
    a(f's_waitcnt vmcnt(0)\nv_cmp_eq_u32 vcc, -1, v{vt}\ns_cbranch_vccz PF_GO\ns_sleep 4\ns_branch PF_X')
    a.label('PF_GO')
    a(f's_add_u32 s{sXS}, s{sXS}, {SEGB}\ns_add_u32 s{sS}, s{sS}, 1')
    a(f's_cmp_lt_u32 s{sS}, 63\ns_cbranch_scc1 PF_STEP\ns_endpgm')
```
